```python
import torch

def _softmax(x, axis=-1):
    return torch.softmax(x, dim=axis)
def _gelu(x):
    return torch.nn.functional.gelu(x, approximate="tanh")
def _silu(x):
    return torch.nn.functional.silu(x)
def _sigmoid(x):
    return torch.sigmoid(x)
def _layernorm(x, axis=-1, eps=1e-5):
    m = x.mean(dim=axis, keepdim=True)
    v = x.var(dim=axis, keepdim=True, unbiased=False)
    return (x - m) / torch.sqrt(v + eps)
def _scatter_add(tgt, idx, src, axis=0):
    return tgt.clone().index_add_(axis, idx, src)
def _segment_sum(src, seg, n):
    out = torch.zeros((n,) + src.shape[1:], dtype=src.dtype)
    return out.index_add_(0, seg, src)
def _pad(x, pw):
    flat = tuple(v for pair in reversed(pw) for v in pair)
    return torch.nn.functional.pad(x, flat)

kernel_name = 'recurrent_scan__mha_block__dense_activation_squared_relu__prompt'

def setup_inputs():

    _w = (lambda a: (lambda t: t.to(torch.bfloat16) if t.is_floating_point() else t)(torch.as_tensor(a)))
    def _A_setup():
        B, S, D, H = 1, 2048, 512, 32
        return {
            "x": _w((lambda *s: torch.randn(*s, dtype=torch.bfloat16) * 0.05)(B, S, D)),
            "wqkv": _w((lambda *s: torch.randn(*s, dtype=torch.bfloat16) * 0.05)(D, 3 * D)),
            "wo": _w((lambda *s: torch.randn(*s, dtype=torch.bfloat16) * 0.05)(D, D)),
        }
    _A_in = _A_setup()

    def _B_setup():
        B, S, D, F = 1, 2048, 512, 1792
        return {
            "x": _w((lambda *s: torch.randn(*s, dtype=torch.bfloat16) * 0.05)(B, S, D)),
            "w1": _w((lambda *s: torch.randn(*s, dtype=torch.bfloat16) * 0.05)(D, F)),
            "b1": _w((lambda *s: torch.randn(*s, dtype=torch.bfloat16) * 0.4)(F)),
            "w2": _w((lambda *s: torch.randn(*s, dtype=torch.bfloat16) * 0.05)(F, D)),
            "b2": _w((lambda *s: torch.randn(*s, dtype=torch.bfloat16) * 1.6)(D)),
        }
    _B_in = _B_setup()

    return {
        "A_x": _A_in["x"],
        "A_wqkv": _A_in["wqkv"],
        "A_wo": _A_in["wo"],
        "B_x": _B_in["x"],
        "B_w1": _B_in["w1"],
        "B_b1": _B_in["b1"],
        "B_w2": _B_in["w2"],
        "B_b2": _B_in["b2"],
    }

def reference(A_x, A_wqkv, A_wo, B_x, B_w1, B_b1, B_w2, B_b2):
    def _A_ref(x, wqkv, wo):
        B, S, D = x.shape
        H = 32
        Dh = D // H
        qkv = (lambda x, *d: x.permute(*d))((x @ wqkv).reshape(B, S, 3, H, Dh), 2, 0, 3, 1, 4)
        q, k, v = qkv[0], qkv[1], qkv[2]
        scores = torch.einsum("bhqd,bhkd->bhqk", q, k) * (Dh ** -0.5)
        p = _softmax(scores, axis=-1)
        o = torch.einsum("bhqk,bhkd->bhqd", p, v)
        return (lambda x, *d: x.permute(*d))(o, 0, 2, 1, 3).reshape(B, S, D) @ wo

    def _B_ref(x, w1, b1, w2, b2):
        h = torch.einsum("bsd,df->bsf", x, w1) + b1
        zero = torch.zeros_like(h)
        r = torch.where(h > zero, h, zero)
        h = r * r
        out = torch.einsum("bsf,fd->bsd", h, w2) + b2
        return out

    x = A_x
    xn = _layernorm(x, axis=-1)
    s = _A_ref(xn, A_wqkv, A_wo)
    g = _silu(_B_ref(xn, B_w1, B_b1, B_w2, B_b2))
    return x + s * g
```

```python
import re

class Asm:
    def __init__(self):
        self.lines = []
    def __call__(self, s):
        for l in s.split("\n"):
            l = l.strip()
            if l:
                self.lines.append(l)
    def label(self, name):
        self.lines.append(name + ":")
    def comment(self, s):
        self.lines.append("; " + s)
    def text(self):
        out = []
        for l in self.lines:
            if l.endswith(":") or l.startswith(";") or l.startswith("."):
                out.append(l)
            else:
                out.append("  " + l)
        return "\n".join(out) + "\n"

def vr(base, n=1):
    return f"v{base}" if n == 1 else f"v[{base}:{base+n-1}]"
def sr(base, n=1):
    return f"s{base}" if n == 1 else f"s[{base}:{base+n-1}]"

REG = re.compile(r"\b([vs])(\d+)\b|\b([vs])\[(\d+):(\d+)\]|\b(vcc|exec|m0|scc)\b")
def regs_of(op):
    out = set()
    for m in REG.finditer(op):
        if m.group(1):
            out.add((m.group(1), int(m.group(2))))
        elif m.group(3):
            for i in range(int(m.group(4)), int(m.group(5)) + 1):
                out.add((m.group(3), i))
        else:
            out.add((m.group(6), 0))
    return out

TRANS = ("v_exp_", "v_log_", "v_rcp_", "v_rsq_", "v_sqrt_", "v_sin_", "v_cos_")
def parse(line):
    l = line.split(";")[0].strip()
    if not l or l.endswith(":") or l.startswith("."):
        return None
    parts = l.split(None, 1)
    mn = parts[0]
    ops = [o.strip() for o in parts[1].split(",")] if len(parts) > 1 else []
    d = dict(mn=mn, ops=ops, text=l)
    isv = mn.startswith("v_")
    d["valu"] = isv and not mn.startswith("v_mfma")
    d["mfma"] = mn.startswith("v_mfma")
    d["trans"] = mn.startswith(TRANS)
    d["vmem"] = mn.startswith(("buffer_", "global_"))
    d["ds"] = mn.startswith("ds_")
    d["salu"] = mn.startswith("s_")
    w, r = set(), set()
    allops = [regs_of(o) for o in ops]
    if d["mfma"]:
        w = allops[0]; r = allops[1] | allops[2] | allops[3]
        d["srcC"] = allops[3]; d["srcAB"] = allops[1] | allops[2]
    elif d["valu"]:
        if mn.startswith("v_cmp"):
            w = allops[0]; r = set().union(*allops[1:])
        elif mn.startswith("v_permlane32_swap") or mn.startswith("v_permlane16_swap"):
            w = allops[0] | allops[1]; r = set(w)
        elif mn.startswith(("v_readfirstlane", "v_readlane")):
            w = allops[0]; r = set().union(*allops[1:])
        else:
            w = allops[0]; r = set().union(*allops[1:]) if len(allops) > 1 else set()
            if mn.startswith(("v_fmac", "v_dot2c", "v_pk_fmac")): r |= w
            if mn.startswith("v_cndmask") and len(ops) == 3: r.add(("vcc", 0))
            if "_co_" in mn and len(allops) > 1: w |= allops[1]
    elif d["vmem"]:
        if "load" in mn and "lds" not in l.split():
            w = allops[0]; r = set().union(*allops[1:])
        elif "atomic" in mn:
            r = set().union(*allops)
            if "sc0" in l.split(): w = allops[0]
        else:
            r = set().union(*allops)
            if "lds" in l.split(): r.add(("m0", 0))
        d["store"] = "store" in mn
    elif d["ds"]:
        if mn.startswith(("ds_read", "ds_bpermute", "ds_permute", "ds_swizzle")) or "_rtn" in mn:
            w = allops[0]; r = set().union(*allops[1:])
        else:
            r = set().union(*allops)
    elif d["salu"]:
        if mn.startswith(("s_cmp", "s_cbranch", "s_branch", "s_waitcnt", "s_barrier", "s_nop", "s_endpgm", "s_sleep", "s_setprio", "s_bitcmp")):
            r = set().union(*allops) if allops else set()
        else:
            w = allops[0] if allops else set()
            r = set().union(*allops[1:]) if len(allops) > 1 else set()
    d["w"], d["r"] = w, r
    return d

def ws_of(d):
    if d["mn"] == "s_nop":
        return int(d["ops"][0], 0) + 1
    return 1

def check_hazards(lines, verbose=True):
    ins = []
    for i, l in enumerate(lines):
        d = parse(l)
        if d: d["ln"] = i; ins.append(d)
    probs = []
    def vonly(s): return {x for x in s if x[0] == "v"}
    def sonly(s): return {x for x in s if x[0] in ("s", "vcc")}
    for i, d in enumerate(ins):
        dist = 0
        j = i - 1
        while j >= 0 and dist < 20:
            p = ins[j]
            if p["mn"] in ("s_branch", "s_endpgm", "s_setpc_b64"):
                break
            need = 0; why = ""
            if d["mfma"] and p["valu"] and vonly(p["w"]) & d["r"]: need, why = 2, "valu->mfma"
            if p["mfma"]:
                pw = p["w"]
                if d["mfma"]:
                    if pw & d["srcAB"]: need, why = 12, "mfmaD->mfmaAB"
                    elif pw & d["srcC"] and pw != d["srcC"]: need, why = 10, "mfmaD->srcC partial"
                    elif (pw & d["w"]) and pw != d["srcC"] and not d["srcC"]:
                        need, why = 0, ""
                elif (d["valu"] or d["vmem"] or d["ds"]) and (pw & (d["r"] | d["w"])): need, why = 12, "mfmaD->valu/mem"
                if d["valu"] and (p["srcC"] & d["w"]) and need < 7: need, why = 7, "mfma srcC WAR"
            if p["trans"] and d["valu"] and not d["trans"] and (p["w"] & d["r"]): need, why = max(need, 1), "trans->valu"
            if p["trans"] and d["mfma"] and (p["w"] & d["r"]): need, why = max(need, 2), "trans->mfma"
            if p["valu"] and sonly(p["w"]):
                sw = sonly(p["w"])
                if d["vmem"] and (sw & d["r"]): need, why = 5, "valu sgpr->vmem"
                elif d["valu"] and (sw & d["r"]):
                    need, why = (4, "valu sgpr->lane sel") if d["mn"].startswith(("v_readlane","v_writelane")) else (2, "valu sgpr->valu")
            if p["valu"] and d["mn"].startswith(("v_readfirstlane", "v_readlane")) and (vonly(p["w"]) & d["r"]): need, why = max(need,1), "valu->readlane"
            if p["valu"] and d["mn"].startswith("v_permlane") and (vonly(p["w"]) & d["r"]): need, why = max(need,2), "valu->permlane"
            if p["valu"] and "dpp" in d["text"] and (vonly(p["w"]) & d["r"]): need, why = max(need,2), "valu->dpp"
            if p["salu"] and ("m0", 0) in p["w"] and d["vmem"] and ("m0", 0) in d["r"]: need, why = max(need,1), "m0->lds dma"
            if p["vmem"] and p.get("store") and ("x4" in p["mn"] or "x3" in p["mn"]) and d["valu"]:
                data = regs_of(p["ops"][0])
                if data & d["w"]: need, why = max(need,2), "store data WAR"
            if need > dist:
                probs.append((d["ln"], lines[d["ln"]], p["ln"], lines[p["ln"]], why, need, dist))
            dist += ws_of(p)
            j -= 1
    if verbose:
        for x in probs:
            print("HAZARD %s: need %d have %d\n   L%d %s\n   L%d %s" % (x[4], x[5], x[6], x[2], x[3], x[0], x[1]))
    return probs
```

```python
import sys, math
from asmlib import Asm, vr, sr, check_hazards

NAME = "recurrent_scan__mha_block__dense_activation_squared_relu__prompt"
KN = NAME + "_kernel"

WS_Q, WS_K, WS_V = 0, 2 << 20, 4 << 20
WS_H = 6 << 20
WS_O = 14 << 20
WS_F = 16 << 20
WS_DBG = WS_F + (64 << 10)
WS_SIZE = WS_DBG + (256 << 10)
FL1, FL2, FL3 = WS_F, WS_F + 4096, WS_F + 8192

LDS_RING = 131072
LDS_SCR = LDS_RING + 3 * 8192 + 7 * 1024
LDS_NONCE = LDS_RING + 3 * 8192 + 6 * 1024
LDS_XF = LDS_NONCE + 16
LDS_DROP = 0x30000

QSCALE = 0.25 * math.log2(math.e)

def f2u(x):
    import struct
    return struct.unpack("<I", struct.pack("<f", x))[0]

S_W = 3
S_X, S_WQKV, S_WO, S_W1, S_B1, S_W2, S_B2, S_OUT, S_DBG, S_WS = 4, 6, 8, 12, 14, 16, 18, 20, 22, 24
S_TG, S_J = 26, 27
SRD_WS, SRD_A, SRD_B = 28, 32, 36
S_NONCE = 40
S_ONES = 41
S_HEAD, S_QB, S_T, S_C = 96, 97, 98, 99

class Gen:
    def __init__(self, stop_after="all", stamps=False, dbg=""):
        self.dbg = dbg.split(",")
        self.a = Asm()
        self.stop = stop_after
        self.stamps = stamps
        self.uid = 0
    def lab(self, p):
        self.uid += 1
        return f"L_{p}_{self.uid}"

    def srd(self, dst, ptr, size):
        a = self.a
        a(f"s_mov_b32 s{dst}, s{ptr}")
        a(f"s_and_b32 s{dst+1}, s{ptr+1}, 0xffff")
        a(f"s_mov_b32 s{dst+2}, {size}")
        a(f"s_mov_b32 s{dst+3}, 0x20000")

    def stamp(self, slot):
        if not self.stamps: return
        a = self.a
        a("s_memtime s[90:91]" if 'cyc' in self.dbg and slot not in (14,) else "s_memrealtime s[90:91]")
        a("s_waitcnt lgkmcnt(0)")
        a(f"s_mov_b32 s{64+slot}, s90")

    def dump_stamps(self):
        if not self.stamps: return
        a = self.a
        a("s_lshl_b32 s92, s2, 4")
        a(f"s_add_u32 s92, s92, s{S_W}")
        a("s_lshl_b32 s92, s92, 6")
        a(f"s_add_u32 s92, s92, {WS_DBG}")
        a("v_mov_b32 v1, 0")
        a("s_memtime s[84:85]")
        self.stamp(14)
        a("s_mov_b32 s79, s88")
        a("s_getreg_b32 s76, hwreg(HW_REG_HW_ID)")
        a("s_sub_u32 s77, s84, s86")
        for i in range(16):
            a(f"v_mov_b32 v2, s{64+i}")
            a(f"buffer_store_dword v2, v1, s[{SRD_WS}:{SRD_WS+3}], s92 offen offset:{4*i}")
            a("s_nop 1")

    def entry(self):
        a = self.a
        if self.stamps:
            a("s_memrealtime s[88:89]")
            a("s_memtime s[86:87]")
        a(f"s_cmp_ge_u32 s2, 256")
        a(f"s_cbranch_scc1 L_end")
        a("s_load_dwordx16 s[4:19], s[0:1], 0")
        a("s_load_dwordx4 s[20:23], s[0:1], 64")
        a("s_load_dwordx2 s[24:25], s[0:1], 80")
        a("v_lshrrev_b32 v1, 6, v0")
        a("v_and_b32 v0, 63, v0")
        a("s_and_b32 s26, s2, 1")
        a(f"v_readfirstlane_b32 s{S_W}, v1")
        a("s_lshl_b32 s26, s26, 3")
        a("s_bfe_u32 s42, s2, 0x30003")
        a(f"s_add_u32 s{S_TG}, s26, s42")
        a("s_bfe_u32 s27, s2, 0x20001")
        a("s_lshl_b32 s27, s27, 2")
        a("s_lshr_b32 s42, s2, 6")
        a(f"s_add_u32 s{S_J}, s27, s42")
        a(f"s_mov_b32 s{S_ONES}, 0x3f803f80")
        if self.stamps:
            for i in range(16): a(f"s_mov_b32 s{64+i}, 0")
        a(f"s_cmp_ge_u32 s{S_W}, 8")
        a("s_cbranch_scc1 L_role_ffn")
        a(f"s_cmp_ge_u32 s{S_W}, 4")
        a("s_cbranch_scc1 L_role_x")
        a(f"s_cmp_eq_u32 s{S_W}, 3")
        a("s_cbranch_scc1 L_role_w3")

    ACC = 64
    XA, XB = 16, 32
    WA, WB = 48, 52
    CS = 56
    VXA = 4
    VWR = 8
    VWG = 9
    S_WOFF, S_WSTR, S_RING, S_RINGD, S_CNT = 42, 43, 44, 45, 46

    def gemm_setup_addrs(self):
        a = self.a
        a("v_and_b32 v10, 31, v0")
        a("v_lshrrev_b32 v11, 5, v0")
        a("v_bfe_u32 v12, v0, 1, 3")
        a("v_xor_b32 v12, v11, v12")
        a("v_lshlrev_b32 v12, 4, v12")
        a(f"v_lshl_or_b32 v{self.VXA}, v10, 7, v12")
        for m in range(1, 4):
            a(f"v_xor_b32 v{self.VXA+m}, {32*m}, v{self.VXA}")
        a("v_bfe_u32 v12, v0, 2, 2")
        a("v_lshl_add_u32 v12, v11, 3, v12")
        a("v_lshlrev_b32 v12, 6, v12")
        a("v_bfe_u32 v13, v0, 4, 1")
        a("v_lshl_add_u32 v12, v13, 5, v12")
        a("v_and_b32 v13, 3, v0")
        a(f"v_lshl_add_u32 v{self.VWR}, v13, 3, v12")
        a(f"v_add_u32 v{self.VWR}, s{self.S_RING}, v{self.VWR}")

    def gemm_wg_voffset(self, pitch):
        a = self.a
        a("v_lshrrev_b32 v12, 2, v0")
        a(f"s_mov_b32 s47, {pitch}")
        a("v_mul_lo_u32 v12, v12, s47")
        a("v_and_b32 v13, 3, v0")
        a(f"v_lshl_add_u32 v{self.VWG}, v13, 4, v12")

    def w_dma(self, slot, ring_reg):
        a = self.a
        a(f"s_add_u32 m0, s{ring_reg}, {slot*1024}")
        a(f"s_add_u32 s{self.S_WOFF}, s{self.S_WOFF}, s{self.S_WSTR}")
        a(f"buffer_load_dwordx4 v{self.VWG}, s[{SRD_A}:{SRD_A+3}], s{self.S_WOFF} offen lds")

    def frag_reads(self, ksn, X, W, base_ks):
        a = self.a
        rel = ksn - base_ks
        slot = ksn & 7
        m = ksn & 3
        kc = rel >> 2 if base_ks % 8 == 0 else None
        return rel, slot, m, kc

    VF = 144
    S_NEED = 56

    def xflag_check(self, L):
        a = self.a
        a(f"v_readfirstlane_b32 s57, v149")
        return L

    def gemm_loop(self, swapped, s1, tag):
        a = self.a
        L = self.lab("gl_" + tag)
        a(f"s_mov_b32 s{self.S_CNT}, 0")
        a(f"s_mov_b32 s{self.S_RINGD}, s{self.S_RING}")
        if s1: a(f"s_mov_b32 s{self.S_NEED}, 1")
        a.label(L)
        a(f"s_cmp_eq_u32 s{self.S_CNT}, 3")
        a(f"s_cselect_b32 s{self.S_RINGD}, {LDS_DROP}, s{self.S_RINGD}")
        for i in range(8):
            X, W = (self.XA, self.WA) if i % 2 == 0 else (self.XB, self.WB)
            Xn, Wn = (self.XB, self.WB) if i % 2 == 0 else (self.XA, self.WA)
            def mf(tb):
                acc = self.ACC + 16 * tb
                if swapped:
                    a(f"v_mfma_f32_32x32x16_bf16 {vr(acc,16)}, {vr(X+4*tb,4)}, {vr(W,4)}, {vr(acc,16)}")
                else:
                    a(f"v_mfma_f32_32x32x16_bf16 {vr(acc,16)}, {vr(W,4)}, {vr(X+4*tb,4)}, {vr(acc,16)}")
            chk = s1 and (i & 3) == 3
            a("s_waitcnt lgkmcnt(0)")
            mf(0)
            if chk:
                a(f"v_min3_u32 v149, v{self.VF}, v{self.VF+1}, v{self.VF+2}")
                a(f"s_add_u32 s{self.S_NEED}, s{self.S_NEED}, 1")
                a(f"v_min_u32 v149, v149, v{self.VF+3}")
                a(f"s_min_u32 s{self.S_NEED}, s{self.S_NEED}, 8")
            self.w_dma(i, self.S_RINGD)
            if chk: a("v_readfirstlane_b32 s57, v149")
            a("s_waitcnt vmcnt(7)")
            nslot = (i + 1) & 7
            a(f"ds_read_b64_tr_b16 {vr(Wn,2)}, v{self.VWR} offset:{nslot*1024}")
            a(f"ds_read_b64_tr_b16 {vr(Wn+2,2)}, v{self.VWR} offset:{nslot*1024+256}")
            if chk:
                Lok, Lsp = self.lab("xok"), self.lab("xsp")
                a(f"s_cmp_ge_u32 s57, s{self.S_NEED}")
                a(f"s_cbranch_scc1 {Lok}")
                a("s_mov_b32 s58, 0")
                a.label(Lsp)
                a(f"ds_read_b128 {vr(self.VF,4)}, v148")
                a("s_add_u32 s58, s58, 1")
                a("s_waitcnt lgkmcnt(0)")
                a(f"v_min3_u32 v149, v{self.VF}, v{self.VF+1}, v{self.VF+2}")
                a(f"v_min_u32 v149, v149, v{self.VF+3}")
                a("s_nop 0")
                a("v_readfirstlane_b32 s57, v149")
                a("s_cmp_ge_u32 s58, 0x100000")
                a(f"s_cbranch_scc1 {Lok}")
                a(f"s_cmp_lt_u32 s57, s{self.S_NEED}")
                a(f"s_cbranch_scc1 {Lsp}")
                a.label(Lok)
            mf(1)
            n = i + 1
            for tb in range(4):
                a(f"ds_read_b128 {vr(Xn+4*tb,4)}, v{self.VXA+(n&3)} offset:{(n>>2)*16384 + tb*4096}")
            if s1 and (i & 3) == 2:
                a(f"ds_read_b128 {vr(self.VF,4)}, v148")
            mf(2)
            if 'nocs' not in self.dbg:
                a(f"v_mfma_f32_16x16x32_bf16 {vr(self.CS4,4)}, {vr(W,4)}, {vr(self.PAR,4)}, {vr(self.CS4,4)}")
            mf(3)
        for m in range(4):
            a(f"v_add_u32 v{self.VXA+m}, 0x8000, v{self.VXA+m}")
        a(f"s_add_u32 s{self.S_CNT}, s{self.S_CNT}, 1")
        a(f"s_cmp_lt_u32 s{self.S_CNT}, 4")
        a(f"s_cbranch_scc1 {L}")

    def wait_xflags(self, regs, need, vaddr, vt):
        a = self.a
        Lsp, Lok = self.lab("wsp"), self.lab("wok")
        a("s_mov_b32 s58, 0")
        a.label(Lsp)
        n = len(regs)
        a(f"ds_read_b{32*n} {vr(regs[0], n)}, v{vaddr}")
        a("s_add_u32 s58, s58, 1")
        a("s_waitcnt lgkmcnt(0)")
        if n == 4:
            a(f"v_min3_u32 v{vt}, v{regs[0]}, v{regs[1]}, v{regs[2]}")
            a(f"v_min_u32 v{vt}, v{vt}, v{regs[3]}")
        else:
            a(f"v_min_u32 v{vt}, v{regs[0]}, v{regs[1]}")
        a("s_nop 0")
        a(f"v_readfirstlane_b32 s57, v{vt}")
        a("s_cmp_ge_u32 s58, 0x100000")
        a(f"s_cbranch_scc1 {Lok}")
        a(f"s_cmp_lt_u32 s57, {need}")
        a(f"s_cbranch_scc1 {Lsp}")
        a.label(Lok)

    CS4 = 56
    PAR = 60

    def cs_acc(self, W, q0, q1):
        a = self.a
        for q in range(q0, q1):
            t = 58 + 2 * (q & 1)
            a(f"v_lshlrev_b32 v{t}, 16, v{W+q}")
            a(f"v_and_b32 v{t+1}, 0xffff0000, v{W+q}")
            a(f"v_add_f32 v{self.CS}, v{t}, v{self.CS}")
            a(f"v_add_f32 v{self.CS+1}, v{t+1}, v{self.CS+1}")

    def gemm_first_frags(self):
        a = self.a
        a(f"ds_read_b64_tr_b16 {vr(self.WA,2)}, v{self.VWR} offset:0")
        a(f"ds_read_b64_tr_b16 {vr(self.WA+2,2)}, v{self.VWR} offset:256")
        for tb in range(4):
            a(f"ds_read_b128 {vr(self.XA+4*tb,4)}, v{self.VXA} offset:{tb*4096}")

    def zero_acc(self):
        a = self.a
        for i in range(64):
            a(f"v_mov_b32 v{self.ACC+i}, 0")

    def cs16_from_cs4(self):
        a = self.a
        a("v_lshrrev_b32 v11, 5, v0")
        a("v_lshlrev_b32 v11, 6, v11")
        for r in range(16):
            b, jj = r >> 2, r & 3
            a(f"ds_bpermute_b32 v{16+r}, v11, v{self.CS4+jj} offset:{128*(b&1)+4*(b>>1)}")

    def cs_total(self):
        a = self.a
        a(f"v_add_f32 v{self.CS}, v{self.CS}, v{self.CS+1}")
        a("s_nop 0")
        a(f"v_mov_b32 v{self.CS+1}, v{self.CS}")
        a("s_nop 1")
        a(f"v_permlane32_swap_b32 v{self.CS}, v{self.CS+1}")
        a("s_nop 1")
        a(f"v_add_f32 v{self.CS}, v{self.CS}, v{self.CS+1}")

    def read_nonce(self, vtmp):
        a = self.a
        a(f"v_mov_b32 v{vtmp}, {LDS_NONCE}")
        a(f"ds_read_b32 v{vtmp}, v{vtmp}")

    def publish_flag(self, s_off, vtmp):
        a = self.a
        a("s_waitcnt vmcnt(0)")
        a(f"v_mov_b32 v{vtmp}, s{S_NONCE}")
        a(f"v_mov_b32 v{vtmp+1}, 0")
        a("s_mov_b64 exec, 1")
        a(f"buffer_store_dword v{vtmp}, v{vtmp+1}, s[{SRD_WS}:{SRD_WS+3}], s{s_off} offen sc1")
        a("s_mov_b64 exec, -1")

    def tok_stats_read(self):
        a = self.a
        a("v_and_b32 v10, 31, v0")
        a(f"v_lshlrev_b32 v10, 2, v10")
        a(f"v_add_u32 v10, {LDS_SCR}, v10")
        for tb in range(4):
            a(f"ds_read_b32 v{32+2*tb}, v10 offset:{tb*128}")
            a(f"ds_read_b32 v{33+2*tb}, v10 offset:{512+tb*128}")
        self.read_nonce(40)
        a("v_lshrrev_b32 v11, 5, v0")
        a("v_lshlrev_b32 v11, 4, v11")
        for r in range(16):
            a(f"ds_bpermute_b32 v{16+r}, v11, v{self.CS} offset:{(8*(r>>2)+(r&3))*4}")

    def role_qkv(self):
        a = self.a
        a(f"s_lshl_b32 s{self.S_RING}, s{S_W}, 13")
        a(f"s_add_u32 s{self.S_RING}, s{self.S_RING}, {LDS_RING}")
        a(f"s_mul_i32 s53, s{S_J}, 3")
        a(f"s_add_u32 s53, s53, s{S_W}")
        self.gemm_wg_voffset(3072)
        a(f"s_lshl_b32 s{self.S_WOFF}, s53, 6")
        a(f"s_mov_b32 s{self.S_WSTR}, {16*3072 if 'wq0' not in self.dbg else 0}")
        a(f"s_sub_u32 s{self.S_WOFF}, s{self.S_WOFF}, s{self.S_WSTR}")
        a("s_waitcnt lgkmcnt(0)")
        self.srd(SRD_A, S_WQKV, 512 * 3072)
        for sl in range(8):
            self.w_dma(sl, self.S_RING)
        a("s_lshr_b32 s54, s53, 4")
        a("s_and_b32 s55, s53, 15")
        self.srd(SRD_WS, S_WS, WS_SIZE)
        self.gemm_setup_addrs()
        self.zero_acc()
        self.cs4_init()
        a(f"v_mov_b32 v148, {LDS_XF}")
        self.stamp(0)
        a("s_barrier")
        self.wait_xflags([144, 145, 146, 147], 1, 148, 149)
        a("s_waitcnt vmcnt(7)")
        self.stamp(1)
        self.gemm_first_frags()
        a("s_cmp_eq_u32 s54, 2")
        a("s_cbranch_scc1 L_role_v")
        self.gemm_loop(False, True, "qk")
        self.stamp(2)
        a("s_barrier")
        a("v_and_b32 v10, 31, v0")
        a(f"v_lshlrev_b32 v10, 2, v10")
        a(f"v_add_u32 v10, {LDS_SCR}, v10")
        for tb in range(4):
            a(f"ds_read_b32 v{32+2*tb}, v10 offset:{tb*128}")
            a(f"ds_read_b32 v{33+2*tb}, v10 offset:{512+tb*128}")
        self.read_nonce(40)
        a("s_nop 3")
        self.cs16_from_cs4()
        a("s_waitcnt lgkmcnt(0)")
        a(f"v_readfirstlane_b32 s{S_NONCE}, v40")
        a("s_cmp_eq_u32 s54, 0")
        a(f"s_cselect_b32 s47, {f2u(QSCALE)}, 1.0")
        for tb in range(4):
            a(f"v_mul_f32 v{32+2*tb}, s47, v{32+2*tb}")
            a(f"v_mul_f32 v{33+2*tb}, s47, v{33+2*tb}")
        a("s_lshl_b32 s48, s54, 21")
        a("s_lshl_b32 s49, s55, 17")
        a("s_add_u32 s48, s48, s49")
        a(f"s_lshl_b32 s49, s{S_TG}, 12")
        a("s_add_u32 s48, s48, s49")
        a("v_lshlrev_b32 v10, 4, v0")
        self.tok_epilogue_store(ffn=False)
        a("s_barrier")
        a("s_lshl_b32 s48, s55, 8")
        a("s_lshl_b32 s49, s54, 6")
        a("s_add_u32 s48, s48, s49")
        a(f"s_lshl_b32 s49, s{S_TG}, 2")
        a("s_add_u32 s48, s48, s49")
        a(f"s_add_u32 s48, s48, {FL1}")
        self.publish_flag(48, 12)
        self.stamp(3)
        a("s_branch L_s2_idle")

    def tok_epilogue_store(self, ffn):
        a = self.a
        hb_stride = 1024 if ffn else 65536
        tb_stride = 112 * 1024 if ffn else 1024
        T = 44
        for tb in range(4):
            st = 32 + 2 * tb
            for hb in range(2):
                P = 48 + 4 * hb
                for p in range(4):
                    r = 8 * hb + 2 * p
                    acc = self.ACC + 16 * tb + r
                    w = T + 2 * (p & 1)
                    if ffn:
                        a(f"v_pk_fma_f32 {vr(w,2)}, {vr(16+r,2)}, {vr(st,2)}, {vr(128+r,2)} op_sel:[0,1,0] op_sel_hi:[1,1,1]")
                    else:
                        a(f"v_pk_mul_f32 {vr(w,2)}, {vr(16+r,2)}, {vr(st,2)} op_sel:[0,1] op_sel_hi:[1,1]")
                    a(f"v_pk_fma_f32 {vr(acc,2)}, {vr(acc,2)}, {vr(st,2)}, {vr(w,2)} op_sel_hi:[1,0,1]")
                    if ffn:
                        a(f"v_max_f32 v{acc}, 0, v{acc}")
                        a(f"v_max_f32 v{acc+1}, 0, v{acc+1}")
                        a(f"v_pk_mul_f32 {vr(acc,2)}, {vr(acc,2)}, {vr(acc,2)}")
                    a(f"v_cvt_pk_bf16_f32 v{P+p}, v{acc}, v{acc+1}")
                off = hb * hb_stride + tb * tb_stride
                a(f"s_add_u32 s49, s48, {off}")
                a(f"buffer_store_dwordx4 {vr(P,4)}, v10, s[{SRD_WS}:{SRD_WS+3}], s49 offen sc1")

    def role_v(self):
        a = self.a
        a.label("L_role_v")
        self.gemm_loop(True, True, "v")
        self.stamp(2)
        a("s_barrier")
        self.read_nonce(40)
        a("v_bfe_u32 v12, v0, 2, 2")
        a("v_bfe_u32 v13, v0, 4, 1")
        a("v_lshl_add_u32 v12, v12, 4, v13")
        a("v_lshlrev_b32 v12, 2, v12")
        a("s_nop 3")
        for jj in range(4):
            a(f"ds_bpermute_b32 v{16+jj}, v12, v{self.CS4+jj}")
        a("v_and_b32 v13, 3, v0")
        a("s_waitcnt lgkmcnt(0)")
        for jj in range(1, 4):
            a(f"v_cmp_eq_u32 vcc, {jj}, v13")
            a("s_nop 1")
            a(f"v_cndmask_b32 v16, v16, v{16+jj}, vcc")
        a(f"v_mov_b32 v{self.CS}, v16")
        a("v_lshrrev_b32 v11, 5, v0")
        a("v_lshlrev_b32 v11, 4, v11")
        a(f"v_add_u32 v11, {LDS_SCR}, v11")
        a("v_bfe_u32 v12, v0, 4, 1")
        a("v_lshlrev_b32 v12, 16, v12")
        a("v_lshrrev_b32 v13, 5, v0")
        a("v_lshl_add_u32 v12, v13, 8, v12")
        a("v_and_b32 v13, 15, v0")
        a("v_lshl_add_u32 v10, v13, 4, v12")
        a("s_lshl_b32 s48, s55, 17")
        a(f"s_lshl_b32 s49, s{S_TG}, 12")
        a("s_add_u32 s48, s48, s49")
        a(f"s_add_u32 s48, s48, {WS_V}")
        a("s_waitcnt lgkmcnt(0)")
        a(f"v_readfirstlane_b32 s{S_NONCE}, v40")
        for tb in range(4):
            for b in range(4):
                a(f"ds_read_b128 {vr(16+4*b,4)}, v11 offset:{(32*tb+8*b)*4}")
                a(f"ds_read_b128 {vr(32+4*b,4)}, v11 offset:{512+(32*tb+8*b)*4}")
            a("s_waitcnt lgkmcnt(0)")
            for t in range(2):
                P = 48 + 4 * t
                for p in range(4):
                    r = 8 * t + 2 * p
                    acc = self.ACC + 16 * tb + r
                    w = 58 + 2 * (p & 1)
                    a(f"v_pk_mul_f32 {vr(w,2)}, {vr(32+r,2)}, {vr(self.CS,2)} op_sel_hi:[1,0]")
                    a(f"v_pk_fma_f32 {vr(acc,2)}, {vr(acc,2)}, {vr(16+r,2)}, {vr(w,2)}")
                    a(f"v_cvt_pk_bf16_f32 v{P+p}, v{acc}, v{acc+1}")
                a(f"s_add_u32 s49, s48, {tb*1024 + t*512}")
                a(f"buffer_store_dwordx4 {vr(P,4)}, v10, s[{SRD_WS}:{SRD_WS+3}], s49 offen sc1")
        a("s_barrier")
        a("s_lshl_b32 s48, s55, 8")
        a(f"s_lshl_b32 s49, s{S_TG}, 2")
        a("s_add_u32 s48, s48, s49")
        a(f"s_add_u32 s48, s48, {FL1 + 128}")
        self.publish_flag(48, 12)
        self.stamp(3)
        a("s_branch L_s2_idle")

    def role_x(self):
        a = self.a
        a.label("L_role_x")
        a("v_lshrrev_b32 v1, 3, v0")
        a("v_lshrrev_b32 v2, 4, v0")
        a("v_and_b32 v3, 7, v0")
        a("v_xor_b32 v3, v2, v3")
        a("v_lshlrev_b32 v3, 4, v3")
        a("v_lshl_or_b32 v2, v1, 10, v3")
        a("v_xor_b32 v3, 64, v2")
        a(f"s_sub_u32 s42, s{S_W}, 4")
        a(f"s_lshl_b32 s43, s{S_TG}, 17")
        a("s_lshl_b32 s44, s42, 15")
        a("s_add_u32 s43, s43, s44")
        a("s_lshl_b32 s44, s42, 12")
        a("s_waitcnt lgkmcnt(0)")
        self.srd(SRD_A, S_X, 2048 * 1024)
        D = self.XLOOK
        def chunk(kc):
            for rg in range(4):
                a(f"s_add_u32 m0, s44, {kc*16384 + rg*1024}")
                a(f"s_add_u32 s45, s43, {rg*8192 + kc*128}")
                a(f"buffer_load_dwordx4 v{2+(rg&1)}, s[{SRD_A}:{SRD_A+3}], s45 offen lds")
        for kc in range(D): chunk(kc)
        self.srd(SRD_WS, S_WS, WS_SIZE)
        a("s_lshl_b32 s46, s42, 2")
        a(f"s_add_u32 s46, s46, {LDS_XF}")
        a("v_mov_b32 v4, s46")
        a("v_mov_b32 v5, 0")
        a("ds_write_b32 v4, v5")
        a("s_waitcnt lgkmcnt(0)")
        self.stamp(0)
        a("s_barrier")
        for kc in range(8):
            a(f"v_mov_b32 v5, {kc+1}")
            if 'nox' not in self.dbg or kc == 0: a(f"s_waitcnt vmcnt({4*min(D-1, 7-kc)})")
            a("ds_write_b32 v4, v5")
            if kc == 0: self.stamp(1)
            if 's1det' in self.dbg: self.stamp(kc + 4)
            if kc + D < 8 and 'nox' not in self.dbg: chunk(kc + D)
        a("s_waitcnt lgkmcnt(0)")
        a("s_barrier")
        self.read_nonce(40)
        a("s_waitcnt lgkmcnt(0)")
        a(f"v_readfirstlane_b32 s{S_NONCE}, v40")
        a("s_barrier")
        self.stamp(3)
        a("s_branch L_s2_idle")

    @property
    def XLOOK(self):
        for d in self.dbg:
            if d.startswith('xl'): return int(d[2:])
        return 3
    WLOOK = 4

    def stats_setup(self, tb0):
        a = self.a
        a("v_and_b32 v10, 31, v0")
        a("v_lshrrev_b32 v11, 5, v0")
        a("v_bfe_u32 v12, v0, 1, 3")
        a("v_xor_b32 v12, v11, v12")
        a("v_lshlrev_b32 v12, 4, v12")
        a("v_lshl_or_b32 v152, v10, 7, v12")
        a(f"v_add_u32 v152, {tb0*4096}, v152")
        for m in range(1, 4):
            a(f"v_xor_b32 v{152+m}, {32*m}, v152")
        for i in range(8):
            a(f"v_mov_b32 v{156+i}, 0")

    def stats_chunk(self, kc, tb0):
        a = self.a
        a(f"v_mov_b32 v12, {LDS_XF + 4*tb0}")
        self.wait_xflags([10, 11], kc + 1, 12, 13)
        if kc == 4:
            for m in range(4): a(f"v_add_u32 v{152+m}, 0x10000, v{152+m}")
        for m in range(4):
            for t in range(2):
                a(f"ds_read_b128 {vr(16+8*m+4*t,4)}, v{152+m} offset:{(kc&3)*16384 + t*4096}")
        for m in range(4):
            for t in range(2):
                a(f"s_waitcnt lgkmcnt({7-2*m-t})")
                F = 16 + 8*m + 4*t
                for q in range(4 if 'nostats' not in self.dbg else 0):
                    a(f"v_dot2c_f32_bf16 v{156+4*t+(q&1)}, s{S_ONES}, v{F+q}")
                    a(f"v_dot2c_f32_bf16 v{158+4*t+(q&1)}, v{F+q}, v{F+q}")

    def stats_final(self, tb0):
        a = self.a
        a("s_nop 2")
        for t in range(2):
            a(f"v_add_f32 v{156+4*t}, v{156+4*t}, v{157+4*t}")
            a(f"v_add_f32 v{158+4*t}, v{158+4*t}, v{159+4*t}")
        a("s_nop 0")
        for t in range(2):
            a(f"v_mov_b32 v{157+4*t}, v{156+4*t}")
            a(f"v_mov_b32 v{159+4*t}, v{158+4*t}")
        a("s_nop 1")
        for t in range(2):
            a(f"v_permlane32_swap_b32 v{156+4*t}, v{157+4*t}")
            a(f"v_permlane32_swap_b32 v{158+4*t}, v{159+4*t}")
        a("s_nop 1")
        a("v_and_b32 v12, 31, v0")
        a("v_lshlrev_b32 v12, 2, v12")
        a(f"v_add_u32 v12, {LDS_SCR + tb0*128}, v12")
        for t in range(2):
            S, Q = 156+4*t, 158+4*t
            a(f"v_add_f32 v{S}, v{S}, v{S+1}")
            a(f"v_add_f32 v{Q}, v{Q}, v{Q+1}")
            a(f"v_mul_f32 v{S}, {f2u(1.0/512)}, v{S}")
            a(f"v_mul_f32 v{Q}, {f2u(1.0/512)}, v{Q}")
            a(f"v_fma_f32 v{Q}, -v{S}, v{S}, v{Q}")
            a(f"v_max_f32 v{Q}, 0, v{Q}")
            a(f"v_add_f32 v{Q}, {f2u(1e-5)}, v{Q}")
            a(f"v_rsq_f32 v{Q}, v{Q}")
            a("s_nop 0")
            a(f"v_mul_f32 v{S}, v{S}, v{Q}")
            a(f"v_sub_f32 v{S}, 0, v{S}")
            a(f"ds_write_b32 v12, v{Q} offset:{t*128}")
            a(f"ds_write_b32 v12, v{S} offset:{512+t*128}")
        a("s_waitcnt lgkmcnt(0)")

    def role_w3(self):
        a = self.a
        a.label("L_role_w3")
        self.stats_setup(0)
        a("s_waitcnt lgkmcnt(0)")
        self.srd(SRD_WS, S_WS, WS_SIZE)
        self.srd(SRD_A, S_DBG, 256)
        a("v_mov_b32 v2, 0")
        a("s_cmp_lg_u32 s2, 0")
        a("s_cbranch_scc1 L_nc_np")
        a("s_memrealtime s[60:61]")
        a("s_waitcnt lgkmcnt(0)")
        a("s_or_b32 s60, s60, 1")
        a("v_mov_b32 v1, s60")
        a("s_mov_b64 exec, 1")
        a(f"buffer_store_dword v1, v2, s[{SRD_A}:{SRD_A+3}], 0 offen sc1")
        a("s_mov_b64 exec, -1")
        a.label("L_nc_np")
        a("s_barrier")
        for kc in range(8):
            if kc == 3:
                a(f"buffer_load_dword v1, v2, s[{SRD_A}:{SRD_A+3}], 0 offen sc1")
            if kc == 7:
                a("s_mov_b32 s62, 0")
                a.label("L_nc_chk")
                a("s_waitcnt vmcnt(0)")
                a(f"v_readfirstlane_b32 s{S_NONCE}, v1")
                a(f"s_cmp_lg_u32 s{S_NONCE}, 0")
                a("s_cbranch_scc1 L_nc_got")
                a("s_add_u32 s62, s62, 1")
                a("s_cmp_ge_u32 s62, 8192")
                a("s_cbranch_scc1 L_nc_got")
                a(f"buffer_load_dword v1, v2, s[{SRD_A}:{SRD_A+3}], 0 offen sc1")
                a("s_branch L_nc_chk")
                a.label("L_nc_got")
                a(f"v_mov_b32 v1, s{S_NONCE}")
                a(f"v_mov_b32 v2, {LDS_NONCE}")
                a("ds_write_b32 v2, v1")
            self.stats_chunk(kc, 0)
            if 's1det' in self.dbg: self.stamp(kc + 4)
        self.stats_final(0)
        self.stamp(2)
        a("s_barrier")
        a("s_barrier")
        self.attn_ids()
        a(f"s_lshr_b32 s47, s{S_HEAD}, 1")
        a("s_lshl_b32 s47, s47, 8")
        a(f"s_add_u32 s47, s47, {FL1}")
        self.poll_flags(47, 48)
        self.stamp(4)
        a("s_branch L_s2_idle")

    def ffn_setup(self):
        a = self.a
        a(f"s_sub_u32 s50, s{S_W}, 8")
        a(f"s_lshl_b32 s{self.S_RING}, s50, 13")
        a(f"s_add_u32 s{self.S_RING}, s{self.S_RING}, {LDS_RING}")
        self.gemm_wg_voffset(3584)
        a(f"s_lshl_b32 s51, s{S_J}, 2")
        a("s_add_u32 s51, s51, s50")
        a(f"s_lshl_b32 s{self.S_WOFF}, s51, 6")
        a(f"s_mov_b32 s{self.S_WSTR}, {16*3584 if 'wstr0' not in self.dbg else 0}")
        a(f"s_sub_u32 s{self.S_WOFF}, s{self.S_WOFF}, s{self.S_WSTR}")
        self.srd(SRD_A, S_W1, 512 * 3584)
        self.srd(SRD_B, S_B1, 1792 * 2)
        a("v_lshrrev_b32 v12, 5, v0")
        a("v_lshlrev_b32 v12, 3, v12")
        a("s_lshl_b32 s52, s51, 6")
        for b in range(4):
            a(f"buffer_load_dwordx2 {vr(144+2*b,2)}, v12, s[{SRD_B}:{SRD_B+3}], s52 offen offset:{16*b}")
        self.gemm_setup_addrs()
        self.zero_acc()
        self.cs4_init()

    def cs4_init(self):
        a = self.a
        a("v_lshrrev_b32 v12, 4, v0")
        a("v_xor_b32 v12, v12, v0")
        a("v_and_b32 v12, 1, v12")
        a("v_cmp_eq_u32 vcc, 0, v12")
        a(f"v_mov_b32 v13, s{S_ONES}")
        for i in range(4):
            a(f"v_mov_b32 v{self.CS4+i}, 0")
        for i in range(4):
            a(f"v_cndmask_b32 v{self.PAR+i}, 0, v13, vcc")

    def role_ffn(self):
        a = self.a
        a.label("L_role_ffn")
        a("s_waitcnt lgkmcnt(0)")
        self.srd(SRD_WS, S_WS, WS_SIZE)
        self.ffn_setup()
        a("s_barrier")
        a(f"s_cmp_lg_u32 s{S_W}, 11")
        a("s_cbranch_scc1 L_ffn_b8")
        self.stats_setup(2)
        for kc in range(8):
            self.stats_chunk(kc, 2)
        self.stats_final(2)
        a.label("L_ffn_b8")
        a("s_barrier")
        a(f"s_cmp_ge_u32 s{S_J}, 14")
        a("s_cbranch_scc1 L_ffn_skip")
        for sl in range(6):
            self.w_dma(sl, self.S_RING)
        a("v_and_b32 v10, 31, v0")
        a(f"v_lshlrev_b32 v10, 2, v10")
        a(f"v_add_u32 v10, {LDS_SCR}, v10")
        for tb in range(4):
            a(f"ds_read_b32 v{152+2*tb}, v10 offset:{tb*128}")
            a(f"ds_read_b32 v{153+2*tb}, v10 offset:{512+tb*128}")
        self.read_nonce(40)
        a("s_waitcnt vmcnt(6) lgkmcnt(0)")
        a(f"v_readfirstlane_b32 s{S_NONCE}, v40")
        for b in range(4):
            a(f"v_lshlrev_b32 v{128+4*b}, 16, v{144+2*b}")
            a(f"v_and_b32 v{129+4*b}, 0xffff0000, v{144+2*b}")
            a(f"v_lshlrev_b32 v{130+4*b}, 16, v{145+2*b}")
            a(f"v_and_b32 v{131+4*b}, 0xffff0000, v{145+2*b}")
        a("s_barrier")
        for sl in range(6, 8):
            self.w_dma(sl, self.S_RING)
        self.stamp(4)
        a("s_waitcnt vmcnt(7)")
        self.gemm_first_frags()
        self.gemm_loop(False, False, "ffn")
        self.stamp(5)
        a("s_barrier")
        a("s_nop 7")
        self.cs16_from_cs4()
        for tb in range(4):
            a(f"v_mov_b32 v{32+2*tb}, v{152+2*tb}")
            a(f"v_mov_b32 v{33+2*tb}, v{153+2*tb}")
        a(f"s_mul_i32 s48, s{S_TG}, {4*112*1024}")
        a("s_lshl_b32 s49, s51, 11")
        a("s_add_u32 s48, s48, s49")
        a(f"s_add_u32 s48, s48, {WS_H}")
        a("v_lshlrev_b32 v10, 4, v0")
        a("s_waitcnt lgkmcnt(0)")
        self.tok_epilogue_store(ffn=True)
        a(f"s_lshl_b32 s48, s{S_TG}, 8")
        a("s_lshl_b32 s49, s51, 2")
        a("s_add_u32 s48, s48, s49")
        a(f"s_add_u32 s48, s48, {FL2}")
        self.publish_flag(48, 12)
        self.stamp(6)
        a("s_branch L_s3_gemm")
        a.label("L_ffn_skip")
        self.read_nonce(40)
        a("s_waitcnt vmcnt(0) lgkmcnt(0)")
        a(f"v_readfirstlane_b32 s{S_NONCE}, v40")
        a("s_barrier")
        a("s_barrier")
        a("s_branch L_s3_gemm")

    def attn_ids(self):
        a = self.a
        a(f"s_and_b32 s{S_HEAD}, s2, 7")
        a("s_lshr_b32 s47, s2, 6")
        a("s_lshl_b32 s47, s47, 3")
        a(f"s_or_b32 s{S_HEAD}, s{S_HEAD}, s47")
        a(f"s_bfe_u32 s{S_QB}, s2, 0x30003")
        a(f"s_and_b32 s{S_T}, s2, 7")
        a(f"s_lshl_b32 s{S_T}, s{S_T}, 2")
        a("s_bfe_u32 s47, s2, 0x20003")
        a(f"s_add_u32 s{S_T}, s{S_T}, s47")
        a(f"s_lshr_b32 s{S_C}, s2, 5")

    def poll_flags(self, s_off, n, vt=2):
        a = self.a
        Lp, Ld = self.lab("pf"), self.lab("pfd")
        a(f"v_lshlrev_b32 v{vt}, 2, v0")
        a(f"v_cmp_gt_u32 vcc, {n}, v0")
        a("s_mov_b32 s58, 0")
        a("s_mov_b64 s[62:63], vcc")
        a.label(Lp)
        a(f"buffer_load_dword v{vt+1}, v{vt}, s[{SRD_WS}:{SRD_WS+3}], s{s_off} offen sc1")
        a("s_add_u32 s58, s58, 1")
        a("s_waitcnt vmcnt(0)")
        a(f"v_cmp_eq_u32 vcc, s{S_NONCE}, v{vt+1}")
        a("s_nop 1")
        a("s_and_b64 vcc, vcc, s[62:63]")
        a("s_cmp_eq_u64 vcc, s[62:63]")
        a(f"s_cbranch_scc1 {Ld}")
        a("s_cmp_ge_u32 s58, 0x4000")
        a(f"s_cbranch_scc1 {Ld}")
        a("s_sleep 2")
        a(f"s_branch {Lp}")
        a.label(Ld)

    def s2_idle(self):
        a = self.a
        a.label("L_s2_idle")
        a("s_barrier")
        if self.stop == "s2":
            a("s_branch L_fin")

    Q4, KA, KB, VA, VB = 4, 8, 12, 16, 24
    S0, S1, P0, P1, O = 32, 48, 64, 72, 80
    STG = 96
    VKC, VKN, VVC, VVN, VWA = 128, 129, 130, 131, 132
    S_NXT = 42
    EXM = 60

    def attn_tile(self, i, first_group):
        a = self.a
        ev = (i & 1) == 0
        S, Sn = (self.S0, self.S1) if ev else (self.S1, self.S0)
        P, Pp = (self.P0, self.P1) if ev else (self.P1, self.P0)
        Kn, Kl = (self.KB, self.KA) if ev else (self.KA, self.KB)
        Vc, Vp = (self.VA, self.VB) if ev else (self.VB, self.VA)
        E = lambda k: a(f"v_exp_f32 v{S+k}, v{S+k}")
        C = lambda k: a(f"v_cvt_pk_bf16_f32 v{P+k}, v{S+2*k}, v{S+2*k+1}")
        a("s_waitcnt lgkmcnt(0)")
        if first_group and i == 6:
            a("s_barrier")
        a(f"v_mfma_f32_32x32x16_bf16 {vr(Sn,16)}, {vr(Kn,4)}, {vr(self.Q4,4)}, 0")
        if first_group and i <= 5:
            n = [6, 6, 6, 4, 2, 0][i]
            st = self.STG + 8 * ((i + 2) & 3)
            a(f"s_waitcnt vmcnt({n})")
            a(f"ds_write_b128 v{self.VWA}, {vr(st,4)} offset:{(i+2)*2048}")
            a(f"ds_write_b128 v{self.VWA}, {vr(st+4,4)} offset:{(i+2)*2048+1024}")
        E(0); E(1)
        if i + 2 <= 7: a(f"ds_read_b128 {vr(Kl,4)}, v{self.VKC} offset:{(i+2)*2048}")
        else:          a(f"ds_read_b128 {vr(Kl,4)}, v{self.VKN} offset:{(i+2-8)*2048}")
        if first_group and i + 6 <= 7:
            st = self.STG + 8 * ((i + 6) & 3)
            self.kv_load(i + 6, st)
        E(2); E(3); C(0); E(4); E(5); C(1)
        a(f"v_mfma_f32_32x32x16_bf16 {vr(self.O,16)}, {vr(Vp+4,4)}, {vr(Pp+4,4)}, {vr(self.O,16)}")
        a(f"s_mov_b64 exec, s[{self.EXM}:{self.EXM+1}]")
        va, off = (self.VVC, (i + 1) * 2048) if i + 1 <= 7 else (self.VVN, 0)
        a(f"ds_read_b128 {vr(Vp,4)}, v{va} offset:{off}")
        a(f"ds_read_b128 {vr(Vp+4,4)}, v{va} offset:{off+512}")
        a("s_mov_b64 exec, -1")
        E(6); E(7); C(2); E(8); E(9); C(3); E(10); E(11)
        a(f"v_mfma_f32_32x32x16_bf16 {vr(self.O,16)}, {vr(Vc,4)}, {vr(P,4)}, {vr(self.O,16)}")
        C(4); E(12); E(13); C(5); E(14); E(15); C(6); C(7)

    def kv_load(self, i, st):
        a = self.a
        a(f"buffer_load_dwordx4 {vr(st,4)}, v1, s[{SRD_WS}:{SRD_WS+3}], s44 offen offset:{(i&3)*1024} sc1")
        a(f"buffer_load_dwordx4 {vr(st+4,4)}, v1, s[{SRD_WS}:{SRD_WS+3}], s45 offen offset:{(i&3)*1024} sc1")

    def group_advance(self):
        a = self.a
        a(f"v_mov_b32 v{self.VKC}, v{self.VKN}")
        a(f"v_mov_b32 v{self.VVC}, v{self.VVN}")
        a(f"s_add_u32 s{self.S_NXT}, s{self.S_NXT}, 16384")
        a(f"s_and_b32 s{self.S_NXT}, s{self.S_NXT}, 0x1ffff")
        a(f"v_add_u32 v{self.VKN}, s{self.S_NXT}, v1")
        a(f"v_add_u32 v{self.VVN}, s{self.S_NXT}, v3")

    def role_attn(self):
        a = self.a
        a.label("L_s3_attn")
        self.attn_ids()
        a("v_lshlrev_b32 v1, 4, v0")
        a(f"s_lshl_b32 s43, s{S_HEAD}, 16")
        a(f"s_lshl_b32 s46, s{S_QB}, 13")
        a("s_add_u32 s46, s46, s43")
        a(f"s_lshl_b32 s47, s{S_W}, 10")
        a("s_add_u32 s46, s46, s47")
        a(f"buffer_load_dwordx4 {vr(self.Q4,4)}, v1, s[{SRD_WS}:{SRD_WS+3}], s46 offen sc1")
        a(f"s_lshl_b32 s47, s{S_W}, 13")
        a("s_add_u32 s44, s43, s47")
        a(f"s_add_u32 s45, s44, {WS_V}")
        a(f"s_add_u32 s44, s44, {WS_K}")
        for i in range(4):
            self.kv_load(i, self.STG + 8 * i)
        a("s_add_u32 s44, s44, 4096")
        a("s_add_u32 s45, s45, 4096")
        self.stamp(7)
        a(f"s_lshl_b32 s46, s{S_W}, 14")
        a(f"v_add_u32 v{self.VWA}, s46, v1")
        a(f"v_mov_b32 v{self.VKC}, v{self.VWA}")
        a("v_lshrrev_b32 v2, 5, v0")
        a("v_lshlrev_b32 v2, 8, v2")
        a("v_and_b32 v3, 15, v0")
        a("v_lshl_add_u32 v3, v3, 4, v2")
        a("v_add_u32 v3, 1024, v3")
        a(f"v_add_u32 v{self.VVC}, s46, v3")
        a(f"s_add_u32 s{self.S_NXT}, s46, 16384")
        a(f"s_and_b32 s{self.S_NXT}, s{self.S_NXT}, 0x1ffff")
        a(f"v_add_u32 v{self.VKN}, s{self.S_NXT}, v1")
        a(f"v_add_u32 v{self.VVN}, s{self.S_NXT}, v3")
        a(f"s_mov_b32 s{self.EXM}, 0xffff")
        a(f"s_mov_b32 s{self.EXM+1}, 0xffff")
        a("v_and_b32 v2, 27, v0")
        a("v_cmp_eq_u32 vcc, 16, v2")
        a(f"v_mov_b32 v2, s{S_ONES}")
        a("s_nop 0")
        for r in range(16):
            a(f"v_cndmask_b32 v{self.VA+r}, 0, v2, vcc")
        for r in range(16):
            a(f"v_mov_b32 v{self.O+r}, 0")
        for r in range(4):
            a(f"v_mov_b32 v{self.P1+4+r}, 0")
        a("s_waitcnt vmcnt(4)")
        self.stamp(8)
        for i in range(2):
            st = self.STG + 8 * i
            a(f"ds_write_b128 v{self.VWA}, {vr(st,4)} offset:{i*2048}")
            a(f"ds_write_b128 v{self.VWA}, {vr(st+4,4)} offset:{i*2048+1024}")
        for i in (4, 5):
            self.kv_load(i, self.STG + 8 * (i & 3))
        a(f"ds_read_b128 {vr(self.KA,4)}, v{self.VKC}")
        a(f"ds_read_b128 {vr(self.KB,4)}, v{self.VKC} offset:2048")
        a(f"s_mov_b64 exec, s[{self.EXM}:{self.EXM+1}]")
        a(f"ds_read_b128 {vr(self.VA,4)}, v{self.VVC}")
        a(f"ds_read_b128 {vr(self.VA+4,4)}, v{self.VVC} offset:512")
        a("s_mov_b64 exec, -1")
        a("s_waitcnt lgkmcnt(0)")
        a(f"v_mfma_f32_32x32x16_bf16 {vr(self.S0,16)}, {vr(self.KA,4)}, {vr(self.Q4,4)}, 0")
        a("s_nop 7")
        a("s_nop 3")
        for i in range(8):
            self.attn_tile(i, True)
        self.group_advance()
        self.stamp(9)
        a("s_mov_b32 s43, 0")
        a.label("L_attn_loop")
        for i in range(8):
            self.attn_tile(i, False)
        self.group_advance()
        a("s_add_u32 s43, s43, 1")
        a("s_cmp_lt_u32 s43, 7")
        a("s_cbranch_scc1 L_attn_loop")
        a(f"v_mfma_f32_32x32x16_bf16 {vr(self.O,16)}, {vr(self.VB+4,4)}, {vr(self.P1+4,4)}, {vr(self.O,16)}")
        self.stamp(10)
        a("s_waitcnt lgkmcnt(0)")
        a("s_nop 7")
        a("s_nop 7")
        O = self.O
        a(f"v_mul_f32 v2, 0, v{O}")
        for r in range(1, 8):
            a(f"v_fma_f32 v2, v{O+r}, 0, v2")
        a(f"v_cmp_ge_f32 vcc, v{O+8}, {f2u(2.0**-64):#x}") if False else None
        a(f"s_mov_b32 s46, {f2u(2.0**-64):#x}")
        a(f"s_mov_b32 s47, {f2u(2.0**64):#x}")
        a(f"v_cmp_le_f32 s[48:49], s46, v{O+8}")
        a(f"v_cmp_ge_f32 s[50:51], s47, v{O+8}")
        a("v_cmp_eq_f32 vcc, 0, v2")
        a("s_nop 1")
        a("s_and_b64 s[48:49], s[48:49], s[50:51]")
        a("s_and_b64 vcc, vcc, s[48:49]")
        if 'slow' in self.dbg:
            a("s_mov_b64 vcc, 0")
        a("s_cmp_eq_u64 vcc, -1")
        a("s_cbranch_scc0 L_attn_slow")
        a.label("L_attn_norm")
        a(f"v_rcp_f32 v2, v{O+8}")
        a("s_nop 0")
        for r in range(8):
            a(f"v_mul_f32 v{O+r}, v{O+r}, v2")
        for p in range(4):
            a(f"v_cvt_pk_bf16_f32 v{self.P0+p}, v{O+2*p}, v{O+2*p+1}")
        a(f"s_lshl_b32 s46, s{S_QB}, 3")
        a(f"s_add_u32 s46, s46, s{S_W}")
        a("s_lshl_b32 s46, s46, 5")
        a(f"s_add_u32 s46, s46, s{S_HEAD}")
        a("s_lshl_b32 s46, s46, 10")
        a(f"s_add_u32 s46, s46, {WS_O}")
        a(f"buffer_store_dwordx4 {vr(self.P0,4)}, v1, s[{SRD_WS}:{SRD_WS+3}], s46 offen sc1")
        a("s_branch L_tail_attn")

    def attn_slow(self):
        a = self.a
        O, S, P = self.O, self.S0, self.P0
        a.label("L_attn_slow")
        for r in range(16):
            a(f"v_mov_b32 v{O+r}, 0")
        a(f"v_mov_b32 v136, {f2u(-3.0e38):#x}")
        a("v_mov_b32 v137, v1")
        a("v_mov_b32 v138, v3")
        a("s_mov_b32 s43, 0")
        a.label("L_slow_loop")
        a(f"ds_read_b128 {vr(self.KA,4)}, v137")
        a(f"s_mov_b64 exec, s[{self.EXM}:{self.EXM+1}]")
        a(f"ds_read_b128 {vr(self.VA,4)}, v138")
        a(f"ds_read_b128 {vr(self.VA+4,4)}, v138 offset:512")
        a("s_mov_b64 exec, -1")
        a("s_waitcnt lgkmcnt(0)")
        a(f"v_mfma_f32_32x32x16_bf16 {vr(S,16)}, {vr(self.KA,4)}, {vr(self.Q4,4)}, 0")
        a("v_add_u32 v137, 2048, v137")
        a("v_add_u32 v138, 2048, v138")
        a("s_nop 7")
        a("s_nop 7")
        a(f"v_max3_f32 v139, v{S}, v{S+1}, v{S+2}")
        for r in range(3, 15, 2):
            a(f"v_max3_f32 v139, v139, v{S+r}, v{S+r+1}")
        a(f"v_max_f32 v139, v139, v{S+15}")
        a("s_nop 0")
        a("v_mov_b32 v140, v139")
        a("s_nop 1")
        a("v_permlane32_swap_b32 v139, v140")
        a("s_nop 1")
        a("v_max3_f32 v139, v139, v140, v136")
        a("v_sub_f32 v140, v136, v139")
        a("v_exp_f32 v140, v140")
        a("v_mov_b32 v136, v139")
        for r in range(16):
            a(f"v_sub_f32 v{S+r}, v{S+r}, v139")
        for r in range(16):
            a(f"v_exp_f32 v{S+r}, v{S+r}")
        for r in range(9):
            a(f"v_mul_f32 v{O+r}, v{O+r}, v140")
        for p in range(8):
            a(f"v_cvt_pk_bf16_f32 v{P+p}, v{S+2*p}, v{S+2*p+1}")
        a("s_nop 1")
        a(f"v_mfma_f32_32x32x16_bf16 {vr(O,16)}, {vr(self.VA,4)}, {vr(P,4)}, {vr(O,16)}")
        a(f"v_mfma_f32_32x32x16_bf16 {vr(O,16)}, {vr(self.VA+4,4)}, {vr(P+4,4)}, {vr(O,16)}")
        a("s_add_u32 s43, s43, 1")
        a("s_nop 7")
        a("s_nop 7")
        a("s_cmp_lt_u32 s43, 64")
        a("s_cbranch_scc1 L_slow_loop")
        a("s_branch L_attn_norm")

    def role_down(self):
        a = self.a
        a.label("L_s3_gemm")
        if self.stop == "s2":
            a("s_branch L_fin")
        self.attn_ids()
        a(f"s_sub_u32 s50, s{S_W}, 8")
        a("s_barrier")
        self.srd(SRD_A, S_W2, 1792 * 1024)
        ACC, HST, WF = 64, 16, 48
        a("v_lshrrev_b32 v4, 2, v0")
        a("v_lshlrev_b32 v4, 10, v4")
        a("v_and_b32 v5, 3, v0")
        a("v_lshl_add_u32 v4, v5, 4, v4")
        a("s_lshl_b32 s44, s50, 13")
        a(f"s_add_u32 s44, s44, {LDS_RING}")
        a("v_lshrrev_b32 v6, 5, v0")
        a("v_bfe_u32 v7, v0, 2, 2")
        a("v_lshl_add_u32 v7, v6, 2, v7")
        a("v_lshlrev_b32 v7, 6, v7")
        a("v_bfe_u32 v8, v0, 4, 1")
        a("v_lshl_add_u32 v7, v8, 5, v7")
        a("v_and_b32 v8, 3, v0")
        a("v_lshl_add_u32 v7, v8, 3, v7")
        a("v_add_u32 v7, s44, v7")
        a("v_lshlrev_b32 v1, 4, v0")
        a("s_mul_i32 s45, s50, 28")
        a("s_lshl_b32 s46, s45, 14")
        a(f"s_lshl_b32 s47, s{S_C}, 7")
        a("s_add_u32 s46, s46, s47")
        a(f"s_mul_i32 s47, s{S_T}, {2*112*1024}")
        a("s_lshl_b32 s48, s45, 10")
        a("s_add_u32 s47, s47, s48")
        a(f"s_add_u32 s47, s47, {WS_H}")
        a(f"s_add_u32 s48, s47, {112*1024}")
        for r in range(64):
            a(f"v_mov_b32 v{ACC+r}, 0")
        def w2dma(slot):
            for cb in range(2):
                a(f"s_add_u32 m0, s44, {slot*2048 + cb*1024}")
                a(f"s_add_u32 s49, s46, {cb*64}")
                a(f"buffer_load_dwordx4 v4, s[{SRD_A}:{SRD_A+3}], s49 offen lds")
            a("s_add_u32 s46, s46, 16384")
        def hload(slot):
            a(f"buffer_load_dwordx4 {vr(HST+8*slot,4)}, v1, s[{SRD_WS}:{SRD_WS+3}], s47 offen sc1")
            a(f"buffer_load_dwordx4 {vr(HST+8*slot+4,4)}, v1, s[{SRD_WS}:{SRD_WS+3}], s48 offen sc1")
            a("s_add_u32 s47, s47, 1024")
            a("s_add_u32 s48, s48, 1024")
        a(f"s_lshr_b32 s51, s{S_T}, 1")
        a("s_lshl_b32 s51, s51, 8")
        a("s_mul_i32 s52, s50, 56")
        a("s_add_u32 s51, s51, s52")
        a(f"s_add_u32 s51, s51, {FL2}")
        self.poll_flags(51, 14)
        self.stamp(7)
        for sl in range(4):
            w2dma(sl); hload(sl)
        def kstep(sl, vm, pre):
            a(f"s_waitcnt vmcnt({vm})")
            for cb in range(2):
                a(f"ds_read_b64_tr_b16 {vr(WF+4*cb,2)}, v7 offset:{sl*2048+cb*1024}")
                a(f"ds_read_b64_tr_b16 {vr(WF+4*cb+2,2)}, v7 offset:{sl*2048+cb*1024+512}")
            a("s_waitcnt lgkmcnt(0)")
            for tb in range(2):
                for cb in range(2):
                    acc = ACC + 16 * (2 * tb + cb)
                    a(f"v_mfma_f32_32x32x16_bf16 {vr(acc,16)}, {vr(WF+4*cb,4)}, {vr(HST+8*sl+4*tb,4)}, {vr(acc,16)}")
            if pre:
                w2dma(sl); hload(sl)
        a("s_mov_b32 s43, 0")
        a.label("L_down_loop")
        for sl in range(4): kstep(sl, 12, True)
        a("s_add_u32 s43, s43, 1")
        a("s_cmp_lt_u32 s43, 6")
        a("s_cbranch_scc1 L_down_loop")
        for sl in range(4): kstep(sl, 12 - 4 * sl, False)
        self.stamp(8)
        a("s_branch L_tail_gemm")

    PPITCH, PPART, PBASE = 272, 64 * 272, 65536

    def part_write(self, acc_of, tbs, part_sreg):
        a = self.a
        for tb in tbs:
            for cb in range(2):
                acc = acc_of(tb, cb)
                for b in range(4):
                    a(f"ds_write_b128 v9, {vr(acc+4*b,4)} offset:{tb*32*self.PPITCH + (32*cb+8*b)*4}")

    def tail(self):
        a = self.a
        a.label("L_tail_gemm")
        a("s_barrier")
        a("v_and_b32 v9, 31, v0")
        a(f"v_mul_u32_u24 v9, {self.PPITCH}, v9")
        a("v_lshrrev_b32 v10, 5, v0")
        a("v_lshl_add_u32 v9, v10, 4, v9")
        a(f"s_mul_i32 s44, s50, {self.PPART}")
        a(f"s_add_u32 s44, s44, {self.PBASE}")
        a("v_add_u32 v9, s44, v9")
        a("s_nop 4")
        self.part_write(lambda tb, cb: 64 + 16 * (2 * tb + cb), (0, 1), None)
        a("s_waitcnt lgkmcnt(0)")
        a("s_barrier")
        a(f"s_cmp_lg_u32 s{S_W}, 8")
        a("s_cbranch_scc1 L_tail_g2")
        a(f"s_lshr_b32 s51, s{S_T}, 2")
        a("s_lshl_b32 s51, s51, 8")
        a(f"s_add_u32 s51, s51, {FL3}")
        self.poll_flags(51, 32)
        self.stamp(9)
        a.label("L_tail_g2")
        a("s_barrier")
        a("s_barrier")
        a("s_branch L_fin")
        a.label("L_tail_attn")
        a("s_waitcnt vmcnt(0)")
        a("s_barrier")
        self.stamp(11)
        a(f"s_cmp_lg_u32 s{S_W}, 0")
        a("s_cbranch_scc1 L_tail_np")
        a(f"s_lshl_b32 s48, s{S_QB}, 8")
        a(f"s_lshl_b32 s49, s{S_HEAD}, 2")
        a("s_add_u32 s48, s48, s49")
        a(f"s_add_u32 s48, s48, {FL3}")
        self.publish_flag(48, 12)
        a.label("L_tail_np")
        self.srd(SRD_A, S_WO, 512 * 1024)
        a("v_lshrrev_b32 v4, 2, v0")
        a("v_lshlrev_b32 v4, 10, v4")
        a("v_and_b32 v5, 3, v0")
        a("v_lshl_add_u32 v4, v5, 4, v4")
        a(f"s_lshl_b32 s44, s{S_W}, 16")
        a(f"s_lshl_b32 s45, s{S_C}, 7")
        a("s_add_u32 s44, s44, s45")
        a(f"s_lshl_b32 s45, s{S_W}, 13")
        for k in range(4):
            for cb in range(2):
                a(f"s_add_u32 m0, s45, {(2*k+cb)*1024}")
                a(f"s_add_u32 s46, s44, {k*16384 + cb*64}")
                a(f"buffer_load_dwordx4 v4, s[{SRD_A}:{SRD_A+3}], s46 offen lds")
        self.srd(SRD_B, S_X, 2048 * 1024)
        a("v_lshrrev_b32 v5, 3, v0")
        a(f"s_lshl_b32 s46, s{S_W}, 3")
        a("v_add_u32 v5, s46, v5")
        a("v_and_b32 v6, 7, v0")
        a("v_lshlrev_b32 v8, 10, v5")
        a("v_lshl_add_u32 v8, v6, 4, v8")
        a(f"s_lshl_b32 s47, s{S_T}, 16")
        a(f"s_lshl_b32 s46, s{S_C}, 7")
        a("s_add_u32 s47, s47, s46")
        a(f"buffer_load_dwordx4 v[12:15], v8, s[{SRD_B}:{SRD_B+3}], s47 offen")
        self.srd(SRD_B, S_B2, 1024)
        a("v_lshlrev_b32 v7, 4, v6")
        a(f"buffer_load_dwordx4 v[16:19], v7, s[{SRD_B}:{SRD_B+3}], s46 offen")
        a(f"v_mul_u32_u24 v10, {self.PPITCH}, v5")
        a("v_lshl_add_u32 v10, v6, 5, v10")
        a(f"v_add_u32 v10, {self.PBASE}, v10")
        a("s_barrier")
        def reduce4(dst):
            for p in range(4):
                a(f"ds_read_b128 {vr(32+8*p,4)}, v10 offset:{p*self.PPART}")
                a(f"ds_read_b128 {vr(36+8*p,4)}, v10 offset:{p*self.PPART+16}")
            a("s_waitcnt lgkmcnt(0)")
            for e in range(8):
                a(f"v_add_f32 v{32+e}, v{32+e}, v{40+e}")
                a(f"v_add_f32 v{48+e}, v{48+e}, v{56+e}")
            for e in range(8):
                a(f"v_add_f32 v{dst+e}, v{32+e}, v{48+e}")
        reduce4(20)
        a("s_waitcnt vmcnt(0)")
        for e in range(4):
            a(f"v_lshlrev_b32 v28, 16, v{16+e}")
            a(f"v_and_b32 v29, 0xffff0000, v{16+e}")
            a(f"v_add_f32 v{20+2*e}, v{20+2*e}, v28")
            a(f"v_add_f32 v{21+2*e}, v{21+2*e}, v29")
        for e in range(8):
            a(f"v_mul_f32 v{32+e}, {f2u(-math.log2(math.e)):#x}, v{20+e}")
        for e in range(8):
            a(f"v_exp_f32 v{32+e}, v{32+e}")
        for e in range(8):
            a(f"v_add_f32 v{32+e}, 1.0, v{32+e}")
        for e in range(8):
            a(f"v_rcp_f32 v{32+e}, v{32+e}")
        for e in range(8):
            a(f"v_mul_f32 v{20+e}, v{20+e}, v{32+e}")
        a("s_barrier")
        self.stamp(12) if False else None
        a(f"s_and_b32 s44, s{S_W}, 1")
        a(f"s_lshr_b32 s45, s{S_W}, 1")
        a(f"s_lshl_b32 s46, s{S_T}, 1")
        a("s_add_u32 s46, s46, s44")
        a("s_lshl_b32 s46, s46, 15")
        a("s_lshl_b32 s48, s45, 13")
        a("s_add_u32 s46, s46, s48")
        a(f"s_add_u32 s46, s46, {WS_O}")
        OF, WF, ACC = 96, 48, 64
        for k in range(8):
            a(f"buffer_load_dwordx4 {vr(OF+4*k,4)}, v1, s[{SRD_WS}:{SRD_WS+3}], s46 offen offset:{(k&3)*1024} sc1")
            if k == 3: a("s_add_u32 s46, s46, 4096")
        a("v_lshrrev_b32 v6, 5, v0")
        a("v_bfe_u32 v7, v0, 2, 2")
        a("v_lshl_add_u32 v7, v6, 2, v7")
        a("v_lshlrev_b32 v7, 6, v7")
        a("v_bfe_u32 v9, v0, 4, 1")
        a("v_lshl_add_u32 v7, v9, 5, v7")
        a("v_and_b32 v9, 3, v0")
        a("v_lshl_add_u32 v7, v9, 3, v7")
        a("s_lshl_b32 s48, s45, 14")
        a("v_add_u32 v7, s48, v7")
        for r in range(32):
            a(f"v_mov_b32 v{ACC+r}, 0")
        a("v_and_b32 v9, 31, v0")
        a(f"v_mul_u32_u24 v9, {self.PPITCH}, v9")
        a("v_lshl_add_u32 v9, v6, 4, v9")
        a(f"s_mul_i32 s48, s45, {self.PPART}")
        a(f"s_mul_i32 s49, s44, {32*self.PPITCH}")
        a("s_add_u32 s48, s48, s49")
        a(f"s_add_u32 s48, s48, {self.PBASE}")
        a("v_add_u32 v9, s48, v9")
        for k in range(8):
            Wk = WF + 8 * (k & 1)
            for cb in range(2):
                a(f"ds_read_b64_tr_b16 {vr(Wk+4*cb,2)}, v7 offset:{k*2048+cb*1024}")
                a(f"ds_read_b64_tr_b16 {vr(Wk+4*cb+2,2)}, v7 offset:{k*2048+cb*1024+512}")
            a(f"s_waitcnt vmcnt({7-k}) lgkmcnt(0)")
            for cb in range(2):
                a(f"v_mfma_f32_32x32x16_bf16 {vr(ACC+16*cb,16)}, {vr(Wk+4*cb,4)}, {vr(OF+4*k,4)}, {vr(ACC+16*cb,16)}")
        a("s_nop 7")
        a("s_nop 7")
        self.part_write(lambda tb, cb: ACC + 16 * cb, (0,), None)
        a("s_waitcnt lgkmcnt(0)")
        a("s_barrier")
        reduce4(96)
        for e in range(4):
            a(f"v_lshlrev_b32 v28, 16, v{12+e}")
            a(f"v_and_b32 v29, 0xffff0000, v{12+e}")
            a(f"v_fma_f32 v{96+2*e}, v{96+2*e}, v{20+2*e}, v28")
            a(f"v_fma_f32 v{97+2*e}, v{97+2*e}, v{21+2*e}, v29")
        for e in range(4):
            a(f"v_cvt_pk_bf16_f32 v{104+e}, v{96+2*e}, v{97+2*e}")
        self.srd(SRD_B, S_OUT, 2048 * 1024)
        a(f"buffer_store_dwordx4 v[104:107], v8, s[{SRD_B}:{SRD_B+3}], s47 offen")
        self.stamp(12) if False else None

    def build(self):
        a = self.a
        self.entry()
        self.role_qkv()
        self.role_v()
        self.role_x()
        self.role_w3()
        self.role_ffn()
        self.role_down()
        self.attn_slow()
        self.s2_idle()
        self.role_attn()
        self.tail()
        a.label("L_fin")
        self.dump_stamps()
        a.label("L_end")
        a("s_endpgm")
        return a

HEADER = """; Kernarg layout (88 bytes): A_x, A_wqkv, A_wo, B_x, B_w1, B_b1, B_w2, B_b2, d_out, d_debug, d_ws
; @launch grid=(256,1,1) block=(768,1,1) lds=163840
.amdgcn_target "amdgcn-amd-amdhsa--gfx950"
.text
.globl {kn}
.p2align 8
.type {kn},@function
{kn}:
"""
FOOTER = """.section .rodata,"a"
.p2align 6
.amdhsa_kernel {kn}
  .amdhsa_next_free_vgpr 168
  .amdhsa_next_free_sgpr 102
  .amdhsa_accum_offset 168
  .amdhsa_group_segment_fixed_size 0
  .amdhsa_kernarg_size 88
  .amdhsa_user_sgpr_count 2
  .amdhsa_user_sgpr_kernarg_segment_ptr 1
  .amdhsa_system_sgpr_workgroup_id_x 1
.end_amdhsa_kernel
"""
def emit(path, **kw):
    g = Gen(**kw)
    a = g.build()
    check_hazards(a.lines)
    open(path, "w").write(HEADER.format(kn=KN) + a.text() + FOOTER.format(kn=KN))

if __name__ == "__main__":
    out = sys.argv[1] if len(sys.argv) > 1 else "k.s"
    dbg = [x[6:] for x in sys.argv if x.startswith("--dbg=")]
    stop = [x[7:] for x in sys.argv if x.startswith("--stop=")]
    emit(out, stamps=("--stamps" in sys.argv), dbg=dbg[0] if dbg else "", stop_after=stop[0] if stop else "all")
```

```python
import sys, math
from asmlib import Asm, vr, sr, check_hazards

NAME = "recurrent_scan__mha_block__dense_activation_squared_relu__prompt"
KN = NAME + "_kernel"

WS_Q, WS_K, WS_V = 0, 2 << 20, 4 << 20
WS_H = 6 << 20
WS_O = 14 << 20
WS_F = 16 << 20
WS_DBG = WS_F + (64 << 10)
WS_SIZE = WS_DBG + (256 << 10)
FL1, FL2, FL3 = WS_F, WS_F + 4096, WS_F + 8192

LDS_RING = 131072
LDS_SCR = LDS_RING + 3 * 8192 + 7 * 1024
LDS_NONCE = LDS_RING + 3 * 8192 + 6 * 1024
LDS_XF = LDS_NONCE + 16
LDS_DROP = 0x30000

QSCALE = 0.25 * math.log2(math.e)

def f2u(x):
    import struct
    return struct.unpack("<I", struct.pack("<f", x))[0]

S_W = 3
S_X, S_WQKV, S_WO, S_W1, S_B1, S_W2, S_B2, S_OUT, S_DBG, S_WS = 4, 6, 8, 12, 14, 16, 18, 20, 22, 24
S_TG, S_J = 26, 27
SRD_WS, SRD_A, SRD_B = 28, 32, 36
S_NONCE = 40
S_ONES = 41
S_HEAD, S_QB, S_T, S_C = 96, 97, 98, 99

class Gen:
    def __init__(self, stop_after="all", stamps=False, dbg=""):
        self.dbg = dbg.split(",")
        self.a = Asm()
        self.stop = stop_after
        self.stamps = stamps
        self.uid = 0
    def lab(self, p):
        self.uid += 1
        return f"L_{p}_{self.uid}"

    def srd(self, dst, ptr, size):
        a = self.a
        a(f"s_mov_b32 s{dst}, s{ptr}")
        a(f"s_and_b32 s{dst+1}, s{ptr+1}, 0xffff")
        a(f"s_mov_b32 s{dst+2}, {size}")
        a(f"s_mov_b32 s{dst+3}, 0x20000")

    def stamp(self, slot):
        if not self.stamps: return
        a = self.a
        a("s_memtime s[90:91]" if 'cyc' in self.dbg and slot not in (14,) else "s_memrealtime s[90:91]")
        a("s_waitcnt lgkmcnt(0)")
        a(f"s_mov_b32 s{64+slot}, s90")

    def dump_stamps(self):
        if not self.stamps: return
        a = self.a
        a("s_lshl_b32 s92, s2, 4")
        a(f"s_add_u32 s92, s92, s{S_W}")
        a("s_lshl_b32 s92, s92, 6")
        a(f"s_add_u32 s92, s92, {WS_DBG}")
        a("v_mov_b32 v1, 0")
        a("s_memtime s[84:85]")
        self.stamp(14)
        a("s_mov_b32 s79, s88")
        a("s_getreg_b32 s76, hwreg(HW_REG_HW_ID)")
        a("s_sub_u32 s77, s84, s86")
        for i in range(16):
            a(f"v_mov_b32 v2, s{64+i}")
            a(f"buffer_store_dword v2, v1, s[{SRD_WS}:{SRD_WS+3}], s92 offen offset:{4*i}")
            a("s_nop 1")

    def entry(self):
        a = self.a
        if self.stamps or 'hdbg' in self.dbg:
            a("s_memrealtime s[88:89]")
            a("s_memtime s[86:87]")
        a(f"s_cmp_ge_u32 s2, 256")
        a(f"s_cbranch_scc1 L_end")
        a("s_load_dwordx16 s[4:19], s[0:1], 0")
        a("s_load_dwordx4 s[20:23], s[0:1], 64")
        a("s_load_dwordx2 s[24:25], s[0:1], 80")
        a("v_lshrrev_b32 v1, 6, v0")
        a("v_and_b32 v0, 63, v0")
        a("s_and_b32 s26, s2, 1")
        a(f"v_readfirstlane_b32 s{S_W}, v1")
        a("s_lshl_b32 s26, s26, 3")
        a("s_bfe_u32 s42, s2, 0x30003")
        a(f"s_add_u32 s{S_TG}, s26, s42")
        a("s_bfe_u32 s27, s2, 0x20001")
        a("s_lshl_b32 s27, s27, 2")
        a("s_lshr_b32 s42, s2, 6")
        a(f"s_add_u32 s{S_J}, s27, s42")
        a(f"s_mov_b32 s{S_ONES}, 0x3f803f80")
        if self.stamps:
            for i in range(16): a(f"s_mov_b32 s{64+i}, 0")
        a(f"s_cmp_ge_u32 s{S_W}, 8")
        a("s_cbranch_scc1 L_role_ffn")
        a(f"s_cmp_ge_u32 s{S_W}, 4")
        a("s_cbranch_scc1 L_role_x")
        a(f"s_cmp_eq_u32 s{S_W}, 3")
        a("s_cbranch_scc1 L_role_w3")

    ACC = 64
    XA, XB = 16, 32
    WA, WB = 48, 52
    CS = 56
    VXA = 4
    VWR = 8
    VWG = 9
    S_WOFF, S_WSTR, S_RING, S_RINGD, S_CNT = 42, 43, 44, 45, 46

    def gemm_setup_addrs(self):
        a = self.a
        a("v_and_b32 v10, 31, v0")
        a("v_lshrrev_b32 v11, 5, v0")
        a("v_bfe_u32 v12, v0, 1, 3")
        a("v_xor_b32 v12, v11, v12")
        a("v_lshlrev_b32 v12, 4, v12")
        a(f"v_lshl_or_b32 v{self.VXA}, v10, 7, v12")
        for m in range(1, 4):
            a(f"v_xor_b32 v{self.VXA+m}, {32*m}, v{self.VXA}")
        a("v_bfe_u32 v12, v0, 2, 2")
        a("v_lshl_add_u32 v12, v11, 3, v12")
        a("v_lshlrev_b32 v12, 6, v12")
        a("v_bfe_u32 v13, v0, 4, 1")
        a("v_lshl_add_u32 v12, v13, 5, v12")
        a("v_and_b32 v13, 3, v0")
        a(f"v_lshl_add_u32 v{self.VWR}, v13, 3, v12")
        a(f"v_add_u32 v{self.VWR}, s{self.S_RING}, v{self.VWR}")

    def gemm_wg_voffset(self, pitch):
        a = self.a
        a("v_lshrrev_b32 v12, 2, v0")
        a(f"s_mov_b32 s47, {pitch}")
        a("v_mul_lo_u32 v12, v12, s47")
        a("v_and_b32 v13, 3, v0")
        a(f"v_lshl_add_u32 v{self.VWG}, v13, 4, v12")

    def w_dma(self, slot, ring_reg):
        a = self.a
        a(f"s_add_u32 m0, s{ring_reg}, {slot*1024}")
        a(f"s_add_u32 s{self.S_WOFF}, s{self.S_WOFF}, s{self.S_WSTR}")
        a(f"buffer_load_dwordx4 v{self.VWG}, s[{SRD_A}:{SRD_A+3}], s{self.S_WOFF} offen lds")

    def frag_reads(self, ksn, X, W, base_ks):
        a = self.a
        rel = ksn - base_ks
        slot = ksn & 7
        m = ksn & 3
        kc = rel >> 2 if base_ks % 8 == 0 else None
        return rel, slot, m, kc

    VF = 144
    S_NEED = 56

    def xflag_check(self, L):
        a = self.a
        a(f"v_readfirstlane_b32 s57, v149")
        return L

    def gemm_loop(self, swapped, s1, tag):
        a = self.a
        L = self.lab("gl_" + tag)
        a(f"s_mov_b32 s{self.S_CNT}, 0")
        a(f"s_mov_b32 s{self.S_RINGD}, s{self.S_RING}")
        if s1: a(f"s_mov_b32 s{self.S_NEED}, 1")
        a.label(L)
        a(f"s_cmp_eq_u32 s{self.S_CNT}, 3")
        a(f"s_cselect_b32 s{self.S_RINGD}, {LDS_DROP}, s{self.S_RINGD}")
        for i in range(8):
            X, W = (self.XA, self.WA) if i % 2 == 0 else (self.XB, self.WB)
            Xn, Wn = (self.XB, self.WB) if i % 2 == 0 else (self.XA, self.WA)
            def mf(tb):
                acc = self.ACC + 16 * tb
                if swapped:
                    a(f"v_mfma_f32_32x32x16_bf16 {vr(acc,16)}, {vr(X+4*tb,4)}, {vr(W,4)}, {vr(acc,16)}")
                else:
                    a(f"v_mfma_f32_32x32x16_bf16 {vr(acc,16)}, {vr(W,4)}, {vr(X+4*tb,4)}, {vr(acc,16)}")
            chk = s1 and (i & 3) == 3
            a("s_waitcnt lgkmcnt(0)")
            mf(0)
            if chk:
                a(f"v_min3_u32 v149, v{self.VF}, v{self.VF+1}, v{self.VF+2}")
                a(f"s_add_u32 s{self.S_NEED}, s{self.S_NEED}, 1")
                a(f"v_min_u32 v149, v149, v{self.VF+3}")
                a(f"s_min_u32 s{self.S_NEED}, s{self.S_NEED}, 8")
            self.w_dma(i, self.S_RINGD)
            if chk: a("v_readfirstlane_b32 s57, v149")
            a("s_waitcnt vmcnt(7)")
            nslot = (i + 1) & 7
            a(f"ds_read_b64_tr_b16 {vr(Wn,2)}, v{self.VWR} offset:{nslot*1024}")
            a(f"ds_read_b64_tr_b16 {vr(Wn+2,2)}, v{self.VWR} offset:{nslot*1024+256}")
            if chk:
                Lok, Lsp = self.lab("xok"), self.lab("xsp")
                a(f"s_cmp_ge_u32 s57, s{self.S_NEED}")
                a(f"s_cbranch_scc1 {Lok}")
                a("s_mov_b32 s58, 0")
                a.label(Lsp)
                a(f"ds_read_b128 {vr(self.VF,4)}, v148")
                a("s_add_u32 s58, s58, 1")
                a("s_waitcnt lgkmcnt(0)")
                a(f"v_min3_u32 v149, v{self.VF}, v{self.VF+1}, v{self.VF+2}")
                a(f"v_min_u32 v149, v149, v{self.VF+3}")
                a("s_nop 0")
                a("v_readfirstlane_b32 s57, v149")
                a("s_cmp_ge_u32 s58, 0x100000")
                a(f"s_cbranch_scc1 {Lok}")
                a(f"s_cmp_lt_u32 s57, s{self.S_NEED}")
                a(f"s_cbranch_scc1 {Lsp}")
                a.label(Lok)
            mf(1)
            n = i + 1
            for tb in range(4):
                a(f"ds_read_b128 {vr(Xn+4*tb,4)}, v{self.VXA+(n&3)} offset:{(n>>2)*16384 + tb*4096}")
            if s1 and (i & 3) == 2:
                a(f"ds_read_b128 {vr(self.VF,4)}, v148")
            mf(2)
            if 'nocs' not in self.dbg:
                a(f"v_mfma_f32_16x16x32_bf16 {vr(self.CS4,4)}, {vr(W,4)}, {vr(self.PAR,4)}, {vr(self.CS4,4)}")
            mf(3)
        for m in range(4):
            a(f"v_add_u32 v{self.VXA+m}, 0x8000, v{self.VXA+m}")
        a(f"s_add_u32 s{self.S_CNT}, s{self.S_CNT}, 1")
        a(f"s_cmp_lt_u32 s{self.S_CNT}, 4")
        a(f"s_cbranch_scc1 {L}")

    def wait_xflags(self, regs, need, vaddr, vt):
        a = self.a
        Lsp, Lok = self.lab("wsp"), self.lab("wok")
        a("s_mov_b32 s58, 0")
        a.label(Lsp)
        n = len(regs)
        a(f"ds_read_b{32*n} {vr(regs[0], n)}, v{vaddr}")
        a("s_add_u32 s58, s58, 1")
        a("s_waitcnt lgkmcnt(0)")
        if n == 4:
            a(f"v_min3_u32 v{vt}, v{regs[0]}, v{regs[1]}, v{regs[2]}")
            a(f"v_min_u32 v{vt}, v{vt}, v{regs[3]}")
        else:
            a(f"v_min_u32 v{vt}, v{regs[0]}, v{regs[1]}")
        a("s_nop 0")
        a(f"v_readfirstlane_b32 s57, v{vt}")
        a("s_cmp_ge_u32 s58, 0x100000")
        a(f"s_cbranch_scc1 {Lok}")
        a(f"s_cmp_lt_u32 s57, {need}")
        a(f"s_cbranch_scc1 {Lsp}")
        a.label(Lok)

    CS4 = 56
    PAR = 60

    def cs_acc(self, W, q0, q1):
        a = self.a
        for q in range(q0, q1):
            t = 58 + 2 * (q & 1)
            a(f"v_lshlrev_b32 v{t}, 16, v{W+q}")
            a(f"v_and_b32 v{t+1}, 0xffff0000, v{W+q}")
            a(f"v_add_f32 v{self.CS}, v{t}, v{self.CS}")
            a(f"v_add_f32 v{self.CS+1}, v{t+1}, v{self.CS+1}")

    def gemm_first_frags(self):
        a = self.a
        a(f"ds_read_b64_tr_b16 {vr(self.WA,2)}, v{self.VWR} offset:0")
        a(f"ds_read_b64_tr_b16 {vr(self.WA+2,2)}, v{self.VWR} offset:256")
        for tb in range(4):
            a(f"ds_read_b128 {vr(self.XA+4*tb,4)}, v{self.VXA} offset:{tb*4096}")

    def zero_acc(self):
        a = self.a
        for i in range(64):
            a(f"v_mov_b32 v{self.ACC+i}, 0")

    def cs16_from_cs4(self):
        a = self.a
        a("v_lshrrev_b32 v11, 5, v0")
        a("v_lshlrev_b32 v11, 6, v11")
        for r in range(16):
            b, jj = r >> 2, r & 3
            a(f"ds_bpermute_b32 v{16+r}, v11, v{self.CS4+jj} offset:{128*(b&1)+4*(b>>1)}")

    def cs_total(self):
        a = self.a
        a(f"v_add_f32 v{self.CS}, v{self.CS}, v{self.CS+1}")
        a("s_nop 0")
        a(f"v_mov_b32 v{self.CS+1}, v{self.CS}")
        a("s_nop 1")
        a(f"v_permlane32_swap_b32 v{self.CS}, v{self.CS+1}")
        a("s_nop 1")
        a(f"v_add_f32 v{self.CS}, v{self.CS}, v{self.CS+1}")

    def read_nonce(self, vtmp):
        a = self.a
        a(f"v_mov_b32 v{vtmp}, {LDS_NONCE}")
        a(f"ds_read_b32 v{vtmp}, v{vtmp}")

    def publish_flag(self, s_off, vtmp):
        a = self.a
        a("s_waitcnt vmcnt(0)")
        a(f"v_mov_b32 v{vtmp}, s{S_NONCE}")
        a(f"v_mov_b32 v{vtmp+1}, 0")
        a("s_mov_b64 exec, 1")
        a(f"buffer_store_dword v{vtmp}, v{vtmp+1}, s[{SRD_WS}:{SRD_WS+3}], s{s_off} offen sc1")
        a("s_mov_b64 exec, -1")

    def tok_stats_read(self):
        a = self.a
        a("v_and_b32 v10, 31, v0")
        a(f"v_lshlrev_b32 v10, 2, v10")
        a(f"v_add_u32 v10, {LDS_SCR}, v10")
        for tb in range(4):
            a(f"ds_read_b32 v{32+2*tb}, v10 offset:{tb*128}")
            a(f"ds_read_b32 v{33+2*tb}, v10 offset:{512+tb*128}")
        self.read_nonce(40)
        a("v_lshrrev_b32 v11, 5, v0")
        a("v_lshlrev_b32 v11, 4, v11")
        for r in range(16):
            a(f"ds_bpermute_b32 v{16+r}, v11, v{self.CS} offset:{(8*(r>>2)+(r&3))*4}")

    def role_qkv(self):
        a = self.a
        a(f"s_lshl_b32 s{self.S_RING}, s{S_W}, 13")
        a(f"s_add_u32 s{self.S_RING}, s{self.S_RING}, {LDS_RING}")
        a(f"s_mul_i32 s53, s{S_J}, 3")
        a(f"s_add_u32 s53, s53, s{S_W}")
        self.gemm_wg_voffset(3072)
        a(f"s_lshl_b32 s{self.S_WOFF}, s53, 6")
        a(f"s_mov_b32 s{self.S_WSTR}, {16*3072 if 'wq0' not in self.dbg else 0}")
        a(f"s_sub_u32 s{self.S_WOFF}, s{self.S_WOFF}, s{self.S_WSTR}")
        a("s_waitcnt lgkmcnt(0)")
        self.srd(SRD_A, S_WQKV, 512 * 3072)
        for sl in range(8):
            self.w_dma(sl, self.S_RING)
        a("s_lshr_b32 s54, s53, 4")
        a("s_and_b32 s55, s53, 15")
        self.srd(SRD_WS, S_WS, WS_SIZE)
        self.gemm_setup_addrs()
        self.zero_acc()
        self.cs4_init()
        a(f"v_mov_b32 v148, {LDS_XF}")
        self.stamp(0)
        a("s_barrier")
        self.wait_xflags([144, 145, 146, 147], 1, 148, 149)
        a("s_waitcnt vmcnt(7)")
        self.stamp(1)
        self.gemm_first_frags()
        a("s_cmp_eq_u32 s54, 2")
        a("s_cbranch_scc1 L_role_v")
        self.gemm_loop(False, True, "qk")
        self.stamp(2)
        a("s_barrier")
        a("v_and_b32 v10, 31, v0")
        a(f"v_lshlrev_b32 v10, 2, v10")
        a(f"v_add_u32 v10, {LDS_SCR}, v10")
        for tb in range(4):
            a(f"ds_read_b32 v{32+2*tb}, v10 offset:{tb*128}")
            a(f"ds_read_b32 v{33+2*tb}, v10 offset:{512+tb*128}")
        self.read_nonce(40)
        a("s_nop 3")
        self.cs16_from_cs4()
        a("s_waitcnt lgkmcnt(0)")
        a(f"v_readfirstlane_b32 s{S_NONCE}, v40")
        a("s_cmp_eq_u32 s54, 0")
        a(f"s_cselect_b32 s47, {f2u(QSCALE)}, 1.0")
        for tb in range(4):
            a(f"v_mul_f32 v{32+2*tb}, s47, v{32+2*tb}")
            a(f"v_mul_f32 v{33+2*tb}, s47, v{33+2*tb}")
        a("s_lshl_b32 s48, s54, 21")
        a("s_lshl_b32 s49, s55, 17")
        a("s_add_u32 s48, s48, s49")
        a(f"s_lshl_b32 s49, s{S_TG}, 12")
        a("s_add_u32 s48, s48, s49")
        a("v_lshlrev_b32 v10, 4, v0")
        self.tok_epilogue_store(ffn=False)
        a("s_barrier")
        a("s_lshl_b32 s48, s55, 8")
        a("s_lshl_b32 s49, s54, 6")
        a("s_add_u32 s48, s48, s49")
        a(f"s_lshl_b32 s49, s{S_TG}, 2")
        a("s_add_u32 s48, s48, s49")
        a(f"s_add_u32 s48, s48, {FL1}")
        self.publish_flag(48, 12)
        self.stamp(3)
        a("s_branch L_s2_idle")

    def tok_epilogue_store(self, ffn):
        a = self.a
        hb_stride = 1024 if ffn else 65536
        tb_stride = 112 * 1024 if ffn else 1024
        T = 44
        for tb in range(4):
            st = 32 + 2 * tb
            for hb in range(2):
                P = 48 + 4 * hb
                for p in range(4):
                    r = 8 * hb + 2 * p
                    acc = self.ACC + 16 * tb + r
                    w = T + 2 * (p & 1)
                    if ffn:
                        a(f"v_pk_fma_f32 {vr(w,2)}, {vr(16+r,2)}, {vr(st,2)}, {vr(128+r,2)} op_sel:[0,1,0] op_sel_hi:[1,1,1]")
                    else:
                        a(f"v_pk_mul_f32 {vr(w,2)}, {vr(16+r,2)}, {vr(st,2)} op_sel:[0,1] op_sel_hi:[1,1]")
                    a(f"v_pk_fma_f32 {vr(acc,2)}, {vr(acc,2)}, {vr(st,2)}, {vr(w,2)} op_sel_hi:[1,0,1]")
                    if ffn:
                        a(f"v_max_f32 v{acc}, 0, v{acc}")
                        a(f"v_max_f32 v{acc+1}, 0, v{acc+1}")
                        a(f"v_pk_mul_f32 {vr(acc,2)}, {vr(acc,2)}, {vr(acc,2)}")
                    a(f"v_cvt_pk_bf16_f32 v{P+p}, v{acc}, v{acc+1}")
                off = hb * hb_stride + tb * tb_stride
                a(f"s_add_u32 s49, s48, {off}")
                a(f"buffer_store_dwordx4 {vr(P,4)}, v10, s[{SRD_WS}:{SRD_WS+3}], s49 offen sc1")

    def role_v(self):
        a = self.a
        a.label("L_role_v")
        self.gemm_loop(True, True, "v")
        self.stamp(2)
        a("s_barrier")
        self.read_nonce(40)
        a("v_bfe_u32 v12, v0, 2, 2")
        a("v_bfe_u32 v13, v0, 4, 1")
        a("v_lshl_add_u32 v12, v12, 4, v13")
        a("v_lshlrev_b32 v12, 2, v12")
        a("s_nop 3")
        for jj in range(4):
            a(f"ds_bpermute_b32 v{16+jj}, v12, v{self.CS4+jj}")
        a("v_and_b32 v13, 3, v0")
        a("s_waitcnt lgkmcnt(0)")
        for jj in range(1, 4):
            a(f"v_cmp_eq_u32 vcc, {jj}, v13")
            a("s_nop 1")
            a(f"v_cndmask_b32 v16, v16, v{16+jj}, vcc")
        a(f"v_mov_b32 v{self.CS}, v16")
        a("v_lshrrev_b32 v11, 5, v0")
        a("v_lshlrev_b32 v11, 4, v11")
        a(f"v_add_u32 v11, {LDS_SCR}, v11")
        a("v_bfe_u32 v12, v0, 4, 1")
        a("v_lshlrev_b32 v12, 16, v12")
        a("v_lshrrev_b32 v13, 5, v0")
        a("v_lshl_add_u32 v12, v13, 8, v12")
        a("v_and_b32 v13, 15, v0")
        a("v_lshl_add_u32 v10, v13, 4, v12")
        a("s_lshl_b32 s48, s55, 17")
        a(f"s_lshl_b32 s49, s{S_TG}, 12")
        a("s_add_u32 s48, s48, s49")
        a(f"s_add_u32 s48, s48, {WS_V}")
        a("s_waitcnt lgkmcnt(0)")
        a(f"v_readfirstlane_b32 s{S_NONCE}, v40")
        for tb in range(4):
            for b in range(4):
                a(f"ds_read_b128 {vr(16+4*b,4)}, v11 offset:{(32*tb+8*b)*4}")
                a(f"ds_read_b128 {vr(32+4*b,4)}, v11 offset:{512+(32*tb+8*b)*4}")
            a("s_waitcnt lgkmcnt(0)")
            for t in range(2):
                P = 48 + 4 * t
                for p in range(4):
                    r = 8 * t + 2 * p
                    acc = self.ACC + 16 * tb + r
                    w = 58 + 2 * (p & 1)
                    a(f"v_pk_mul_f32 {vr(w,2)}, {vr(32+r,2)}, {vr(self.CS,2)} op_sel_hi:[1,0]")
                    a(f"v_pk_fma_f32 {vr(acc,2)}, {vr(acc,2)}, {vr(16+r,2)}, {vr(w,2)}")
                    a(f"v_cvt_pk_bf16_f32 v{P+p}, v{acc}, v{acc+1}")
                a(f"s_add_u32 s49, s48, {tb*1024 + t*512}")
                a(f"buffer_store_dwordx4 {vr(P,4)}, v10, s[{SRD_WS}:{SRD_WS+3}], s49 offen sc1")
        a("s_barrier")
        a("s_lshl_b32 s48, s55, 8")
        a(f"s_lshl_b32 s49, s{S_TG}, 2")
        a("s_add_u32 s48, s48, s49")
        a(f"s_add_u32 s48, s48, {FL1 + 128}")
        self.publish_flag(48, 12)
        self.stamp(3)
        a("s_branch L_s2_idle")

    def role_x(self):
        a = self.a
        a.label("L_role_x")
        a("v_lshrrev_b32 v1, 3, v0")
        a("v_lshrrev_b32 v2, 4, v0")
        a("v_and_b32 v3, 7, v0")
        a("v_xor_b32 v3, v2, v3")
        a("v_lshlrev_b32 v3, 4, v3")
        a("v_lshl_or_b32 v2, v1, 10, v3")
        a("v_xor_b32 v3, 64, v2")
        a(f"s_sub_u32 s42, s{S_W}, 4")
        a(f"s_lshl_b32 s43, s{S_TG}, 17")
        a("s_lshl_b32 s44, s42, 15")
        a("s_add_u32 s43, s43, s44")
        a("s_lshl_b32 s44, s42, 12")
        a("s_waitcnt lgkmcnt(0)")
        self.srd(SRD_A, S_X, 2048 * 1024)
        D = self.XLOOK
        def chunk(kc):
            for rg in range(4):
                a(f"s_add_u32 m0, s44, {kc*16384 + rg*1024}")
                a(f"s_add_u32 s45, s43, {rg*8192 + kc*128}")
                a(f"buffer_load_dwordx4 v{2+(rg&1)}, s[{SRD_A}:{SRD_A+3}], s45 offen lds")
        for kc in range(D): chunk(kc)
        self.srd(SRD_WS, S_WS, WS_SIZE)
        a("s_lshl_b32 s46, s42, 2")
        a(f"s_add_u32 s46, s46, {LDS_XF}")
        a("v_mov_b32 v4, s46")
        a("v_mov_b32 v5, 0")
        a("ds_write_b32 v4, v5")
        a("s_waitcnt lgkmcnt(0)")
        self.stamp(0)
        a("s_barrier")
        for kc in range(8):
            a(f"v_mov_b32 v5, {kc+1}")
            if 'nox' not in self.dbg or kc == 0: a(f"s_waitcnt vmcnt({4*min(D-1, 7-kc)})")
            a("ds_write_b32 v4, v5")
            if kc == 0: self.stamp(1)
            if 's1det' in self.dbg: self.stamp(kc + 4)
            if kc + D < 8 and 'nox' not in self.dbg: chunk(kc + D)
        a("s_waitcnt lgkmcnt(0)")
        a("s_barrier")
        self.read_nonce(40)
        a("s_waitcnt lgkmcnt(0)")
        a(f"v_readfirstlane_b32 s{S_NONCE}, v40")
        a("s_barrier")
        self.stamp(3)
        a("s_branch L_s2_idle")

    @property
    def XLOOK(self):
        for d in self.dbg:
            if d.startswith('xl'): return int(d[2:])
        return 3
    WLOOK = 4

    def stats_setup(self, tb0):
        a = self.a
        a("v_and_b32 v10, 31, v0")
        a("v_lshrrev_b32 v11, 5, v0")
        a("v_bfe_u32 v12, v0, 1, 3")
        a("v_xor_b32 v12, v11, v12")
        a("v_lshlrev_b32 v12, 4, v12")
        a("v_lshl_or_b32 v152, v10, 7, v12")
        a(f"v_add_u32 v152, {tb0*4096}, v152")
        for m in range(1, 4):
            a(f"v_xor_b32 v{152+m}, {32*m}, v152")
        for i in range(8):
            a(f"v_mov_b32 v{156+i}, 0")

    def stats_chunk(self, kc, tb0):
        a = self.a
        a(f"v_mov_b32 v12, {LDS_XF + 4*tb0}")
        self.wait_xflags([10, 11], kc + 1, 12, 13)
        if kc == 4:
            for m in range(4): a(f"v_add_u32 v{152+m}, 0x10000, v{152+m}")
        for m in range(4):
            for t in range(2):
                a(f"ds_read_b128 {vr(16+8*m+4*t,4)}, v{152+m} offset:{(kc&3)*16384 + t*4096}")
        for m in range(4):
            for t in range(2):
                a(f"s_waitcnt lgkmcnt({7-2*m-t})")
                F = 16 + 8*m + 4*t
                for q in range(4 if 'nostats' not in self.dbg else 0):
                    a(f"v_dot2c_f32_bf16 v{156+4*t+(q&1)}, s{S_ONES}, v{F+q}")
                    a(f"v_dot2c_f32_bf16 v{158+4*t+(q&1)}, v{F+q}, v{F+q}")

    def stats_final(self, tb0):
        a = self.a
        a("s_nop 2")
        for t in range(2):
            a(f"v_add_f32 v{156+4*t}, v{156+4*t}, v{157+4*t}")
            a(f"v_add_f32 v{158+4*t}, v{158+4*t}, v{159+4*t}")
        a("s_nop 0")
        for t in range(2):
            a(f"v_mov_b32 v{157+4*t}, v{156+4*t}")
            a(f"v_mov_b32 v{159+4*t}, v{158+4*t}")
        a("s_nop 1")
        for t in range(2):
            a(f"v_permlane32_swap_b32 v{156+4*t}, v{157+4*t}")
            a(f"v_permlane32_swap_b32 v{158+4*t}, v{159+4*t}")
        a("s_nop 1")
        a("v_and_b32 v12, 31, v0")
        a("v_lshlrev_b32 v12, 2, v12")
        a(f"v_add_u32 v12, {LDS_SCR + tb0*128}, v12")
        for t in range(2):
            S, Q = 156+4*t, 158+4*t
            a(f"v_add_f32 v{S}, v{S}, v{S+1}")
            a(f"v_add_f32 v{Q}, v{Q}, v{Q+1}")
            a(f"v_mul_f32 v{S}, {f2u(1.0/512)}, v{S}")
            a(f"v_mul_f32 v{Q}, {f2u(1.0/512)}, v{Q}")
            a(f"v_fma_f32 v{Q}, -v{S}, v{S}, v{Q}")
            a(f"v_max_f32 v{Q}, 0, v{Q}")
            a(f"v_add_f32 v{Q}, {f2u(1e-5)}, v{Q}")
            a(f"v_rsq_f32 v{Q}, v{Q}")
            a("s_nop 0")
            a(f"v_mul_f32 v{S}, v{S}, v{Q}")
            a(f"v_sub_f32 v{S}, 0, v{S}")
            a(f"ds_write_b32 v12, v{Q} offset:{t*128}")
            a(f"ds_write_b32 v12, v{S} offset:{512+t*128}")
        a("s_waitcnt lgkmcnt(0)")

    def role_w3(self):
        a = self.a
        a.label("L_role_w3")
        self.stats_setup(0)
        a("s_waitcnt lgkmcnt(0)")
        self.srd(SRD_WS, S_WS, WS_SIZE)
        self.srd(SRD_A, S_DBG, 256)
        a("v_mov_b32 v2, 0")
        a("s_cmp_lg_u32 s2, 0")
        a("s_cbranch_scc1 L_nc_np")
        a("s_memrealtime s[60:61]")
        a("s_waitcnt lgkmcnt(0)")
        a("s_or_b32 s60, s60, 1")
        a("v_mov_b32 v1, s60")
        a("s_mov_b64 exec, 1")
        a(f"buffer_store_dword v1, v2, s[{SRD_A}:{SRD_A+3}], 0 offen sc1")
        a("s_mov_b64 exec, -1")
        a.label("L_nc_np")
        a("s_barrier")
        for kc in range(8):
            if kc == 3:
                a(f"buffer_load_dword v1, v2, s[{SRD_A}:{SRD_A+3}], 0 offen sc1")
            if kc == 7:
                a("s_mov_b32 s62, 0")
                a.label("L_nc_chk")
                a("s_waitcnt vmcnt(0)")
                a(f"v_readfirstlane_b32 s{S_NONCE}, v1")
                a(f"s_cmp_lg_u32 s{S_NONCE}, 0")
                a("s_cbranch_scc1 L_nc_got")
                a("s_add_u32 s62, s62, 1")
                a("s_cmp_ge_u32 s62, 8192")
                a("s_cbranch_scc1 L_nc_got")
                a(f"buffer_load_dword v1, v2, s[{SRD_A}:{SRD_A+3}], 0 offen sc1")
                a("s_branch L_nc_chk")
                a.label("L_nc_got")
                a(f"v_mov_b32 v1, s{S_NONCE}")
                a(f"v_mov_b32 v2, {LDS_NONCE}")
                a("ds_write_b32 v2, v1")
            self.stats_chunk(kc, 0)
            if 's1det' in self.dbg: self.stamp(kc + 4)
        self.stats_final(0)
        self.stamp(2)
        a("s_barrier")
        a("s_barrier")
        self.attn_ids()
        a(f"s_lshr_b32 s47, s{S_HEAD}, 1")
        a("s_lshl_b32 s47, s47, 8")
        a(f"s_add_u32 s47, s47, {FL1}")
        self.poll_flags(47, 48)
        self.stamp(4)
        a("s_branch L_s2_idle")

    def ffn_setup(self):
        a = self.a
        a(f"s_sub_u32 s50, s{S_W}, 8")
        a(f"s_lshl_b32 s{self.S_RING}, s50, 13")
        a(f"s_add_u32 s{self.S_RING}, s{self.S_RING}, {LDS_RING}")
        self.gemm_wg_voffset(3584)
        a(f"s_lshl_b32 s51, s{S_J}, 2")
        a("s_add_u32 s51, s51, s50")
        a(f"s_lshl_b32 s{self.S_WOFF}, s51, 6")
        a(f"s_mov_b32 s{self.S_WSTR}, {16*3584 if 'wstr0' not in self.dbg else 0}")
        a(f"s_sub_u32 s{self.S_WOFF}, s{self.S_WOFF}, s{self.S_WSTR}")
        self.srd(SRD_A, S_W1, 512 * 3584)
        self.srd(SRD_B, S_B1, 1792 * 2)
        a("v_lshrrev_b32 v12, 5, v0")
        a("v_lshlrev_b32 v12, 3, v12")
        a("s_lshl_b32 s52, s51, 6")
        for b in range(4):
            a(f"buffer_load_dwordx2 {vr(144+2*b,2)}, v12, s[{SRD_B}:{SRD_B+3}], s52 offen offset:{16*b}")
        self.gemm_setup_addrs()
        self.zero_acc()
        self.cs4_init()

    def cs4_init(self):
        a = self.a
        a("v_lshrrev_b32 v12, 4, v0")
        a("v_xor_b32 v12, v12, v0")
        a("v_and_b32 v12, 1, v12")
        a("v_cmp_eq_u32 vcc, 0, v12")
        a(f"v_mov_b32 v13, s{S_ONES}")
        for i in range(4):
            a(f"v_mov_b32 v{self.CS4+i}, 0")
        for i in range(4):
            a(f"v_cndmask_b32 v{self.PAR+i}, 0, v13, vcc")

    def role_ffn(self):
        a = self.a
        a.label("L_role_ffn")
        a("s_waitcnt lgkmcnt(0)")
        self.srd(SRD_WS, S_WS, WS_SIZE)
        self.ffn_setup()
        a("s_barrier")
        a(f"s_cmp_lg_u32 s{S_W}, 11")
        a("s_cbranch_scc1 L_ffn_b8")
        self.stats_setup(2)
        for kc in range(8):
            self.stats_chunk(kc, 2)
        self.stats_final(2)
        a.label("L_ffn_b8")
        a("s_barrier")
        a(f"s_cmp_ge_u32 s{S_J}, 14")
        a("s_cbranch_scc1 L_ffn_skip")
        for sl in range(6):
            self.w_dma(sl, self.S_RING)
        a("v_and_b32 v10, 31, v0")
        a(f"v_lshlrev_b32 v10, 2, v10")
        a(f"v_add_u32 v10, {LDS_SCR}, v10")
        for tb in range(4):
            a(f"ds_read_b32 v{152+2*tb}, v10 offset:{tb*128}")
            a(f"ds_read_b32 v{153+2*tb}, v10 offset:{512+tb*128}")
        self.read_nonce(40)
        a("s_waitcnt vmcnt(6) lgkmcnt(0)")
        a(f"v_readfirstlane_b32 s{S_NONCE}, v40")
        for b in range(4):
            a(f"v_lshlrev_b32 v{128+4*b}, 16, v{144+2*b}")
            a(f"v_and_b32 v{129+4*b}, 0xffff0000, v{144+2*b}")
            a(f"v_lshlrev_b32 v{130+4*b}, 16, v{145+2*b}")
            a(f"v_and_b32 v{131+4*b}, 0xffff0000, v{145+2*b}")
        a("s_barrier")
        for sl in range(6, 8):
            self.w_dma(sl, self.S_RING)
        self.stamp(4)
        a("s_waitcnt vmcnt(7)")
        self.gemm_first_frags()
        self.gemm_loop(False, False, "ffn")
        self.stamp(5)
        a("s_barrier")
        a("s_nop 7")
        self.cs16_from_cs4()
        for tb in range(4):
            a(f"v_mov_b32 v{32+2*tb}, v{152+2*tb}")
            a(f"v_mov_b32 v{33+2*tb}, v{153+2*tb}")
        a(f"s_mul_i32 s48, s{S_TG}, {4*112*1024}")
        a("s_lshl_b32 s49, s51, 11")
        a("s_add_u32 s48, s48, s49")
        a(f"s_add_u32 s48, s48, {WS_H}")
        a("v_lshlrev_b32 v10, 4, v0")
        a("s_waitcnt lgkmcnt(0)")
        self.tok_epilogue_store(ffn=True)
        a(f"s_lshl_b32 s48, s{S_TG}, 8")
        a("s_lshl_b32 s49, s51, 2")
        a("s_add_u32 s48, s48, s49")
        a(f"s_add_u32 s48, s48, {FL2}")
        self.publish_flag(48, 12)
        self.stamp(6)
        a("s_branch L_s3_gemm")
        a.label("L_ffn_skip")
        self.read_nonce(40)
        a("s_waitcnt vmcnt(0) lgkmcnt(0)")
        a(f"v_readfirstlane_b32 s{S_NONCE}, v40")
        a("s_barrier")
        a("s_barrier")
        a("s_branch L_s3_gemm")

    def attn_ids(self):
        a = self.a
        a(f"s_and_b32 s{S_HEAD}, s2, 7")
        a("s_lshr_b32 s47, s2, 6")
        a("s_lshl_b32 s47, s47, 3")
        a(f"s_or_b32 s{S_HEAD}, s{S_HEAD}, s47")
        a(f"s_bfe_u32 s{S_QB}, s2, 0x30003")
        a(f"s_and_b32 s{S_T}, s2, 7")
        a(f"s_lshl_b32 s{S_T}, s{S_T}, 2")
        a("s_bfe_u32 s47, s2, 0x20003")
        a(f"s_add_u32 s{S_T}, s{S_T}, s47")
        a(f"s_lshr_b32 s{S_C}, s2, 5")

    def poll_flags(self, s_off, n, vt=2):
        a = self.a
        Lp, Ld = self.lab("pf"), self.lab("pfd")
        a(f"v_lshlrev_b32 v{vt}, 2, v0")
        a(f"v_cmp_gt_u32 vcc, {n}, v0")
        a("s_mov_b32 s58, 0")
        a("s_mov_b64 s[62:63], vcc")
        a.label(Lp)
        a(f"buffer_load_dword v{vt+1}, v{vt}, s[{SRD_WS}:{SRD_WS+3}], s{s_off} offen sc1")
        a("s_add_u32 s58, s58, 1")
        a("s_waitcnt vmcnt(0)")
        a(f"v_cmp_eq_u32 vcc, s{S_NONCE}, v{vt+1}")
        a("s_nop 1")
        a("s_and_b64 vcc, vcc, s[62:63]")
        a("s_cmp_eq_u64 vcc, s[62:63]")
        a(f"s_cbranch_scc1 {Ld}")
        a("s_cmp_ge_u32 s58, 0x4000")
        a(f"s_cbranch_scc1 {Ld}")
        a("s_sleep 2")
        a(f"s_branch {Lp}")
        a.label(Ld)

    def s2_idle(self):
        a = self.a
        a.label("L_s2_idle")
        a("s_barrier")
        if self.stop == "s2":
            a("s_branch L_fin")

    Q4, KA, KB, VA, VB = 4, 8, 12, 16, 24
    S0, S1, P0, P1, O = 32, 48, 64, 72, 80
    STG = 96
    VKC, VKN, VVC, VVN, VWA = 128, 129, 130, 131, 132
    S_NXT = 42
    EXM = 60

    def attn_tile(self, i, first_group):
        a = self.a
        ev = (i & 1) == 0
        S, Sn = (self.S0, self.S1) if ev else (self.S1, self.S0)
        P, Pp = (self.P0, self.P1) if ev else (self.P1, self.P0)
        Kn, Kl = (self.KB, self.KA) if ev else (self.KA, self.KB)
        Vc, Vp = (self.VA, self.VB) if ev else (self.VB, self.VA)
        E = lambda k: a(f"v_exp_f32 v{S+k}, v{S+k}")
        C = lambda k: a(f"v_cvt_pk_bf16_f32 v{P+k}, v{S+2*k}, v{S+2*k+1}")
        a("s_waitcnt lgkmcnt(0)")
        if first_group and i == 6:
            a("s_barrier")
        a(f"v_mfma_f32_32x32x16_bf16 {vr(Sn,16)}, {vr(Kn,4)}, {vr(self.Q4,4)}, 0")
        if first_group and i <= 5:
            n = [6, 6, 6, 4, 2, 0][i]
            st = self.STG + 8 * ((i + 2) & 3)
            a(f"s_waitcnt vmcnt({n})")
            a(f"ds_write_b128 v{self.VWA}, {vr(st,4)} offset:{(i+2)*2048}")
            a(f"ds_write_b128 v{self.VWA}, {vr(st+4,4)} offset:{(i+2)*2048+1024}")
        E(0); E(1)
        if i + 2 <= 7: a(f"ds_read_b128 {vr(Kl,4)}, v{self.VKC} offset:{(i+2)*2048}")
        else:          a(f"ds_read_b128 {vr(Kl,4)}, v{self.VKN} offset:{(i+2-8)*2048}")
        if first_group and i + 6 <= 7:
            st = self.STG + 8 * ((i + 6) & 3)
            self.kv_load(i + 6, st)
        E(2); E(3); C(0); E(4); E(5); C(1)
        a(f"v_mfma_f32_32x32x16_bf16 {vr(self.O,16)}, {vr(Vp+4,4)}, {vr(Pp+4,4)}, {vr(self.O,16)}")
        a(f"s_mov_b64 exec, s[{self.EXM}:{self.EXM+1}]")
        va, off = (self.VVC, (i + 1) * 2048) if i + 1 <= 7 else (self.VVN, 0)
        a(f"ds_read_b128 {vr(Vp,4)}, v{va} offset:{off}")
        a(f"ds_read_b128 {vr(Vp+4,4)}, v{va} offset:{off+512}")
        a("s_mov_b64 exec, -1")
        E(6); E(7); C(2); E(8); E(9); C(3); E(10); E(11)
        a(f"v_mfma_f32_32x32x16_bf16 {vr(self.O,16)}, {vr(Vc,4)}, {vr(P,4)}, {vr(self.O,16)}")
        C(4); E(12); E(13); C(5); E(14); E(15); C(6); C(7)

    def kv_load(self, i, st):
        a = self.a
        a(f"buffer_load_dwordx4 {vr(st,4)}, v1, s[{SRD_WS}:{SRD_WS+3}], s44 offen offset:{(i&3)*1024} sc1")
        a(f"buffer_load_dwordx4 {vr(st+4,4)}, v1, s[{SRD_WS}:{SRD_WS+3}], s45 offen offset:{(i&3)*1024} sc1")

    def group_advance(self):
        a = self.a
        a(f"v_mov_b32 v{self.VKC}, v{self.VKN}")
        a(f"v_mov_b32 v{self.VVC}, v{self.VVN}")
        a(f"s_add_u32 s{self.S_NXT}, s{self.S_NXT}, 16384")
        a(f"s_and_b32 s{self.S_NXT}, s{self.S_NXT}, 0x1ffff")
        a(f"v_add_u32 v{self.VKN}, s{self.S_NXT}, v1")
        a(f"v_add_u32 v{self.VVN}, s{self.S_NXT}, v3")

    def role_attn(self):
        a = self.a
        a.label("L_s3_attn")
        self.attn_ids()
        a("v_lshlrev_b32 v1, 4, v0")
        a(f"s_lshl_b32 s43, s{S_HEAD}, 16")
        a(f"s_lshl_b32 s46, s{S_QB}, 13")
        a("s_add_u32 s46, s46, s43")
        a(f"s_lshl_b32 s47, s{S_W}, 10")
        a("s_add_u32 s46, s46, s47")
        a(f"buffer_load_dwordx4 {vr(self.Q4,4)}, v1, s[{SRD_WS}:{SRD_WS+3}], s46 offen sc1")
        a(f"s_lshl_b32 s47, s{S_W}, 13")
        a("s_add_u32 s44, s43, s47")
        a(f"s_add_u32 s45, s44, {WS_V}")
        a(f"s_add_u32 s44, s44, {WS_K}")
        for i in range(4):
            self.kv_load(i, self.STG + 8 * i)
        a("s_add_u32 s44, s44, 4096")
        a("s_add_u32 s45, s45, 4096")
        self.stamp(7)
        a(f"s_lshl_b32 s46, s{S_W}, 14")
        a(f"v_add_u32 v{self.VWA}, s46, v1")
        a(f"v_mov_b32 v{self.VKC}, v{self.VWA}")
        a("v_lshrrev_b32 v2, 5, v0")
        a("v_lshlrev_b32 v2, 8, v2")
        a("v_and_b32 v3, 15, v0")
        a("v_lshl_add_u32 v3, v3, 4, v2")
        a("v_add_u32 v3, 1024, v3")
        a(f"v_add_u32 v{self.VVC}, s46, v3")
        a(f"s_add_u32 s{self.S_NXT}, s46, 16384")
        a(f"s_and_b32 s{self.S_NXT}, s{self.S_NXT}, 0x1ffff")
        a(f"v_add_u32 v{self.VKN}, s{self.S_NXT}, v1")
        a(f"v_add_u32 v{self.VVN}, s{self.S_NXT}, v3")
        a(f"s_mov_b32 s{self.EXM}, 0xffff")
        a(f"s_mov_b32 s{self.EXM+1}, 0xffff")
        a("v_and_b32 v2, 27, v0")
        a("v_cmp_eq_u32 vcc, 16, v2")
        a(f"v_mov_b32 v2, s{S_ONES}")
        a("s_nop 0")
        for r in range(16):
            a(f"v_cndmask_b32 v{self.VA+r}, 0, v2, vcc")
        for r in range(16):
            a(f"v_mov_b32 v{self.O+r}, 0")
        for r in range(4):
            a(f"v_mov_b32 v{self.P1+4+r}, 0")
        a("s_waitcnt vmcnt(4)")
        self.stamp(8)
        for i in range(2):
            st = self.STG + 8 * i
            a(f"ds_write_b128 v{self.VWA}, {vr(st,4)} offset:{i*2048}")
            a(f"ds_write_b128 v{self.VWA}, {vr(st+4,4)} offset:{i*2048+1024}")
        for i in (4, 5):
            self.kv_load(i, self.STG + 8 * (i & 3))
        a(f"ds_read_b128 {vr(self.KA,4)}, v{self.VKC}")
        a(f"ds_read_b128 {vr(self.KB,4)}, v{self.VKC} offset:2048")
        a(f"s_mov_b64 exec, s[{self.EXM}:{self.EXM+1}]")
        a(f"ds_read_b128 {vr(self.VA,4)}, v{self.VVC}")
        a(f"ds_read_b128 {vr(self.VA+4,4)}, v{self.VVC} offset:512")
        a("s_mov_b64 exec, -1")
        a("s_waitcnt lgkmcnt(0)")
        a(f"v_mfma_f32_32x32x16_bf16 {vr(self.S0,16)}, {vr(self.KA,4)}, {vr(self.Q4,4)}, 0")
        a("s_nop 7")
        a("s_nop 3")
        for i in range(8):
            self.attn_tile(i, True)
        self.group_advance()
        self.stamp(9)
        a("s_mov_b32 s43, 0")
        a.label("L_attn_loop")
        for i in range(8):
            self.attn_tile(i, False)
        self.group_advance()
        a("s_add_u32 s43, s43, 1")
        a("s_cmp_lt_u32 s43, 7")
        a("s_cbranch_scc1 L_attn_loop")
        a(f"v_mfma_f32_32x32x16_bf16 {vr(self.O,16)}, {vr(self.VB+4,4)}, {vr(self.P1+4,4)}, {vr(self.O,16)}")
        self.stamp(10)
        a("s_waitcnt lgkmcnt(0)")
        a("s_nop 7")
        a("s_nop 7")
        O = self.O
        a(f"v_mul_f32 v2, 0, v{O}")
        for r in range(1, 8):
            a(f"v_fma_f32 v2, v{O+r}, 0, v2")
        a(f"v_cmp_ge_f32 vcc, v{O+8}, {f2u(2.0**-64):#x}") if False else None
        a(f"s_mov_b32 s46, {f2u(2.0**-64):#x}")
        a(f"s_mov_b32 s47, {f2u(2.0**64):#x}")
        a(f"v_cmp_le_f32 s[48:49], s46, v{O+8}")
        a(f"v_cmp_ge_f32 s[50:51], s47, v{O+8}")
        a("v_cmp_eq_f32 vcc, 0, v2")
        a("s_nop 1")
        a("s_and_b64 s[48:49], s[48:49], s[50:51]")
        a("s_and_b64 vcc, vcc, s[48:49]")
        if 'slow' in self.dbg:
            a("s_mov_b64 vcc, 0")
        a("s_cmp_eq_u64 vcc, -1")
        a("s_cbranch_scc0 L_attn_slow")
        a.label("L_attn_norm")
        a(f"v_rcp_f32 v2, v{O+8}")
        a("s_nop 0")
        for r in range(8):
            a(f"v_mul_f32 v{O+r}, v{O+r}, v2")
        for p in range(4):
            a(f"v_cvt_pk_bf16_f32 v{self.P0+p}, v{O+2*p}, v{O+2*p+1}")
        a(f"s_lshl_b32 s46, s{S_QB}, 3")
        a(f"s_add_u32 s46, s46, s{S_W}")
        a("s_lshl_b32 s46, s46, 5")
        a(f"s_add_u32 s46, s46, s{S_HEAD}")
        a("s_lshl_b32 s46, s46, 10")
        a(f"s_add_u32 s46, s46, {WS_O}")
        a(f"buffer_store_dwordx4 {vr(self.P0,4)}, v1, s[{SRD_WS}:{SRD_WS+3}], s46 offen sc1")
        a("s_branch L_tail_attn")

    def attn_slow(self):
        a = self.a
        O, S, P = self.O, self.S0, self.P0
        a.label("L_attn_slow")
        for r in range(16):
            a(f"v_mov_b32 v{O+r}, 0")
        a(f"v_mov_b32 v136, {f2u(-3.0e38):#x}")
        a("v_mov_b32 v137, v1")
        a("v_mov_b32 v138, v3")
        a("s_mov_b32 s43, 0")
        a.label("L_slow_loop")
        a(f"ds_read_b128 {vr(self.KA,4)}, v137")
        a(f"s_mov_b64 exec, s[{self.EXM}:{self.EXM+1}]")
        a(f"ds_read_b128 {vr(self.VA,4)}, v138")
        a(f"ds_read_b128 {vr(self.VA+4,4)}, v138 offset:512")
        a("s_mov_b64 exec, -1")
        a("s_waitcnt lgkmcnt(0)")
        a(f"v_mfma_f32_32x32x16_bf16 {vr(S,16)}, {vr(self.KA,4)}, {vr(self.Q4,4)}, 0")
        a("v_add_u32 v137, 2048, v137")
        a("v_add_u32 v138, 2048, v138")
        a("s_nop 7")
        a("s_nop 7")
        a(f"v_max3_f32 v139, v{S}, v{S+1}, v{S+2}")
        for r in range(3, 15, 2):
            a(f"v_max3_f32 v139, v139, v{S+r}, v{S+r+1}")
        a(f"v_max_f32 v139, v139, v{S+15}")
        a("s_nop 0")
        a("v_mov_b32 v140, v139")
        a("s_nop 1")
        a("v_permlane32_swap_b32 v139, v140")
        a("s_nop 1")
        a("v_max3_f32 v139, v139, v140, v136")
        a("v_sub_f32 v140, v136, v139")
        a("v_exp_f32 v140, v140")
        a("v_mov_b32 v136, v139")
        for r in range(16):
            a(f"v_sub_f32 v{S+r}, v{S+r}, v139")
        for r in range(16):
            a(f"v_exp_f32 v{S+r}, v{S+r}")
        for r in range(9):
            a(f"v_mul_f32 v{O+r}, v{O+r}, v140")
        for p in range(8):
            a(f"v_cvt_pk_bf16_f32 v{P+p}, v{S+2*p}, v{S+2*p+1}")
        a("s_nop 1")
        a(f"v_mfma_f32_32x32x16_bf16 {vr(O,16)}, {vr(self.VA,4)}, {vr(P,4)}, {vr(O,16)}")
        a(f"v_mfma_f32_32x32x16_bf16 {vr(O,16)}, {vr(self.VA+4,4)}, {vr(P+4,4)}, {vr(O,16)}")
        a("s_add_u32 s43, s43, 1")
        a("s_nop 7")
        a("s_nop 7")
        a("s_cmp_lt_u32 s43, 64")
        a("s_cbranch_scc1 L_slow_loop")
        a("s_branch L_attn_norm")

    def role_down(self):
        a = self.a
        a.label("L_s3_gemm")
        if self.stop == "s2":
            a("s_branch L_fin")
        self.attn_ids()
        a(f"s_sub_u32 s50, s{S_W}, 8")
        a("s_barrier")
        self.srd(SRD_A, S_W2, 1792 * 1024)
        ACC, HST, WF = 64, 16, 48
        a("v_lshrrev_b32 v4, 2, v0")
        a("v_lshlrev_b32 v4, 10, v4")
        a("v_and_b32 v5, 3, v0")
        a("v_lshl_add_u32 v4, v5, 4, v4")
        a("s_lshl_b32 s44, s50, 13")
        a(f"s_add_u32 s44, s44, {LDS_RING}")
        a("v_lshrrev_b32 v6, 5, v0")
        a("v_bfe_u32 v7, v0, 2, 2")
        a("v_lshl_add_u32 v7, v6, 2, v7")
        a("v_lshlrev_b32 v7, 6, v7")
        a("v_bfe_u32 v8, v0, 4, 1")
        a("v_lshl_add_u32 v7, v8, 5, v7")
        a("v_and_b32 v8, 3, v0")
        a("v_lshl_add_u32 v7, v8, 3, v7")
        a("v_add_u32 v7, s44, v7")
        a("v_lshlrev_b32 v1, 4, v0")
        a("s_mul_i32 s45, s50, 28")
        a("s_lshl_b32 s46, s45, 14")
        a(f"s_lshl_b32 s47, s{S_C}, 7")
        a("s_add_u32 s46, s46, s47")
        a(f"s_mul_i32 s47, s{S_T}, {2*112*1024}")
        a("s_lshl_b32 s48, s45, 10")
        a("s_add_u32 s47, s47, s48")
        a(f"s_add_u32 s47, s47, {WS_H}")
        a(f"s_add_u32 s48, s47, {112*1024}")
        for r in range(64):
            a(f"v_mov_b32 v{ACC+r}, 0")
        def w2dma(slot):
            for cb in range(2):
                a(f"s_add_u32 m0, s44, {slot*2048 + cb*1024}")
                a(f"s_add_u32 s49, s46, {cb*64}")
                a(f"buffer_load_dwordx4 v4, s[{SRD_A}:{SRD_A+3}], s49 offen lds")
            a("s_add_u32 s46, s46, 16384")
        def hload(slot):
            a(f"buffer_load_dwordx4 {vr(HST+8*slot,4)}, v1, s[{SRD_WS}:{SRD_WS+3}], s47 offen sc1")
            a(f"buffer_load_dwordx4 {vr(HST+8*slot+4,4)}, v1, s[{SRD_WS}:{SRD_WS+3}], s48 offen sc1")
            a("s_add_u32 s47, s47, 1024")
            a("s_add_u32 s48, s48, 1024")
        a(f"s_lshr_b32 s51, s{S_T}, 1")
        a("s_lshl_b32 s51, s51, 8")
        a("s_mul_i32 s52, s50, 56")
        a("s_add_u32 s51, s51, s52")
        a(f"s_add_u32 s51, s51, {FL2}")
        self.poll_flags(51, 14)
        self.stamp(7)
        for sl in range(4):
            w2dma(sl); hload(sl)
        def kstep(sl, vm, pre):
            a(f"s_waitcnt vmcnt({vm})")
            for cb in range(2):
                a(f"ds_read_b64_tr_b16 {vr(WF+4*cb,2)}, v7 offset:{sl*2048+cb*1024}")
                a(f"ds_read_b64_tr_b16 {vr(WF+4*cb+2,2)}, v7 offset:{sl*2048+cb*1024+512}")
            a("s_waitcnt lgkmcnt(0)")
            for tb in range(2):
                for cb in range(2):
                    acc = ACC + 16 * (2 * tb + cb)
                    a(f"v_mfma_f32_32x32x16_bf16 {vr(acc,16)}, {vr(WF+4*cb,4)}, {vr(HST+8*sl+4*tb,4)}, {vr(acc,16)}")
            if pre:
                w2dma(sl); hload(sl)
        a("s_mov_b32 s43, 0")
        a.label("L_down_loop")
        for sl in range(4): kstep(sl, 12, True)
        a("s_add_u32 s43, s43, 1")
        a("s_cmp_lt_u32 s43, 6")
        a("s_cbranch_scc1 L_down_loop")
        for sl in range(4): kstep(sl, 12 - 4 * sl, False)
        self.stamp(8)
        a("s_branch L_tail_gemm")

    PPITCH, PPART, PBASE = 272, 64 * 272, 65536

    def part_write(self, acc_of, tbs, part_sreg):
        a = self.a
        for tb in tbs:
            for cb in range(2):
                acc = acc_of(tb, cb)
                for b in range(4):
                    a(f"ds_write_b128 v9, {vr(acc+4*b,4)} offset:{tb*32*self.PPITCH + (32*cb+8*b)*4}")

    def tail(self):
        a = self.a
        a.label("L_tail_gemm")
        a("s_barrier")
        a("v_and_b32 v9, 31, v0")
        a(f"v_mul_u32_u24 v9, {self.PPITCH}, v9")
        a("v_lshrrev_b32 v10, 5, v0")
        a("v_lshl_add_u32 v9, v10, 4, v9")
        a(f"s_mul_i32 s44, s50, {self.PPART}")
        a(f"s_add_u32 s44, s44, {self.PBASE}")
        a("v_add_u32 v9, s44, v9")
        a("s_nop 4")
        self.part_write(lambda tb, cb: 64 + 16 * (2 * tb + cb), (0, 1), None)
        a("s_waitcnt lgkmcnt(0)")
        a("s_barrier")
        a(f"s_cmp_lg_u32 s{S_W}, 8")
        a("s_cbranch_scc1 L_tail_g2")
        a(f"s_lshr_b32 s51, s{S_T}, 2")
        a("s_lshl_b32 s51, s51, 8")
        a(f"s_add_u32 s51, s51, {FL3}")
        self.poll_flags(51, 32)
        self.stamp(9)
        a.label("L_tail_g2")
        a("s_barrier")
        a("s_barrier")
        a("s_branch L_fin")
        a.label("L_tail_attn")
        a("s_waitcnt vmcnt(0)")
        a("s_barrier")
        self.stamp(11)
        a(f"s_cmp_lg_u32 s{S_W}, 0")
        a("s_cbranch_scc1 L_tail_np")
        a(f"s_lshl_b32 s48, s{S_QB}, 8")
        a(f"s_lshl_b32 s49, s{S_HEAD}, 2")
        a("s_add_u32 s48, s48, s49")
        a(f"s_add_u32 s48, s48, {FL3}")
        self.publish_flag(48, 12)
        a.label("L_tail_np")
        self.srd(SRD_A, S_WO, 512 * 1024)
        a("v_lshrrev_b32 v4, 2, v0")
        a("v_lshlrev_b32 v4, 10, v4")
        a("v_and_b32 v5, 3, v0")
        a("v_lshl_add_u32 v4, v5, 4, v4")
        a(f"s_lshl_b32 s44, s{S_W}, 16")
        a(f"s_lshl_b32 s45, s{S_C}, 7")
        a("s_add_u32 s44, s44, s45")
        a(f"s_lshl_b32 s45, s{S_W}, 13")
        for k in range(4):
            for cb in range(2):
                a(f"s_add_u32 m0, s45, {(2*k+cb)*1024}")
                a(f"s_add_u32 s46, s44, {k*16384 + cb*64}")
                a(f"buffer_load_dwordx4 v4, s[{SRD_A}:{SRD_A+3}], s46 offen lds")
        self.srd(SRD_B, S_X, 2048 * 1024)
        a("v_lshrrev_b32 v5, 3, v0")
        a(f"s_lshl_b32 s46, s{S_W}, 3")
        a("v_add_u32 v5, s46, v5")
        a("v_and_b32 v6, 7, v0")
        a("v_lshlrev_b32 v8, 10, v5")
        a("v_lshl_add_u32 v8, v6, 4, v8")
        a(f"s_lshl_b32 s47, s{S_T}, 16")
        a(f"s_lshl_b32 s46, s{S_C}, 7")
        a("s_add_u32 s47, s47, s46")
        a(f"buffer_load_dwordx4 v[12:15], v8, s[{SRD_B}:{SRD_B+3}], s47 offen")
        self.srd(SRD_B, S_B2, 1024)
        a("v_lshlrev_b32 v7, 4, v6")
        a(f"buffer_load_dwordx4 v[16:19], v7, s[{SRD_B}:{SRD_B+3}], s46 offen")
        a(f"v_mul_u32_u24 v10, {self.PPITCH}, v5")
        a("v_lshl_add_u32 v10, v6, 5, v10")
        a(f"v_add_u32 v10, {self.PBASE}, v10")
        a("s_barrier")
        def reduce4(dst):
            for p in range(4):
                a(f"ds_read_b128 {vr(32+8*p,4)}, v10 offset:{p*self.PPART}")
                a(f"ds_read_b128 {vr(36+8*p,4)}, v10 offset:{p*self.PPART+16}")
            a("s_waitcnt lgkmcnt(0)")
            for e in range(8):
                a(f"v_add_f32 v{32+e}, v{32+e}, v{40+e}")
                a(f"v_add_f32 v{48+e}, v{48+e}, v{56+e}")
            for e in range(8):
                a(f"v_add_f32 v{dst+e}, v{32+e}, v{48+e}")
        reduce4(20)
        a("s_waitcnt vmcnt(0)")
        for e in range(4):
            a(f"v_lshlrev_b32 v28, 16, v{16+e}")
            a(f"v_and_b32 v29, 0xffff0000, v{16+e}")
            a(f"v_add_f32 v{20+2*e}, v{20+2*e}, v28")
            a(f"v_add_f32 v{21+2*e}, v{21+2*e}, v29")
        for e in range(8):
            a(f"v_mul_f32 v{32+e}, {f2u(-math.log2(math.e)):#x}, v{20+e}")
        for e in range(8):
            a(f"v_exp_f32 v{32+e}, v{32+e}")
        for e in range(8):
            a(f"v_add_f32 v{32+e}, 1.0, v{32+e}")
        for e in range(8):
            a(f"v_rcp_f32 v{32+e}, v{32+e}")
        for e in range(8):
            a(f"v_mul_f32 v{20+e}, v{20+e}, v{32+e}")
        a("s_barrier")
        self.stamp(12) if False else None
        a(f"s_and_b32 s44, s{S_W}, 1")
        a(f"s_lshr_b32 s45, s{S_W}, 1")
        a(f"s_lshl_b32 s46, s{S_T}, 1")
        a("s_add_u32 s46, s46, s44")
        a("s_lshl_b32 s46, s46, 15")
        a("s_lshl_b32 s48, s45, 13")
        a("s_add_u32 s46, s46, s48")
        a(f"s_add_u32 s46, s46, {WS_O}")
        OF, WF, ACC = 96, 48, 64
        for k in range(8):
            a(f"buffer_load_dwordx4 {vr(OF+4*k,4)}, v1, s[{SRD_WS}:{SRD_WS+3}], s46 offen offset:{(k&3)*1024} sc1")
            if k == 3: a("s_add_u32 s46, s46, 4096")
        a("v_lshrrev_b32 v6, 5, v0")
        a("v_bfe_u32 v7, v0, 2, 2")
        a("v_lshl_add_u32 v7, v6, 2, v7")
        a("v_lshlrev_b32 v7, 6, v7")
        a("v_bfe_u32 v9, v0, 4, 1")
        a("v_lshl_add_u32 v7, v9, 5, v7")
        a("v_and_b32 v9, 3, v0")
        a("v_lshl_add_u32 v7, v9, 3, v7")
        a("s_lshl_b32 s48, s45, 14")
        a("v_add_u32 v7, s48, v7")
        for r in range(32):
            a(f"v_mov_b32 v{ACC+r}, 0")
        a("v_and_b32 v9, 31, v0")
        a(f"v_mul_u32_u24 v9, {self.PPITCH}, v9")
        a("v_lshl_add_u32 v9, v6, 4, v9")
        a(f"s_mul_i32 s48, s45, {self.PPART}")
        a(f"s_mul_i32 s49, s44, {32*self.PPITCH}")
        a("s_add_u32 s48, s48, s49")
        a(f"s_add_u32 s48, s48, {self.PBASE}")
        a("v_add_u32 v9, s48, v9")
        for k in range(8):
            Wk = WF + 8 * (k & 1)
            for cb in range(2):
                a(f"ds_read_b64_tr_b16 {vr(Wk+4*cb,2)}, v7 offset:{k*2048+cb*1024}")
                a(f"ds_read_b64_tr_b16 {vr(Wk+4*cb+2,2)}, v7 offset:{k*2048+cb*1024+512}")
            a(f"s_waitcnt vmcnt({7-k}) lgkmcnt(0)")
            for cb in range(2):
                a(f"v_mfma_f32_32x32x16_bf16 {vr(ACC+16*cb,16)}, {vr(Wk+4*cb,4)}, {vr(OF+4*k,4)}, {vr(ACC+16*cb,16)}")
        a("s_nop 7")
        a("s_nop 7")
        self.part_write(lambda tb, cb: ACC + 16 * cb, (0,), None)
        a("s_waitcnt lgkmcnt(0)")
        a("s_barrier")
        reduce4(96)
        for e in range(4):
            a(f"v_lshlrev_b32 v28, 16, v{12+e}")
            a(f"v_and_b32 v29, 0xffff0000, v{12+e}")
            a(f"v_fma_f32 v{96+2*e}, v{96+2*e}, v{20+2*e}, v28")
            a(f"v_fma_f32 v{97+2*e}, v{97+2*e}, v{21+2*e}, v29")
        for e in range(4):
            a(f"v_cvt_pk_bf16_f32 v{104+e}, v{96+2*e}, v{97+2*e}")
        self.srd(SRD_B, S_OUT, 2048 * 1024)
        a(f"buffer_store_dwordx4 v[104:107], v8, s[{SRD_B}:{SRD_B+3}], s47 offen")
        self.stamp(12) if False else None

    def build(self):
        a = self.a
        self.entry()
        self.role_qkv()
        self.role_v()
        self.role_x()
        self.role_w3()
        self.role_ffn()
        self.role_down()
        self.attn_slow()
        self.s2_idle()
        self.role_attn()
        self.tail()
        a.label("L_fin")
        if 'hdbg' in self.dbg:
            a("s_memrealtime s[90:91]")
            a("s_memtime s[84:85]")
            a("s_waitcnt lgkmcnt(0)")
            a(f"s_cmp_lg_u32 s{S_W}, 0")
            a("s_cbranch_scc1 L_hd_skip")
            self.srd(SRD_B, S_DBG, 256)
            a("s_not_b32 s92, s88")
            a("v_mov_b32 v2, s92")
            a("v_mov_b32 v3, s90")
            a("s_sub_u32 s92, s90, s88")
            a("v_mov_b32 v4, s92")
            a("s_sub_u32 s93, s84, s86")
            a("v_mov_b32 v5, s93")
            a("v_mov_b32 v6, 0")
            a("s_mov_b64 exec, 1")
            a(f"buffer_atomic_umax v2, v6, s[{SRD_B}:{SRD_B+3}], 0 offen offset:8")
            a(f"buffer_atomic_umax v3, v6, s[{SRD_B}:{SRD_B+3}], 0 offen offset:12")
            a(f"buffer_atomic_umax v4, v6, s[{SRD_B}:{SRD_B+3}], 0 offen offset:16")
            a(f"buffer_atomic_umax v5, v6, s[{SRD_B}:{SRD_B+3}], 0 offen offset:20")
            a("s_mov_b64 exec, -1")
            a.label("L_hd_skip")
        self.dump_stamps()
        a.label("L_end")
        a("s_endpgm")
        return a

HEADER = """; Kernarg layout (88 bytes): A_x, A_wqkv, A_wo, B_x, B_w1, B_b1, B_w2, B_b2, d_out, d_debug, d_ws
; @launch grid=(256,1,1) block=(768,1,1) lds=163840
.amdgcn_target "amdgcn-amd-amdhsa--gfx950"
.text
.globl {kn}
.p2align 8
.type {kn},@function
{kn}:
"""
FOOTER = """.section .rodata,"a"
.p2align 6
.amdhsa_kernel {kn}
  .amdhsa_next_free_vgpr 168
  .amdhsa_next_free_sgpr 102
  .amdhsa_accum_offset 168
  .amdhsa_group_segment_fixed_size 0
  .amdhsa_kernarg_size 88
  .amdhsa_user_sgpr_count 2
  .amdhsa_user_sgpr_kernarg_segment_ptr 1
  .amdhsa_system_sgpr_workgroup_id_x 1
.end_amdhsa_kernel
"""
def emit(path, **kw):
    g = Gen(**kw)
    a = g.build()
    check_hazards(a.lines)
    open(path, "w").write(HEADER.format(kn=KN) + a.text() + FOOTER.format(kn=KN))

if __name__ == "__main__":
    out = sys.argv[1] if len(sys.argv) > 1 else "k.s"
    dbg = [x[6:] for x in sys.argv if x.startswith("--dbg=")]
    stop = [x[7:] for x in sys.argv if x.startswith("--stop=")]
    emit(out, stamps=("--stamps" in sys.argv), dbg=dbg[0] if dbg else "", stop_after=stop[0] if stop else "all")
```

```python
import sys, math
from asmlib import Asm, vr, sr, check_hazards

NAME = "recurrent_scan__mha_block__dense_activation_squared_relu__prompt"
KN = NAME + "_kernel"

WS_Q, WS_K, WS_V = 0, 2 << 20, 4 << 20
WS_H = 6 << 20
WS_O = 14 << 20
WS_F = 16 << 20
WS_DBG = WS_F + (64 << 10)
WS_SIZE = WS_DBG + (256 << 10)
if 'dumpf' in ' '.join(sys.argv): WS_SIZE = 32 << 20
FL1, FL2, FL3 = WS_F, WS_F + 4096, WS_F + 8192

LDS_RING = 131072
LDS_SCR = LDS_RING + 3 * 8192 + 7 * 1024
LDS_NONCE = LDS_RING + 3 * 8192 + 6 * 1024
LDS_XF = LDS_NONCE + 16
LDS_DROP = 0x30000

QSCALE = 0.25 * math.log2(math.e)

def f2u(x):
    import struct
    return struct.unpack("<I", struct.pack("<f", x))[0]

S_W = 3
S_X, S_WQKV, S_WO, S_W1, S_B1, S_W2, S_B2, S_OUT, S_DBG, S_WS = 4, 6, 8, 12, 14, 16, 18, 20, 22, 24
S_TG, S_J = 26, 27
SRD_WS, SRD_A, SRD_B = 28, 32, 36
S_NONCE = 40
S_ONES = 41
S_HEAD, S_QB, S_T, S_C = 96, 97, 98, 99

class Gen:
    def __init__(self, stop_after="all", stamps=False, dbg=""):
        self.dbg = dbg.split(",")
        self.a = Asm()
        self.stop = stop_after
        self.stamps = stamps
        self.uid = 0
    def lab(self, p):
        self.uid += 1
        return f"L_{p}_{self.uid}"

    def srd(self, dst, ptr, size):
        a = self.a
        a(f"s_mov_b32 s{dst}, s{ptr}")
        a(f"s_and_b32 s{dst+1}, s{ptr+1}, 0xffff")
        a(f"s_mov_b32 s{dst+2}, {size}")
        a(f"s_mov_b32 s{dst+3}, 0x20000")

    def stamp(self, slot):
        if not self.stamps: return
        a = self.a
        a("s_memtime s[90:91]" if 'cyc' in self.dbg and slot not in (14,) else "s_memrealtime s[90:91]")
        a("s_waitcnt lgkmcnt(0)")
        a(f"s_mov_b32 s{64+slot}, s90")

    def cstamp(self, slot):
        if not self.stamps or 'phclk' not in self.dbg: return
        a = self.a
        a("s_memtime s[90:91]")
        a("s_waitcnt lgkmcnt(0)")
        a(f"s_mov_b32 s{64+slot}, s90")

    def dump_stamps(self):
        if not self.stamps: return
        a = self.a
        a("s_lshl_b32 s92, s2, 4")
        a(f"s_add_u32 s92, s92, s{S_W}")
        a("s_lshl_b32 s92, s92, 6")
        a(f"s_add_u32 s92, s92, {WS_DBG}")
        a("v_mov_b32 v1, 0")
        a("s_memtime s[84:85]")
        self.stamp(14)
        a("s_mov_b32 s79, s88")
        a("s_getreg_b32 s76, hwreg(HW_REG_HW_ID)")
        a("s_sub_u32 s77, s84, s86")
        for i in range(16):
            a(f"v_mov_b32 v2, s{64+i}")
            a(f"buffer_store_dword v2, v1, s[{SRD_WS}:{SRD_WS+3}], s92 offen offset:{4*i}")
            a("s_nop 1")

    def entry(self):
        a = self.a
        if self.stamps or 'hdbg' in self.dbg:
            a("s_memrealtime s[88:89]")
            a("s_memtime s[86:87]")
        a(f"s_cmp_ge_u32 s2, 256")
        a(f"s_cbranch_scc1 L_end")
        a("s_load_dwordx16 s[4:19], s[0:1], 0")
        a("s_load_dwordx4 s[20:23], s[0:1], 64")
        a("s_load_dwordx2 s[24:25], s[0:1], 80")
        a("v_lshrrev_b32 v1, 6, v0")
        a("v_and_b32 v0, 63, v0")
        a("s_and_b32 s26, s2, 1")
        a(f"v_readfirstlane_b32 s{S_W}, v1")
        a("s_lshl_b32 s26, s26, 3")
        a("s_bfe_u32 s42, s2, 0x30003")
        a(f"s_add_u32 s{S_TG}, s26, s42")
        a("s_bfe_u32 s27, s2, 0x20001")
        a("s_lshl_b32 s27, s27, 2")
        a("s_lshr_b32 s42, s2, 6")
        a(f"s_add_u32 s{S_J}, s27, s42")
        a(f"s_mov_b32 s{S_ONES}, 0x3f803f80")
        if self.stamps:
            for i in range(16): a(f"s_mov_b32 s{64+i}, 0")
        a(f"s_cmp_ge_u32 s{S_W}, 8")
        a("s_cbranch_scc1 L_role_ffn")
        a(f"s_cmp_ge_u32 s{S_W}, 4")
        a("s_cbranch_scc1 L_role_x")
        a(f"s_cmp_eq_u32 s{S_W}, 3")
        a("s_cbranch_scc1 L_role_w3")

    ACC = 64
    XA, XB = 16, 32
    WA, WB = 48, 52
    CS = 56
    VXA = 4
    VWR = 8
    VWG = 9
    S_WOFF, S_WSTR, S_RING, S_RINGD, S_CNT = 42, 43, 44, 45, 46

    def gemm_setup_addrs(self):
        a = self.a
        a("v_and_b32 v10, 31, v0")
        a("v_lshrrev_b32 v11, 5, v0")
        a("v_bfe_u32 v12, v0, 1, 3")
        a("v_xor_b32 v12, v11, v12")
        a("v_lshlrev_b32 v12, 4, v12")
        a(f"v_lshl_or_b32 v{self.VXA}, v10, 7, v12")
        for m in range(1, 4):
            a(f"v_xor_b32 v{self.VXA+m}, {32*m}, v{self.VXA}")
        a("v_bfe_u32 v12, v0, 2, 2")
        a("v_lshl_add_u32 v12, v11, 3, v12")
        a("v_lshlrev_b32 v12, 6, v12")
        a("v_bfe_u32 v13, v0, 4, 1")
        a("v_lshl_add_u32 v12, v13, 5, v12")
        a("v_and_b32 v13, 3, v0")
        a(f"v_lshl_add_u32 v{self.VWR}, v13, 3, v12")
        a(f"v_add_u32 v{self.VWR}, s{self.S_RING}, v{self.VWR}")

    def gemm_wg_voffset(self, pitch):
        a = self.a
        a("v_lshrrev_b32 v12, 2, v0")
        a(f"s_mov_b32 s47, {pitch}")
        a("v_mul_lo_u32 v12, v12, s47")
        a("v_and_b32 v13, 3, v0")
        a(f"v_lshl_add_u32 v{self.VWG}, v13, 4, v12")

    def w_dma(self, slot, ring_reg):
        a = self.a
        a(f"s_add_u32 m0, s{ring_reg}, {slot*1024}")
        a(f"s_add_u32 s{self.S_WOFF}, s{self.S_WOFF}, s{self.S_WSTR}")
        a(f"buffer_load_dwordx4 v{self.VWG}, s[{SRD_A}:{SRD_A+3}], s{self.S_WOFF} offen lds")

    def frag_reads(self, ksn, X, W, base_ks):
        a = self.a
        rel = ksn - base_ks
        slot = ksn & 7
        m = ksn & 3
        kc = rel >> 2 if base_ks % 8 == 0 else None
        return rel, slot, m, kc

    VF = 144
    S_NEED = 56

    def xflag_check(self, L):
        a = self.a
        a(f"v_readfirstlane_b32 s57, v149")
        return L

    def gemm_loop(self, swapped, s1, tag):
        a = self.a
        L = self.lab("gl_" + tag)
        a(f"s_mov_b32 s{self.S_CNT}, 0")
        a(f"s_mov_b32 s{self.S_RINGD}, s{self.S_RING}")
        if s1: a(f"s_mov_b32 s{self.S_NEED}, 1")
        a.label(L)
        if 'loopdet' in self.dbg:
            a("s_memtime s[90:91]")
            a("s_waitcnt lgkmcnt(0)")
            for t in range(4):
                a(f"s_cmp_eq_u32 s{self.S_CNT}, {t}")
                sl = (0 if not s1 else 4) + t
                a(f"s_cselect_b32 s{64+sl}, s90, s{64+sl}")
        a(f"s_cmp_eq_u32 s{self.S_CNT}, 3")
        a(f"s_cselect_b32 s{self.S_RINGD}, {LDS_DROP}, s{self.S_RINGD}")
        for i in range(8):
            X, W = (self.XA, self.WA) if i % 2 == 0 else (self.XB, self.WB)
            Xn, Wn = (self.XB, self.WB) if i % 2 == 0 else (self.XA, self.WA)
            def mf(tb):
                acc = self.ACC + 16 * tb
                if swapped:
                    a(f"v_mfma_f32_32x32x16_bf16 {vr(acc,16)}, {vr(X+4*tb,4)}, {vr(W,4)}, {vr(acc,16)}")
                else:
                    a(f"v_mfma_f32_32x32x16_bf16 {vr(acc,16)}, {vr(W,4)}, {vr(X+4*tb,4)}, {vr(acc,16)}")
            chk = s1 and (i & 3) == 3
            a("s_waitcnt lgkmcnt(0)")
            mf(0)
            if chk:
                a(f"v_min3_u32 v149, v{self.VF}, v{self.VF+1}, v{self.VF+2}")
                a(f"s_add_u32 s{self.S_NEED}, s{self.S_NEED}, 1")
                a(f"v_min_u32 v149, v149, v{self.VF+3}")
                a(f"s_min_u32 s{self.S_NEED}, s{self.S_NEED}, 8")
            self.w_dma(i, self.S_RINGD)
            if chk: a("v_readfirstlane_b32 s57, v149")
            a("s_waitcnt vmcnt(7)")
            nslot = (i + 1) & 7
            a(f"ds_read_b64_tr_b16 {vr(Wn,2)}, v{self.VWR} offset:{nslot*1024}")
            a(f"ds_read_b64_tr_b16 {vr(Wn+2,2)}, v{self.VWR} offset:{nslot*1024+256}")
            if chk:
                Lok, Lsp = self.lab("xok"), self.lab("xsp")
                a(f"s_cmp_ge_u32 s57, s{self.S_NEED}")
                a(f"s_cbranch_scc1 {Lok}")
                a("s_mov_b32 s58, 0")
                a.label(Lsp)
                a(f"ds_read_b128 {vr(self.VF,4)}, v148")
                a("s_add_u32 s58, s58, 1")
                a("s_waitcnt lgkmcnt(0)")
                a(f"v_min3_u32 v149, v{self.VF}, v{self.VF+1}, v{self.VF+2}")
                a(f"v_min_u32 v149, v149, v{self.VF+3}")
                a("s_nop 0")
                a("v_readfirstlane_b32 s57, v149")
                a("s_cmp_ge_u32 s58, 0x100000")
                a(f"s_cbranch_scc1 {Lok}")
                a(f"s_cmp_lt_u32 s57, s{self.S_NEED}")
                a(f"s_cbranch_scc1 {Lsp}")
                a.label(Lok)
            mf(1)
            n = i + 1
            for tb in range(4):
                a(f"ds_read_b128 {vr(Xn+4*tb,4)}, v{self.VXA+(n&3)} offset:{(n>>2)*16384 + tb*4096}")
            if s1 and (i & 3) == 2:
                a(f"ds_read_b128 {vr(self.VF,4)}, v148")
            mf(2)
            if 'nocs' not in self.dbg:
                a(f"v_mfma_f32_16x16x32_bf16 {vr(self.CS4,4)}, {vr(W,4)}, {vr(self.PAR,4)}, {vr(self.CS4,4)}")
            mf(3)
        for m in range(4):
            a(f"v_add_u32 v{self.VXA+m}, 0x8000, v{self.VXA+m}")
        a(f"s_add_u32 s{self.S_CNT}, s{self.S_CNT}, 1")
        a(f"s_cmp_lt_u32 s{self.S_CNT}, 4")
        a(f"s_cbranch_scc1 {L}")

    def wait_xflags(self, regs, need, vaddr, vt):
        a = self.a
        Lsp, Lok = self.lab("wsp"), self.lab("wok")
        a("s_mov_b32 s58, 0")
        a.label(Lsp)
        n = len(regs)
        a(f"ds_read_b{32*n} {vr(regs[0], n)}, v{vaddr}")
        a("s_add_u32 s58, s58, 1")
        a("s_waitcnt lgkmcnt(0)")
        if n == 4:
            a(f"v_min3_u32 v{vt}, v{regs[0]}, v{regs[1]}, v{regs[2]}")
            a(f"v_min_u32 v{vt}, v{vt}, v{regs[3]}")
        else:
            a(f"v_min_u32 v{vt}, v{regs[0]}, v{regs[1]}")
        a("s_nop 0")
        a(f"v_readfirstlane_b32 s57, v{vt}")
        a("s_cmp_ge_u32 s58, 0x100000")
        a(f"s_cbranch_scc1 {Lok}")
        a(f"s_cmp_lt_u32 s57, {need}")
        a(f"s_cbranch_scc1 {Lsp}")
        a.label(Lok)

    CS4 = 56
    PAR = 60

    def cs_acc(self, W, q0, q1):
        a = self.a
        for q in range(q0, q1):
            t = 58 + 2 * (q & 1)
            a(f"v_lshlrev_b32 v{t}, 16, v{W+q}")
            a(f"v_and_b32 v{t+1}, 0xffff0000, v{W+q}")
            a(f"v_add_f32 v{self.CS}, v{t}, v{self.CS}")
            a(f"v_add_f32 v{self.CS+1}, v{t+1}, v{self.CS+1}")

    def gemm_first_frags(self):
        a = self.a
        a(f"ds_read_b64_tr_b16 {vr(self.WA,2)}, v{self.VWR} offset:0")
        a(f"ds_read_b64_tr_b16 {vr(self.WA+2,2)}, v{self.VWR} offset:256")
        for tb in range(4):
            a(f"ds_read_b128 {vr(self.XA+4*tb,4)}, v{self.VXA} offset:{tb*4096}")

    def zero_acc(self):
        a = self.a
        for i in range(64):
            a(f"v_mov_b32 v{self.ACC+i}, 0")

    def cs16_from_cs4(self):
        a = self.a
        a("v_lshrrev_b32 v11, 5, v0")
        a("v_lshlrev_b32 v11, 6, v11")
        a("s_waitcnt lgkmcnt(0)")
        for r in range(16):
            b, jj = r >> 2, r & 3
            a(f"ds_bpermute_b32 v{16+r}, v11, v{self.CS4+jj} offset:{128*(b&1)+4*(b>>1)}")

    def cs_total(self):
        a = self.a
        a(f"v_add_f32 v{self.CS}, v{self.CS}, v{self.CS+1}")
        a("s_nop 0")
        a(f"v_mov_b32 v{self.CS+1}, v{self.CS}")
        a("s_nop 1")
        a(f"v_permlane32_swap_b32 v{self.CS}, v{self.CS+1}")
        a("s_nop 1")
        a(f"v_add_f32 v{self.CS}, v{self.CS}, v{self.CS+1}")

    def read_nonce(self, vtmp):
        a = self.a
        a(f"v_mov_b32 v{vtmp}, {LDS_NONCE}")
        a(f"ds_read_b32 v{vtmp}, v{vtmp}")

    def publish_flag(self, s_off, vtmp):
        a = self.a
        a("s_waitcnt vmcnt(0)")
        a(f"v_mov_b32 v{vtmp}, s{S_NONCE}")
        a(f"v_mov_b32 v{vtmp+1}, 0")
        a("s_mov_b64 exec, 1")
        a(f"buffer_store_dword v{vtmp}, v{vtmp+1}, s[{SRD_WS}:{SRD_WS+3}], s{s_off} offen sc1")
        a("s_mov_b64 exec, -1")

    def tok_stats_read(self):
        a = self.a
        a("v_and_b32 v10, 31, v0")
        a(f"v_lshlrev_b32 v10, 2, v10")
        a(f"v_add_u32 v10, {LDS_SCR}, v10")
        for tb in range(4):
            a(f"ds_read_b32 v{32+2*tb}, v10 offset:{tb*128}")
            a(f"ds_read_b32 v{33+2*tb}, v10 offset:{512+tb*128}")
        self.read_nonce(40)
        a("v_lshrrev_b32 v11, 5, v0")
        a("v_lshlrev_b32 v11, 4, v11")
        for r in range(16):
            a(f"ds_bpermute_b32 v{16+r}, v11, v{self.CS} offset:{(8*(r>>2)+(r&3))*4}")

    def role_qkv(self):
        a = self.a
        a(f"s_lshl_b32 s{self.S_RING}, s{S_W}, 13")
        a(f"s_add_u32 s{self.S_RING}, s{self.S_RING}, {LDS_RING}")
        a(f"s_mul_i32 s53, s{S_J}, 3")
        a(f"s_add_u32 s53, s53, s{S_W}")
        self.gemm_wg_voffset(3072)
        a(f"s_lshl_b32 s{self.S_WOFF}, s53, 6")
        a(f"s_mov_b32 s{self.S_WSTR}, {16*3072 if 'wq0' not in self.dbg else 0}")
        a(f"s_sub_u32 s{self.S_WOFF}, s{self.S_WOFF}, s{self.S_WSTR}")
        a("s_waitcnt lgkmcnt(0)")
        self.srd(SRD_A, S_WQKV, 512 * 3072)
        n0 = 8 if 'w8first' in self.dbg else 2
        for sl in range(n0):
            self.w_dma(sl, self.S_RING)
        a("s_lshr_b32 s54, s53, 4")
        a("s_and_b32 s55, s53, 15")
        self.srd(SRD_WS, S_WS, WS_SIZE)
        self.gemm_setup_addrs()
        self.zero_acc()
        for sl in range(n0, 8):
            self.w_dma(sl, self.S_RING)
        self.cs4_init()
        a(f"v_mov_b32 v148, {LDS_XF}")
        self.stamp(0)
        a("s_barrier")
        self.wait_xflags([144, 145, 146, 147], 1, 148, 149)
        a("s_waitcnt vmcnt(7)")
        self.stamp(1)
        self.gemm_first_frags()
        a("s_cmp_eq_u32 s54, 2")
        a("s_cbranch_scc1 L_role_v")
        self.gemm_loop(False, True, "qk")
        self.stamp(2)
        a("s_barrier")
        a("v_and_b32 v10, 31, v0")
        a(f"v_lshlrev_b32 v10, 2, v10")
        a(f"v_add_u32 v10, {LDS_SCR}, v10")
        for tb in range(4):
            a(f"ds_read_b32 v{32+2*tb}, v10 offset:{tb*128}")
            a(f"ds_read_b32 v{33+2*tb}, v10 offset:{512+tb*128}")
        self.read_nonce(40)
        a("s_nop 3")
        self.cs16_from_cs4()
        a("s_waitcnt lgkmcnt(0)")
        a(f"v_readfirstlane_b32 s{S_NONCE}, v40")
        a("s_cmp_eq_u32 s54, 0")
        a(f"s_cselect_b32 s47, {f2u(QSCALE)}, 1.0")
        for tb in range(4):
            a(f"v_mul_f32 v{32+2*tb}, s47, v{32+2*tb}")
            a(f"v_mul_f32 v{33+2*tb}, s47, v{33+2*tb}")
        a("s_lshl_b32 s48, s54, 21")
        a("s_lshl_b32 s49, s55, 17")
        a("s_add_u32 s48, s48, s49")
        a(f"s_lshl_b32 s49, s{S_TG}, 12")
        a("s_add_u32 s48, s48, s49")
        a("v_lshlrev_b32 v10, 4, v0")
        self.tok_epilogue_store(ffn=False)
        a("s_barrier")
        a("s_lshl_b32 s48, s55, 8")
        a("s_lshl_b32 s49, s54, 6")
        a("s_add_u32 s48, s48, s49")
        a(f"s_lshl_b32 s49, s{S_TG}, 2")
        a("s_add_u32 s48, s48, s49")
        a(f"s_add_u32 s48, s48, {FL1}")
        self.publish_flag(48, 12)
        self.stamp(3)
        a("s_branch L_s2_idle")

    def tok_epilogue_store(self, ffn):
        a = self.a
        hb_stride = 1024 if ffn else 65536
        tb_stride = 112 * 1024 if ffn else 1024
        T = 44
        for tb in range(4):
            st = 32 + 2 * tb
            for hb in range(2):
                P = 48 + 4 * hb
                for p in range(4):
                    r = 8 * hb + 2 * p
                    acc = self.ACC + 16 * tb + r
                    w = T + 2 * (p & 1)
                    for e in range(2):
                        if ffn: a(f"v_fma_f32 v{w+e}, v{16+r+e}, v{st+1}, v{128+r+e}")
                        else:   a(f"v_mul_f32 v{w+e}, v{16+r+e}, v{st+1}")
                    for e in range(2):
                        a(f"v_fma_f32 v{acc+e}, v{acc+e}, v{st}, v{w+e}")
                    if ffn:
                        for e in range(2):
                            a(f"v_max_f32 v{w+e}, 0, v{acc+e}")
                        for e in range(2):
                            a(f"v_mul_f32 v{acc+e}, v{w+e}, v{w+e}")
                    a(f"v_cvt_pk_bf16_f32 v{P+p}, v{acc}, v{acc+1}")
                off = hb * hb_stride + tb * tb_stride
                a(f"s_add_u32 s49, s48, {off}")
                a(f"buffer_store_dwordx4 {vr(P,4)}, v10, s[{SRD_WS}:{SRD_WS+3}], s49 offen sc1")

    def role_v(self):
        a = self.a
        a.label("L_role_v")
        self.gemm_loop(True, True, "v")
        self.stamp(2)
        a("s_barrier")
        self.read_nonce(40)
        a("v_bfe_u32 v12, v0, 2, 2")
        a("v_bfe_u32 v13, v0, 4, 1")
        a("v_lshl_add_u32 v12, v12, 4, v13")
        a("v_lshlrev_b32 v12, 2, v12")
        a("s_nop 3")
        a("s_waitcnt lgkmcnt(0)")
        for jj in range(4):
            a(f"ds_bpermute_b32 v{16+jj}, v12, v{self.CS4+jj}")
        a("v_and_b32 v13, 3, v0")
        a("s_waitcnt lgkmcnt(0)")
        for jj in range(1, 4):
            a(f"v_cmp_eq_u32 vcc, {jj}, v13")
            a("s_nop 1")
            a(f"v_cndmask_b32 v16, v16, v{16+jj}, vcc")
        a(f"v_mov_b32 v{self.CS}, v16")
        a("v_lshrrev_b32 v11, 5, v0")
        a("v_lshlrev_b32 v11, 4, v11")
        a(f"v_add_u32 v11, {LDS_SCR}, v11")
        a("v_bfe_u32 v12, v0, 4, 1")
        a("v_lshlrev_b32 v12, 16, v12")
        a("v_lshrrev_b32 v13, 5, v0")
        a("v_lshl_add_u32 v12, v13, 8, v12")
        a("v_and_b32 v13, 15, v0")
        a("v_lshl_add_u32 v10, v13, 4, v12")
        a("s_lshl_b32 s48, s55, 17")
        a(f"s_lshl_b32 s49, s{S_TG}, 12")
        a("s_add_u32 s48, s48, s49")
        a(f"s_add_u32 s48, s48, {WS_V}")
        a("s_waitcnt lgkmcnt(0)")
        a(f"v_readfirstlane_b32 s{S_NONCE}, v40")
        for tb in range(4):
            for b in range(4):
                a(f"ds_read_b128 {vr(16+4*b,4)}, v11 offset:{(32*tb+8*b)*4}")
                a(f"ds_read_b128 {vr(32+4*b,4)}, v11 offset:{512+(32*tb+8*b)*4}")
            a("s_waitcnt lgkmcnt(0)")
            for t in range(2):
                P = 48 + 4 * t
                for p in range(4):
                    r = 8 * t + 2 * p
                    acc = self.ACC + 16 * tb + r
                    w = 58 + 2 * (p & 1)
                    for e in range(2):
                        a(f"v_mul_f32 v{w+e}, v{32+r+e}, v{self.CS}")
                    for e in range(2):
                        a(f"v_fma_f32 v{acc+e}, v{acc+e}, v{16+r+e}, v{w+e}")
                    a(f"v_cvt_pk_bf16_f32 v{P+p}, v{acc}, v{acc+1}")
                a(f"s_add_u32 s49, s48, {tb*1024 + t*512}")
                a(f"buffer_store_dwordx4 {vr(P,4)}, v10, s[{SRD_WS}:{SRD_WS+3}], s49 offen sc1")
        a("s_barrier")
        a("s_lshl_b32 s48, s55, 8")
        a(f"s_lshl_b32 s49, s{S_TG}, 2")
        a("s_add_u32 s48, s48, s49")
        a(f"s_add_u32 s48, s48, {FL1 + 128}")
        self.publish_flag(48, 12)
        self.stamp(3)
        a("s_branch L_s2_idle")

    def role_x(self):
        a = self.a
        a.label("L_role_x")
        a("v_lshrrev_b32 v1, 3, v0")
        a("v_lshrrev_b32 v2, 4, v0")
        a("v_and_b32 v3, 7, v0")
        a("v_xor_b32 v3, v2, v3")
        a("v_lshlrev_b32 v3, 4, v3")
        a("v_lshl_or_b32 v2, v1, 10, v3")
        a("v_xor_b32 v3, 64, v2")
        a(f"s_sub_u32 s42, s{S_W}, 4")
        a(f"s_lshl_b32 s43, s{S_TG}, 17")
        a("s_lshl_b32 s44, s42, 15")
        a("s_add_u32 s43, s43, s44")
        a("s_lshl_b32 s44, s42, 12")
        a("s_waitcnt lgkmcnt(0)")
        self.srd(SRD_A, S_X, 2048 * 1024)
        D = self.XLOOK
        def chunk(kc):
            for rg in range(4):
                a(f"s_add_u32 m0, s44, {kc*16384 + rg*1024}")
                a(f"s_add_u32 s45, s43, {rg*8192 + kc*128}")
                a(f"buffer_load_dwordx4 v{2+(rg&1)}, s[{SRD_A}:{SRD_A+3}], s45 offen lds")
        for kc in range(D): chunk(kc)
        self.srd(SRD_WS, S_WS, WS_SIZE)
        a("s_lshl_b32 s46, s42, 2")
        a(f"s_add_u32 s46, s46, {LDS_XF}")
        a("v_mov_b32 v4, s46")
        a("v_mov_b32 v5, 0")
        a("ds_write_b32 v4, v5")
        a("s_waitcnt lgkmcnt(0)")
        self.stamp(0)
        a("s_barrier")
        for kc in range(8):
            a(f"v_mov_b32 v5, {kc+1}")
            if 'nox' not in self.dbg or kc == 0: a(f"s_waitcnt vmcnt({4*min(D-1, 7-kc)})")
            a("ds_write_b32 v4, v5")
            if kc == 0: self.stamp(1)
            if 's1det' in self.dbg: self.stamp(kc + 4)
            if kc + D < 8 and 'nox' not in self.dbg: chunk(kc + D)
        a("s_waitcnt lgkmcnt(0)")
        a("s_barrier")
        self.read_nonce(40)
        a("s_waitcnt lgkmcnt(0)")
        a(f"v_readfirstlane_b32 s{S_NONCE}, v40")
        a("s_barrier")
        self.stamp(3)
        a("s_branch L_s2_idle")

    @property
    def XLOOK(self):
        for d in self.dbg:
            if d.startswith('xl'): return int(d[2:])
        return 3
    WLOOK = 4

    def stats_setup(self, tb0):
        a = self.a
        a("v_and_b32 v10, 31, v0")
        a("v_lshrrev_b32 v11, 5, v0")
        a("v_bfe_u32 v12, v0, 1, 3")
        a("v_xor_b32 v12, v11, v12")
        a("v_lshlrev_b32 v12, 4, v12")
        a("v_lshl_or_b32 v152, v10, 7, v12")
        a(f"v_add_u32 v152, {tb0*4096}, v152")
        for m in range(1, 4):
            a(f"v_xor_b32 v{152+m}, {32*m}, v152")
        for i in range(8):
            a(f"v_mov_b32 v{156+i}, 0")

    def stats_chunk(self, kc, tb0):
        a = self.a
        a(f"v_mov_b32 v12, {LDS_XF + 4*tb0}")
        self.wait_xflags([10, 11], kc + 1, 12, 13)
        if kc == 4:
            for m in range(4): a(f"v_add_u32 v{152+m}, 0x10000, v{152+m}")
        for m in range(4):
            for t in range(2):
                a(f"ds_read_b128 {vr(16+8*m+4*t,4)}, v{152+m} offset:{(kc&3)*16384 + t*4096}")
        for m in range(4):
            for t in range(2):
                a(f"s_waitcnt lgkmcnt({7-2*m-t})")
                F = 16 + 8*m + 4*t
                for q in range(4 if 'nostats' not in self.dbg else 0):
                    a(f"v_dot2c_f32_bf16 v{156+4*t+(q&1)}, s{S_ONES}, v{F+q}")
                    a(f"v_dot2c_f32_bf16 v{158+4*t+(q&1)}, v{F+q}, v{F+q}")

    def stats_final(self, tb0):
        a = self.a
        a("s_nop 2")
        for t in range(2):
            a(f"v_add_f32 v{156+4*t}, v{156+4*t}, v{157+4*t}")
            a(f"v_add_f32 v{158+4*t}, v{158+4*t}, v{159+4*t}")
        a("s_nop 0")
        for t in range(2):
            a(f"v_mov_b32 v{157+4*t}, v{156+4*t}")
            a(f"v_mov_b32 v{159+4*t}, v{158+4*t}")
        a("s_nop 1")
        for t in range(2):
            a(f"v_permlane32_swap_b32 v{156+4*t}, v{157+4*t}")
            a(f"v_permlane32_swap_b32 v{158+4*t}, v{159+4*t}")
        a("s_nop 1")
        a("v_and_b32 v12, 31, v0")
        a("v_lshlrev_b32 v12, 2, v12")
        a(f"v_add_u32 v12, {LDS_SCR + tb0*128}, v12")
        for t in range(2):
            S, Q = 156+4*t, 158+4*t
            a(f"v_add_f32 v{S}, v{S}, v{S+1}")
            a(f"v_add_f32 v{Q}, v{Q}, v{Q+1}")
            a(f"v_mul_f32 v{S}, {f2u(1.0/512)}, v{S}")
            a(f"v_mul_f32 v{Q}, {f2u(1.0/512)}, v{Q}")
            a(f"v_fma_f32 v{Q}, -v{S}, v{S}, v{Q}")
            a(f"v_max_f32 v{Q}, 0, v{Q}")
            a(f"v_add_f32 v{Q}, {f2u(1e-5)}, v{Q}")
            a(f"v_rsq_f32 v{Q}, v{Q}")
            a("s_nop 0")
            a(f"v_mul_f32 v{S}, v{S}, v{Q}")
            a(f"v_sub_f32 v{S}, 0, v{S}")
            a(f"ds_write_b32 v12, v{Q} offset:{t*128}")
            a(f"ds_write_b32 v12, v{S} offset:{512+t*128}")
        a("s_waitcnt lgkmcnt(0)")

    def role_w3(self):
        a = self.a
        a.label("L_role_w3")
        self.stats_setup(0)
        a("s_waitcnt lgkmcnt(0)")
        self.srd(SRD_WS, S_WS, WS_SIZE)
        self.srd(SRD_A, S_DBG, 256)
        a("v_mov_b32 v2, 0")
        a("s_cmp_lg_u32 s2, 0")
        a("s_cbranch_scc1 L_nc_np")
        a("s_memrealtime s[60:61]")
        a("s_waitcnt lgkmcnt(0)")
        a("s_or_b32 s60, s60, 1")
        a("v_mov_b32 v1, s60")
        a("s_mov_b64 exec, 1")
        a(f"buffer_store_dword v1, v2, s[{SRD_A}:{SRD_A+3}], 0 offen sc1")
        a("s_mov_b64 exec, -1")
        a.label("L_nc_np")
        a("s_barrier")
        for kc in range(8):
            if kc == 3:
                a(f"buffer_load_dword v1, v2, s[{SRD_A}:{SRD_A+3}], 0 offen sc1")
            if kc == 7:
                a("s_mov_b32 s62, 0")
                a.label("L_nc_chk")
                a("s_waitcnt vmcnt(0)")
                a(f"v_readfirstlane_b32 s{S_NONCE}, v1")
                a(f"s_cmp_lg_u32 s{S_NONCE}, 0")
                a("s_cbranch_scc1 L_nc_got")
                a("s_add_u32 s62, s62, 1")
                a("s_cmp_ge_u32 s62, 8192")
                a("s_cbranch_scc1 L_nc_got")
                a(f"buffer_load_dword v1, v2, s[{SRD_A}:{SRD_A+3}], 0 offen sc1")
                a("s_branch L_nc_chk")
                a.label("L_nc_got")
                a(f"v_mov_b32 v1, s{S_NONCE}")
                a(f"v_mov_b32 v2, {LDS_NONCE}")
                a("ds_write_b32 v2, v1")
            self.stats_chunk(kc, 0)
            if 's1det' in self.dbg: self.stamp(kc + 4)
        self.stats_final(0)
        self.stamp(2)
        a("s_barrier")
        a("s_barrier")
        a("s_branch L_s2_idle")

    def ffn_setup(self):
        a = self.a
        a(f"s_sub_u32 s50, s{S_W}, 8")
        a(f"s_lshl_b32 s{self.S_RING}, s50, 13")
        a(f"s_add_u32 s{self.S_RING}, s{self.S_RING}, {LDS_RING}")
        self.gemm_wg_voffset(3584)
        a(f"s_lshl_b32 s51, s{S_J}, 2")
        a("s_add_u32 s51, s51, s50")
        a(f"s_lshl_b32 s{self.S_WOFF}, s51, 6")
        a(f"s_mov_b32 s{self.S_WSTR}, {16*3584 if 'wstr0' not in self.dbg else 0}")
        a(f"s_sub_u32 s{self.S_WOFF}, s{self.S_WOFF}, s{self.S_WSTR}")
        self.srd(SRD_A, S_W1, 512 * 3584)
        self.srd(SRD_B, S_B1, 1792 * 2)
        a("v_lshrrev_b32 v12, 5, v0")
        a("v_lshlrev_b32 v12, 3, v12")
        a("s_lshl_b32 s52, s51, 6")
        for b in range(4):
            a(f"buffer_load_dwordx2 {vr(144+2*b,2)}, v12, s[{SRD_B}:{SRD_B+3}], s52 offen offset:{16*b}")
        self.gemm_setup_addrs()
        self.zero_acc()
        self.cs4_init()

    def cs4_init(self):
        a = self.a
        a("v_lshrrev_b32 v12, 4, v0")
        a("v_xor_b32 v12, v12, v0")
        a("v_and_b32 v12, 1, v12")
        a("v_cmp_eq_u32 vcc, 0, v12")
        a(f"v_mov_b32 v13, s{S_ONES}")
        for i in range(4):
            a(f"v_mov_b32 v{self.CS4+i}, 0")
        for i in range(4):
            a(f"v_cndmask_b32 v{self.PAR+i}, 0, v13, vcc")

    def role_ffn(self):
        a = self.a
        a.label("L_role_ffn")
        if 'nopf' not in self.dbg:
            a(f"s_cmp_lg_u32 s{S_W}, 9")
            a("s_cbranch_scc1 L_nopf")
            a("s_getpc_b64 s[46:47]")
            a.label("L_pc")
            a(f"s_sub_u32 s46, s46, L_pc-{KN}")
            a("s_subb_u32 s47, s47, 0")
            a("s_lshr_b32 s48, s2, 3")
            a("v_lshlrev_b32 v12, 4, v0")
            for k in range(2):
                a(f"s_cmp_ge_u32 s48, (L_code_end-{KN}+1023)/1024")
                a("s_cbranch_scc1 L_nopf")
                a("s_lshl_b32 s49, s48, 10")
                a("v_add_u32 v13, s49, v12")
                a(f"global_load_dwordx4 {vr(160+4*k,4)}, v13, s[46:47]")
                a("s_add_u32 s48, s48, 32")
            a.label("L_nopf")
        a("s_waitcnt lgkmcnt(0)")
        if 'tq' in self.dbg:
            a(f"s_cmp_eq_u32 s{S_W}, 10")
            a("s_cbranch_scc0 L_tch2")
            self.srd(SRD_B, S_WQKV, 512 * 3072)
            a("s_bfe_u32 s46, s2, 0x30003")
            a(f"s_mul_i32 s46, s46, {64*3072}")
            a(f"s_mul_i32 s47, s{S_J}, 192")
            a("s_and_b32 s47, s47, 0xffffff80")
            a("s_add_u32 s46, s46, s47")
            a("v_lshrrev_b32 v12, 1, v0")
            a("v_mul_u32_u24 v12, 3072, v12")
            a("v_and_b32 v13, 1, v0")
            a("v_lshl_add_u32 v12, v13, 7, v12")
            for i in range(2):
                a(f"buffer_load_dword v{160+i}, v12, s[{SRD_B}:{SRD_B+3}], s46 offen")
                a(f"s_add_u32 s46, s46, {32*3072}")
            a.label("L_tch2")
        self.srd(SRD_WS, S_WS, WS_SIZE)
        self.ffn_setup()
        a("s_barrier")
        tw = [d for d in self.dbg if d.startswith('tw')] or ['tw6']
        if tw[0] != 'tw0':
            a(f"s_cmp_eq_u32 s{S_W}, 10")
            a("s_cbranch_scc0 L_tw_skip")
            a(f"v_mov_b32 v166, {LDS_XF}")
            self.wait_xflags([160, 161, 162, 163], int(tw[0][2:]), 166, 167)
            self.srd(SRD_B, S_W1, 512 * 3584)
            a("s_bfe_u32 s46, s2, 0x30003")
            a(f"s_mul_i32 s46, s46, {64*3584}")
            a(f"s_lshl_b32 s47, s{S_J}, 8")
            a("s_add_u32 s46, s46, s47")
            a("v_lshrrev_b32 v12, 1, v0")
            a("v_mul_u32_u24 v12, 3584, v12")
            a("v_and_b32 v13, 1, v0")
            a("v_lshl_add_u32 v12, v13, 7, v12")
            for i in range(2):
                a(f"buffer_load_dword v{164+i}, v12, s[{SRD_B}:{SRD_B+3}], s46 offen")
                a(f"s_add_u32 s46, s46, {32*3584}")
            a.label("L_tw_skip")
        a(f"s_cmp_lg_u32 s{S_W}, 11")
        a("s_cbranch_scc1 L_ffn_b8")
        self.stats_setup(2)
        for kc in range(8):
            self.stats_chunk(kc, 2)
        self.stats_final(2)
        a.label("L_ffn_b8")
        a("s_barrier")
        a(f"s_cmp_ge_u32 s{S_J}, 14")
        a("s_cbranch_scc1 L_ffn_skip")
        for sl in range(6):
            self.w_dma(sl, self.S_RING)
        a("v_and_b32 v10, 31, v0")
        a(f"v_lshlrev_b32 v10, 2, v10")
        a(f"v_add_u32 v10, {LDS_SCR}, v10")
        for tb in range(4):
            a(f"ds_read_b32 v{152+2*tb}, v10 offset:{tb*128}")
            a(f"ds_read_b32 v{153+2*tb}, v10 offset:{512+tb*128}")
        self.read_nonce(40)
        a("s_waitcnt vmcnt(6) lgkmcnt(0)")
        a(f"v_readfirstlane_b32 s{S_NONCE}, v40")
        for b in range(4):
            a(f"v_lshlrev_b32 v{128+4*b}, 16, v{144+2*b}")
            a(f"v_and_b32 v{129+4*b}, 0xffff0000, v{144+2*b}")
            a(f"v_lshlrev_b32 v{130+4*b}, 16, v{145+2*b}")
            a(f"v_and_b32 v{131+4*b}, 0xffff0000, v{145+2*b}")
        a("s_barrier")
        if 'nos2prio' not in self.dbg: a("s_setprio 3")
        for sl in range(6, 8):
            self.w_dma(sl, self.S_RING)
        self.stamp(4)
        a("s_waitcnt vmcnt(7)")
        self.gemm_first_frags()
        self.gemm_loop(False, False, "ffn")
        self.stamp(5)
        a("s_barrier")
        if 'nogprio' not in self.dbg: a("s_setprio 3")
        a("s_nop 7")
        self.cs16_from_cs4()
        for tb in range(4):
            a(f"v_mov_b32 v{32+2*tb}, v{152+2*tb}")
            a(f"v_mov_b32 v{33+2*tb}, v{153+2*tb}")
        a(f"s_mul_i32 s48, s{S_TG}, {4*112*1024}")
        a("s_lshl_b32 s49, s51, 11")
        a("s_add_u32 s48, s48, s49")
        a(f"s_add_u32 s48, s48, {WS_H}")
        a("v_lshlrev_b32 v10, 4, v0")
        a("s_waitcnt lgkmcnt(0)")
        if 'dumpf' in self.dbg:
            a("s_lshl_b32 s92, s2, 2")
            a(f"s_add_u32 s92, s92, s50")
            a("s_mul_i32 s92, s92, 16384")
            a(f"s_add_u32 s92, s92, {20<<20}")
            a("v_lshlrev_b32 v12, 2, v0")
            regs = list(range(16,32)) + list(range(32,40)) + list(range(128,144)) + list(range(64,80))
            for n, r in enumerate(regs):
                a(f"buffer_store_dword v{r}, v12, s[{SRD_WS}:{SRD_WS+3}], s92 offen offset:{(n%16)*256}")
                if n % 16 == 15: a("s_add_u32 s92, s92, 4096")
        self.tok_epilogue_store(ffn=True)
        if self.stop != "s2": a("s_barrier")
        a(f"s_lshl_b32 s48, s{S_TG}, 8")
        a("s_lshl_b32 s49, s51, 2")
        a("s_add_u32 s48, s48, s49")
        a(f"s_add_u32 s48, s48, {FL2}")
        self.publish_flag(48, 12)
        self.stamp(6)
        a("s_branch L_s3_gemm")
        a.label("L_ffn_skip")
        self.read_nonce(40)
        a("s_waitcnt vmcnt(0) lgkmcnt(0)")
        a(f"v_readfirstlane_b32 s{S_NONCE}, v40")
        a("s_barrier")
        a("s_barrier")
        if self.stop != "s2":
            a("s_barrier")
        a("s_branch L_s3_gemm")

    def attn_ids(self):
        a = self.a
        a(f"s_and_b32 s{S_HEAD}, s2, 7")
        a("s_lshr_b32 s47, s2, 6")
        a("s_lshl_b32 s47, s47, 3")
        a(f"s_or_b32 s{S_HEAD}, s{S_HEAD}, s47")
        a(f"s_bfe_u32 s{S_QB}, s2, 0x30003")
        a(f"s_and_b32 s{S_T}, s2, 7")
        a(f"s_lshl_b32 s{S_T}, s{S_T}, 2")
        a("s_bfe_u32 s47, s2, 0x20003")
        a(f"s_add_u32 s{S_T}, s{S_T}, s47")
        a(f"s_lshr_b32 s{S_C}, s2, 5")

    def poll_flags(self, s_off, n, vt=2, sleep=2):
        a = self.a
        Lp, Ld = self.lab("pf"), self.lab("pfd")
        a(f"v_lshlrev_b32 v{vt}, 2, v0")
        a(f"v_cmp_gt_u32 vcc, {n}, v0")
        a("s_mov_b32 s58, 0")
        a("s_mov_b64 s[62:63], vcc")
        a.label(Lp)
        a(f"buffer_load_dword v{vt+1}, v{vt}, s[{SRD_WS}:{SRD_WS+3}], s{s_off} offen sc1")
        a("s_add_u32 s58, s58, 1")
        a("s_waitcnt vmcnt(0)")
        a(f"v_cmp_eq_u32 vcc, s{S_NONCE}, v{vt+1}")
        a("s_nop 1")
        a("s_and_b64 vcc, vcc, s[62:63]")
        a("s_cmp_eq_u64 vcc, s[62:63]")
        a(f"s_cbranch_scc1 {Ld}")
        a("s_cmp_ge_u32 s58, 0x4000")
        a(f"s_cbranch_scc1 {Ld}")
        a(f"s_sleep {sleep}")
        a(f"s_branch {Lp}")
        a.label(Ld)

    def clear_o(self):
        a = self.a
        L = self.lab("co")
        a(f"s_cmp_lg_u32 s{S_W}, 9")
        a(f"s_cbranch_scc1 {L}")
        a(f"s_lshl_b32 s46, s{S_QB}, 8")
        a(f"s_add_u32 s46, s46, s{S_HEAD}")
        a("s_lshl_b32 s46, s46, 10")
        a(f"s_add_u32 s46, s46, {WS_O}")
        for r in range(4): a(f"v_mov_b32 v{152+r}, -1")
        a("v_lshlrev_b32 v156, 4, v0")
        for i in range(8):
            a(f"buffer_store_dwordx4 v[152:155], v156, s[{SRD_WS}:{SRD_WS+3}], s46 offen sc1")
            a(f"s_add_u32 s46, s46, {32*1024}")
        a(f"s_lshl_b32 s48, s{S_QB}, 8")
        a(f"s_lshl_b32 s49, s{S_HEAD}, 2")
        a("s_add_u32 s48, s48, s49")
        a(f"s_add_u32 s48, s48, {FL3}")
        self.publish_flag(48, 157)
        a.label(L)

    def s2_idle(self):
        a = self.a
        a.label("L_s2_idle")
        if self.stop == "s2":
            a("s_barrier")
            a("s_branch L_fin")

    QA, QB, KA, KB, VA, VB = 4, 8, 12, 16, 20, 28
    SA, SB, PA, PB, OA, OB = 40, 56, 72, 80, 88, 104
    VK, VKN, VV0, VV1, VV0N, VV1N, VWA = 120, 121, 122, 123, 124, 125, 126
    TP = 2064
    LDS_W2 = 64 * 2064
    LDS_SYNC = 64 * 2064 + 4 * 6144
    S_NXT = 42

    def stg(self, i):
        return 128 + 8 * (i % 5)

    def mf32(self, d, x, y, c):
        self.a(f"v_mfma_f32_32x32x16_bf16 {vr(d,16)}, {vr(x,4)}, {vr(y,4)}, {c if c == 0 else vr(c,16)}")

    def attn_phase(self, S, P, m1, m2, m3, x1=None, x3=None):
        a = self.a
        E = lambda k: a(f"v_exp_f32 v{S+k}, v{S+k}")
        C = lambda k: a(f"v_cvt_pk_bf16_f32 v{P+k}, v{S+2*k}, v{S+2*k+1}")
        if 'noqk' not in self.dbg: self.mf32(*m1)
        if x1: x1()
        if 'noexp' in self.dbg: E = lambda k: a(f"v_mov_b32 v{S+k}, v{S+k}")
        E(0); E(1); E(2); E(3); C(0); E(4); E(5); C(1)
        if 'nopv' not in self.dbg: self.mf32(*m2)
        E(6); E(7); C(2); E(8); E(9); C(3); E(10); E(11)
        if 'nopv' not in self.dbg: self.mf32(*m3)
        if x3: x3()
        C(4); E(12); E(13); C(5); E(14); E(15); C(6); C(7)

    def attn_tile(self, i, first_group):
        a = self.a
        ev = (i & 1) == 0
        Kc, Kn = (self.KA, self.KB) if ev else (self.KB, self.KA)
        Vc, Vp = (self.VA, self.VB) if ev else (self.VB, self.VA)
        nxt = i == 7
        off = 0 if nxt else (i + 1) * self.TP
        rk, r0, r1 = (self.VKN, self.VV0N, self.VV1N) if nxt else (self.VK, self.VV0, self.VV1)
        def x1():
            if first_group and i <= 6:
                st = self.stg(i + 1)
                a(f"s_waitcnt vmcnt({[4, 4, 4, 4, 4, 2, 0][i]})")
                a(f"ds_write_b128 v{self.VWA}, {vr(st,4)} offset:{(i+1)*self.TP}")
                a(f"ds_write_b128 v{self.VWA}, {vr(st+4,4)} offset:{(i+1)*self.TP+1024}")
                if i + 4 <= 7: self.kv_load(i + 4, self.stg(i + 4))
            a(f"ds_read_b128 {vr(Kn,4)}, v{rk} offset:{off}")
        def x3():
            a(f"ds_read_b128 {vr(Vp,4)}, v{r0} offset:{off}")
            a(f"ds_read_b128 {vr(Vp+4,4)}, v{r1} offset:{off}")
        if first_group:
            a("s_waitcnt lgkmcnt(0)")
            if i == 7: a("s_barrier")
        else:
            a("s_waitcnt lgkmcnt(0)")
        self.attn_phase(self.SA, self.PA, (self.SB, Kc, self.QB, 0), (self.OB, Vp, self.PB, self.OB),
                        (self.OB, Vp + 4, self.PB + 4, self.OB), x1, x3)
        a("s_waitcnt lgkmcnt(2)")
        self.attn_phase(self.SB, self.PB, (self.SA, Kn, self.QA, 0), (self.OA, Vc, self.PA, self.OA),
                        (self.OA, Vc + 4, self.PA + 4, self.OA))

    def kv_load(self, i, st):
        a = self.a
        a(f"buffer_load_dwordx4 {vr(st,4)}, v1, s[{SRD_WS}:{SRD_WS+3}], s44 offen offset:{(i&3)*1024} sc1")
        a(f"buffer_load_dwordx4 {vr(st+4,4)}, v1, s[{SRD_WS}:{SRD_WS+3}], s45 offen offset:{(i&3)*1024} sc1")

    def group_advance(self):
        a = self.a
        G = 8 * self.TP
        a(f"v_mov_b32 v{self.VK}, v{self.VKN}")
        a(f"v_mov_b32 v{self.VV0}, v{self.VV0N}")
        a(f"v_mov_b32 v{self.VV1}, v{self.VV1N}")
        a(f"s_add_u32 s{self.S_NXT}, s{self.S_NXT}, {G}")
        a(f"s_cmp_eq_u32 s{self.S_NXT}, s59")
        a(f"s_cselect_b32 s46, {4*G}, 0")
        a(f"s_sub_u32 s{self.S_NXT}, s{self.S_NXT}, s46")
        a(f"v_add_u32 v{self.VKN}, s{self.S_NXT}, v1")
        a(f"v_add_u32 v{self.VV0N}, s{self.S_NXT}, v2")
        a(f"v_add_u32 v{self.VV1N}, s{self.S_NXT}, v3")

    def lds_spin(self, vaddr, n, vdst, want):
        a = self.a
        Lp, Ld = self.lab("sp"), self.lab("spd")
        a("s_mov_b32 s58, 0")
        a.label(Lp)
        a(f"ds_read_b{32*n} {vr(vdst,n)}, v{vaddr}")
        a("s_add_u32 s58, s58, 1")
        a("s_waitcnt lgkmcnt(0)")
        if n == 4:
            a(f"v_min3_u32 v{vdst}, v{vdst}, v{vdst+1}, v{vdst+2}")
            a(f"v_min_u32 v{vdst}, v{vdst}, v{vdst+3}")
        a("s_nop 0")
        a(f"v_readfirstlane_b32 s57, v{vdst}")
        a("s_cmp_ge_u32 s58, 0x100000")
        a(f"s_cbranch_scc1 {Ld}")
        a(f"s_cmp_lt_u32 s57, {want}")
        a(f"s_cbranch_scc1 {Lp}")
        a.label(Ld)

    def role_attn(self):
        a = self.a
        G = 8 * self.TP
        a.label("L_s3_attn")
        self.attn_ids()
        a("v_lshlrev_b32 v1, 4, v0")
        a(f"s_lshl_b32 s43, s{S_HEAD}, 16")
        a(f"s_lshl_b32 s47, s{S_W}, 13")
        a("s_add_u32 s44, s43, s47")
        a(f"s_add_u32 s45, s44, {WS_V}")
        a(f"s_add_u32 s44, s44, {WS_K}")
        a(f"s_lshl_b32 s46, s{S_QB}, 13")
        a("s_add_u32 s43, s43, s46")
        a(f"s_and_b32 s47, s{S_W}, 3")
        a("s_lshl_b32 s47, s47, 11")
        a("s_add_u32 s43, s43, s47")
        a(f"s_mul_i32 s46, s{S_W}, {G}")
        a(f"v_add_u32 v{self.VWA}, s46, v1")
        a(f"v_mov_b32 v{self.VK}, v{self.VWA}")
        a("v_lshrrev_b32 v2, 5, v0")
        a("v_lshlrev_b32 v2, 8, v2")
        a("v_and_b32 v3, 15, v0")
        a("v_lshl_add_u32 v2, v3, 4, v2")
        a("v_add_u32 v3, 1536, v2")
        a("v_add_u32 v2, 1024, v2")
        a("v_and_b32 v36, 31, v0")
        a("v_cmp_lt_u32 vcc, 15, v36")
        a("v_cmp_eq_u32 s[50:51], 16, v36")
        a(f"v_mov_b32 v37, {LDS_DROP if 'allones' not in self.dbg else 2048}")
        a("v_mov_b32 v38, 2048")
        a("s_nop 0")
        a("v_cndmask_b32 v37, v37, v38, s[50:51]")
        a("s_nop 0")
        a("v_cndmask_b32 v2, v2, v37, vcc")
        a("v_cndmask_b32 v3, v3, v37, vcc")
        a(f"v_add_u32 v{self.VV0}, s46, v2")
        a(f"v_add_u32 v{self.VV1}, s46, v3")
        a(f"s_lshr_b32 s47, s{S_W}, 2")
        a(f"s_mul_i32 s47, s47, {4*G}")
        a(f"s_add_u32 s59, s47, {4*G}")
        a(f"s_add_u32 s{self.S_NXT}, s46, {G}")
        a(f"s_cmp_eq_u32 s{self.S_NXT}, s59")
        a(f"s_cselect_b32 s47, {4*G}, 0")
        a(f"s_sub_u32 s{self.S_NXT}, s{self.S_NXT}, s47")
        a(f"v_add_u32 v{self.VKN}, s{self.S_NXT}, v1")
        a(f"v_add_u32 v{self.VV0N}, s{self.S_NXT}, v2")
        a(f"v_add_u32 v{self.VV1N}, s{self.S_NXT}, v3")
        a(f"v_mul_u32_u24 v36, {self.TP}, v0")
        a("v_add_u32 v36, s46, v36")
        for r in range(4): a(f"v_mov_b32 v{40+r}, s{S_ONES}")
        a("v_lshlrev_b32 v37, 2, v0")
        a(f"v_add_u32 v37, {self.LDS_SYNC}, v37")
        a("v_mov_b32 v38, 0")
        for r in range(32):
            a(f"v_mov_b32 v{self.OA+r}, 0")
        for r in range(8):
            a(f"v_mov_b32 v{self.PB+r}, 0")
            a(f"v_mov_b32 v{self.VB+r}, 0")
        a(f"s_lshl_b32 s60, s{S_QB}, 3")
        a(f"s_and_b32 s48, s{S_W}, 3")
        a("s_lshl_b32 s48, s48, 1")
        a("s_add_u32 s60, s60, s48")
        a(f"s_lshr_b32 s48, s{S_W}, 2")
        a("s_add_u32 s60, s60, s48")
        a("s_lshl_b32 s60, s60, 5")
        a(f"s_add_u32 s60, s60, s{S_HEAD}")
        a("s_lshl_b32 s60, s60, 10")
        a(f"s_add_u32 s60, s60, {WS_O}")
        a(f"s_cmp_lg_u32 s{S_W}, 3")
        a("s_cbranch_scc1 L_at_np")
        a(f"s_lshr_b32 s47, s{S_HEAD}, 1")
        a("s_lshl_b32 s47, s47, 8")
        a(f"s_add_u32 s47, s47, {FL1}")
        self.poll_flags(47, 48, vt=44, sleep=2)
        self.stamp(4)
        a.label("L_at_np")
        a("s_barrier")
        a(f"buffer_load_dwordx4 {vr(self.QA,4)}, v1, s[{SRD_WS}:{SRD_WS+3}], s43 offen sc1")
        a(f"buffer_load_dwordx4 {vr(self.QB,4)}, v1, s[{SRD_WS}:{SRD_WS+3}], s43 offen offset:1024 sc1")
        self.kv_load(0, self.stg(0))
        self.stamp(7)
        self.cstamp(0)
        a("s_setprio 2")
        a("s_mov_b64 exec, 0xff")
        a(f"ds_write_b128 v36, v[40:43] offset:2048")
        a("s_mov_b64 exec, -1")
        a(f"s_cmp_lg_u32 s{S_W}, 0")
        a("s_cbranch_scc1 L_at_nz")
        a("s_mov_b64 exec, 0xfff")
        a("ds_write_b32 v37, v38")
        a("s_mov_b64 exec, -1")
        a.label("L_at_nz")
        for i in range(1, 3):
            self.kv_load(i, self.stg(i))
        a("s_waitcnt vmcnt(4)")
        self.stamp(8)
        st = self.stg(0)
        a(f"ds_write_b128 v{self.VWA}, {vr(st,4)}")
        a(f"ds_write_b128 v{self.VWA}, {vr(st+4,4)} offset:1024")
        self.kv_load(3, self.stg(3))
        a("s_add_u32 s44, s44, 4096")
        a("s_add_u32 s45, s45, 4096")
        a(f"ds_read_b128 {vr(self.KA,4)}, v{self.VK}")
        a(f"ds_read_b128 {vr(self.VA,4)}, v{self.VV0}")
        a(f"ds_read_b128 {vr(self.VA+4,4)}, v{self.VV1}")
        a("s_waitcnt lgkmcnt(0)")
        self.mf32(self.SA, self.KA, self.QA, 0)
        a("s_nop 7")
        a("s_nop 3")
        for i in range(8):
            if 'g0det' in self.dbg: self.stamp(i)
            self.attn_tile(i, True)
        self.group_advance()
        self.stamp(9)
        a("s_mov_b32 s43, 0")
        a.label("L_attn_loop")
        if 'noaprio' not in self.dbg:
            a("s_cmp_eq_u32 s43, 1")
            a("s_cbranch_scc0 L_ap1")
            a("s_setprio 1")
            a.label("L_ap1")
            a("s_cmp_eq_u32 s43, 2")
            a("s_cbranch_scc0 L_ap2")
            a("s_setprio 0")
            a.label("L_ap2")
        for i in range(8):
            self.attn_tile(i, False)
        self.group_advance()
        a("s_add_u32 s43, s43, 1")
        a("s_cmp_lt_u32 s43, 3")
        a("s_cbranch_scc1 L_attn_loop")
        self.mf32(self.OB, self.VB, self.PB, self.OB)
        self.mf32(self.OB, self.VB + 4, self.PB + 4, self.OB)
        self.stamp(10)
        self.cstamp(1)
        a(f"s_lshr_b32 s47, s{S_W}, 2")
        a(f"v_mov_b32 v36, {self.LDS_SYNC}")
        self.lds_spin(36, 4, 40, 1)
        a("s_nop 7")
        a("s_cmp_eq_u32 s47, 0")
        a("s_cbranch_scc1 L_at_ns")
        for r in range(9): a(f"v_swap_b32 v{self.OA+r}, v{self.OB+r}")
        for r in range(4): a(f"v_swap_b32 v{self.QA+r}, v{self.QB+r}")
        a.label("L_at_ns")
        XP = 9 * 256
        a(f"s_mul_i32 s46, s{S_W}, {XP}")
        a(f"s_add_u32 s46, s46, {self.LDS_W2}")
        a("v_add_u32 v36, s46, v1")
        a("v_lshlrev_b32 v37, 2, v0")
        a("v_add_u32 v37, s46, v37")
        a(f"ds_write_b128 v36, {vr(self.OB,4)}")
        a(f"ds_write_b128 v36, {vr(self.OB+4,4)} offset:1024")
        a(f"ds_write_b32 v37, v{self.OB+8} offset:2048")
        a(f"s_lshl_b32 s48, s{S_W}, 2")
        a(f"s_add_u32 s48, s48, {self.LDS_SYNC+16}")
        a("v_mov_b32 v38, s48")
        a("v_mov_b32 v39, 1")
        a("s_waitcnt lgkmcnt(0)")
        a("ds_write_b32 v38, v39")
        a(f"s_xor_b32 s48, s{S_W}, 4")
        a("s_lshl_b32 s46, s48, 2")
        a(f"s_add_u32 s46, s46, {self.LDS_SYNC+16}")
        a("v_mov_b32 v38, s46")
        self.lds_spin(38, 1, 40, 1)
        a(f"s_mul_i32 s46, s48, {XP}")
        a(f"s_add_u32 s46, s46, {self.LDS_W2}")
        a("v_add_u32 v36, s46, v1")
        a("v_lshlrev_b32 v37, 2, v0")
        a("v_add_u32 v37, s46, v37")
        a("ds_read_b128 v[40:43], v36")
        a("ds_read_b128 v[44:47], v36 offset:1024")
        a("ds_read_b32 v48, v37 offset:2048")
        a("s_waitcnt lgkmcnt(0)")
        O = self.OA
        for r in range(9):
            a(f"v_add_f32 v{O+r}, v{O+r}, v{40+r}")
        self.bcast_l()
        a(f"v_mul_f32 v36, 0, v{O}")
        for r in range(1, 8):
            a(f"v_fma_f32 v36, v{O+r}, 0, v36")
        a(f"s_mov_b32 s46, {f2u(2.0**-64):#x}")
        a(f"s_mov_b32 s48, {f2u(2.0**64):#x}")
        a(f"v_cmp_le_f32 s[50:51], s46, v{O+8}")
        a(f"v_cmp_ge_f32 s[52:53], s48, v{O+8}")
        a("v_cmp_eq_f32 vcc, 0, v36")
        a("s_nop 1")
        a("s_and_b64 s[50:51], s[50:51], s[52:53]")
        a("s_and_b64 vcc, vcc, s[50:51]")
        if 'slow' in self.dbg:
            a("s_mov_b64 vcc, 0")
        a("s_cmp_eq_u64 vcc, -1")
        a("s_cbranch_scc0 L_attn_slow")
        a.label("L_attn_norm")
        self.bcast_l()
        a(f"v_rcp_f32 v36, v{O+8}")
        a("s_nop 0")
        for r in range(8):
            a(f"v_mul_f32 v{O+r}, v{O+r}, v36")
        for p in range(4):
            a(f"v_cvt_pk_bf16_f32 v{self.PA+p}, v{O+2*p}, v{O+2*p+1}")
        a(f"v_cmp_eq_u32 vcc, -1, v{self.PA}")
        a("v_mov_b32 v36, 0x7fc07fc0")
        a("s_nop 0")
        a(f"v_cndmask_b32 v{self.PA}, v{self.PA}, v36, vcc")
        a(f"buffer_store_dwordx4 {vr(self.PA,4)}, v1, s[{SRD_WS}:{SRD_WS+3}], s60 offen sc1")
        a("s_branch L_tail_attn")

    def bcast_l(self):
        a = self.a
        a("s_nop 1")
        a(f"v_mov_b32 v37, v{self.OA+8}")
        a("s_nop 1")
        a(f"v_permlane32_swap_b32 v{self.OA+8}, v37")
        a("s_nop 1")

    def attn_slow(self):
        a = self.a
        O, S, P = self.OA, self.SA, self.PA
        a.label("L_attn_slow")
        for r in range(16):
            a(f"v_mov_b32 v{O+r}, 0")
        a(f"v_mov_b32 v136, {f2u(-3.0e38):#x}")
        a("v_mov_b32 v137, v1")
        a("v_mov_b32 v138, v2")
        a("v_mov_b32 v141, v3")
        a("s_mov_b32 s43, 0")
        a.label("L_slow_loop")
        a(f"ds_read_b128 {vr(self.KA,4)}, v137")
        a(f"ds_read_b128 {vr(self.VA,4)}, v138")
        a(f"ds_read_b128 {vr(self.VA+4,4)}, v141")
        a("s_waitcnt lgkmcnt(0)")
        self.mf32(S, self.KA, self.QA, 0)
        a(f"v_add_u32 v137, {self.TP}, v137")
        a(f"v_add_u32 v138, {self.TP}, v138")
        a(f"v_add_u32 v141, {self.TP}, v141")
        a("s_nop 7")
        a("s_nop 7")
        a(f"v_max3_f32 v139, v{S}, v{S+1}, v{S+2}")
        for r in range(3, 15, 2):
            a(f"v_max3_f32 v139, v139, v{S+r}, v{S+r+1}")
        a(f"v_max_f32 v139, v139, v{S+15}")
        a("s_nop 0")
        a("v_mov_b32 v140, v139")
        a("s_nop 1")
        a("v_permlane32_swap_b32 v139, v140")
        a("s_nop 1")
        a("v_max3_f32 v139, v139, v140, v136")
        a("v_sub_f32 v140, v136, v139")
        a("v_exp_f32 v140, v140")
        a("v_mov_b32 v136, v139")
        for r in range(16):
            a(f"v_sub_f32 v{S+r}, v{S+r}, v139")
        for r in range(16):
            a(f"v_exp_f32 v{S+r}, v{S+r}")
        for r in range(9):
            a(f"v_mul_f32 v{O+r}, v{O+r}, v140")
        for p in range(8):
            a(f"v_cvt_pk_bf16_f32 v{P+p}, v{S+2*p}, v{S+2*p+1}")
        a("s_nop 1")
        self.mf32(O, self.VA, P, O)
        self.mf32(O, self.VA + 4, P + 4, O)
        a("s_add_u32 s43, s43, 1")
        a("s_nop 7")
        a("s_nop 7")
        a("s_cmp_lt_u32 s43, 64")
        a("s_cbranch_scc1 L_slow_loop")
        a("s_branch L_attn_norm")

    def role_down(self):
        a = self.a
        a.label("L_s3_gemm")
        if self.stop == "s2":
            a("s_branch L_fin")
        if 'nogprio' not in self.dbg: a("s_setprio 3")
        self.attn_ids()
        a(f"s_sub_u32 s50, s{S_W}, 8")
        self.clear_o()
        self.srd(SRD_A, S_W2, 1792 * 1024)
        ACC, HST, WF = 64, 16, 48
        a("v_lshrrev_b32 v4, 2, v0")
        a("v_lshlrev_b32 v4, 10, v4")
        a("v_and_b32 v5, 3, v0")
        a("v_lshl_add_u32 v4, v5, 4, v4")
        a("s_mul_i32 s44, s50, 6144")
        a(f"s_add_u32 s44, s44, {self.LDS_W2}")
        a("v_lshrrev_b32 v6, 5, v0")
        a("v_bfe_u32 v7, v0, 2, 2")
        a("v_lshl_add_u32 v7, v6, 2, v7")
        a("v_lshlrev_b32 v7, 6, v7")
        a("v_bfe_u32 v8, v0, 4, 1")
        a("v_lshl_add_u32 v7, v8, 5, v7")
        a("v_and_b32 v8, 3, v0")
        a("v_lshl_add_u32 v7, v8, 3, v7")
        a("v_add_u32 v7, s44, v7")
        a("v_lshlrev_b32 v1, 4, v0")
        a("s_mul_i32 s45, s50, 28")
        a("s_lshl_b32 s46, s45, 14")
        a(f"s_lshl_b32 s47, s{S_C}, 7")
        a("s_add_u32 s46, s46, s47")
        a(f"s_mul_i32 s47, s{S_T}, {2*112*1024}")
        a("s_lshl_b32 s48, s45, 10")
        a("s_add_u32 s47, s47, s48")
        a(f"s_add_u32 s47, s47, {WS_H}")
        a(f"s_add_u32 s48, s47, {112*1024}")
        for r in range(64):
            a(f"v_mov_b32 v{ACC+r}, 0")
        def w2dma(slot):
            for cb in range(2):
                a(f"s_add_u32 m0, s44, {slot*2048 + cb*1024}")
                a(f"s_add_u32 s49, s46, {cb*64}")
                a(f"buffer_load_dwordx4 v4, s[{SRD_A}:{SRD_A+3}], s49 offen lds")
            a("s_add_u32 s46, s46, 16384")
        def hload(slot):
            a(f"buffer_load_dwordx4 {vr(HST+8*slot,4)}, v1, s[{SRD_WS}:{SRD_WS+3}], s47 offen sc1")
            a(f"buffer_load_dwordx4 {vr(HST+8*slot+4,4)}, v1, s[{SRD_WS}:{SRD_WS+3}], s48 offen sc1")
            a("s_add_u32 s47, s47, 1024")
            a("s_add_u32 s48, s48, 1024")
        a(f"s_lshr_b32 s51, s{S_T}, 1")
        a("s_lshl_b32 s51, s51, 8")
        a("s_mul_i32 s52, s50, 56")
        a("s_add_u32 s51, s51, s52")
        a(f"s_add_u32 s51, s51, {FL2}")
        if 'nodown' in self.dbg:
            a(f"s_lshl_b32 s48, s50, 2")
            a(f"s_add_u32 s48, s48, {self.LDS_SYNC}")
            a("v_mov_b32 v2, s48")
            a("v_mov_b32 v3, 1")
            a("ds_write_b32 v2, v3")
            a("s_branch L_tail_gemm")
        self.poll_flags(51, 14)
        self.stamp(7)

        for sl in range(3):
            w2dma(sl); hload(sl)
        if 'glow' in self.dbg: a("s_setprio 0")
        def kstep(sl, vm, pre):
            a(f"s_waitcnt vmcnt({vm})")
            for cb in range(2):
                a(f"ds_read_b64_tr_b16 {vr(WF+4*cb,2)}, v7 offset:{sl*2048+cb*1024}")
                a(f"ds_read_b64_tr_b16 {vr(WF+4*cb+2,2)}, v7 offset:{sl*2048+cb*1024+512}")
            a("s_waitcnt lgkmcnt(0)")
            for tb in range(2):
                for cb in range(2):
                    acc = ACC + 16 * (2 * tb + cb)
                    a(f"v_mfma_f32_32x32x16_bf16 {vr(acc,16)}, {vr(WF+4*cb,4)}, {vr(HST+8*sl+4*tb,4)}, {vr(acc,16)}")
                    if 'gspace' in self.dbg: a("s_sleep 1")
                    if 'gspace2' in self.dbg: a("s_sleep 2")
            if pre:
                w2dma(sl); hload(sl)
        a("s_mov_b32 s43, 0")
        a.label("L_down_loop")
        for sl in range(3): kstep(sl, 8, True)
        a("s_add_u32 s43, s43, 1")
        a("s_cmp_lt_u32 s43, 8")
        a("s_cbranch_scc1 L_down_loop")
        kstep(0, 8, True)
        kstep(1, 8, False)
        kstep(2, 4, False)
        kstep(0, 0, False)
        a(f"s_lshl_b32 s48, s50, 2")
        a(f"s_add_u32 s48, s48, {self.LDS_SYNC}")
        a("v_mov_b32 v2, s48")
        a("v_mov_b32 v3, 1")
        a("ds_write_b32 v2, v3")
        self.stamp(8)
        a("s_branch L_tail_gemm")

    PPITCH, PPART, PBASE = 272, 64 * 272, 65536

    def part_write(self, acc_of, tbs, part_sreg):
        a = self.a
        for tb in tbs:
            for cb in range(2):
                acc = acc_of(tb, cb)
                for b in range(4):
                    a(f"ds_write_b128 v9, {vr(acc+4*b,4)} offset:{tb*32*self.PPITCH + (32*cb+8*b)*4}")

    def tail(self):
        a = self.a
        a.label("L_tail_gemm")
        a(f"s_cmp_lg_u32 s{S_W}, 8")
        a("s_cbranch_scc1 L_tail_g1")
        a(f"s_lshr_b32 s51, s{S_T}, 2")
        a("s_lshl_b32 s51, s51, 8")
        a(f"s_add_u32 s51, s51, {FL3}")
        self.poll_flags(51, 32)
        self.stamp(9)
        a.label("L_tail_g1")
        a("v_and_b32 v9, 31, v0")
        a(f"v_mul_u32_u24 v9, {self.PPITCH}, v9")
        a("v_lshrrev_b32 v10, 5, v0")
        a("v_lshl_add_u32 v9, v10, 4, v9")
        a(f"s_mul_i32 s44, s50, {self.PPART}")
        a(f"s_add_u32 s44, s44, {self.PBASE}")
        a("v_add_u32 v9, s44, v9")
        a("s_nop 4")
        a("s_barrier")
        self.part_write(lambda tb, cb: 64 + 16 * (2 * tb + cb), (0, 1), None)
        a("s_waitcnt lgkmcnt(0)")
        a("s_barrier")
        a("s_barrier")
        a("s_barrier")
        a("s_branch L_fin")
        a.label("L_tail_attn")
        a(f"s_and_b32 s44, s{S_W}, 1")
        a(f"s_lshr_b32 s45, s{S_W}, 1")
        a(f"s_lshl_b32 s52, s{S_T}, 1")
        a("s_add_u32 s52, s52, s44")
        a("s_lshl_b32 s52, s52, 15")
        a("s_lshl_b32 s48, s45, 13")
        a("s_add_u32 s52, s52, s48")
        a(f"s_add_u32 s52, s52, {WS_O}")
        a("s_add_u32 s53, s52, 4096")
        OF, WF, ACC = 96, 128, 64
        def oload(k):
            a(f"buffer_load_dwordx4 {vr(OF+4*k,4)}, v1, s[{SRD_WS}:{SRD_WS+3}], s{52+(k>>2)} offen offset:{(k&3)*1024} sc1")
        self.srd(SRD_A, S_WO, 512 * 1024)
        a("v_lshrrev_b32 v4, 2, v0")
        a("v_lshlrev_b32 v4, 10, v4")
        a("v_and_b32 v5, 3, v0")
        a("v_lshl_add_u32 v4, v5, 4, v4")
        a(f"s_lshl_b32 s46, s{S_W}, 16")
        a(f"s_lshl_b32 s47, s{S_C}, 7")
        a("s_add_u32 s46, s46, s47")
        a(f"s_lshl_b32 s54, s{S_W}, 13")
        a("s_barrier")
        self.stamp(11)
        for k in range(8): oload(k)
        for k in range(4):
            for cb in range(2):
                a(f"s_add_u32 m0, s54, {(2*k+cb)*1024}")
                a(f"s_add_u32 s48, s46, {k*16384 + cb*64}")
                a(f"buffer_load_dwordx4 v4, s[{SRD_A}:{SRD_A+3}], s48 offen lds")
        self.srd(SRD_B, S_X, 2048 * 1024)
        a("v_lshrrev_b32 v5, 3, v0")
        a(f"s_lshl_b32 s46, s{S_W}, 3")
        a("v_add_u32 v5, s46, v5")
        a("v_and_b32 v6, 7, v0")
        a("v_lshlrev_b32 v8, 10, v5")
        a("v_lshl_add_u32 v8, v6, 4, v8")
        a(f"s_lshl_b32 s47, s{S_T}, 16")
        a(f"s_lshl_b32 s46, s{S_C}, 7")
        a("s_add_u32 s47, s47, s46")
        a(f"buffer_load_dwordx4 v[12:15], v8, s[{SRD_B}:{SRD_B+3}], s47 offen")
        self.srd(SRD_B, S_B2, 1024)
        a("v_lshlrev_b32 v7, 4, v6")
        a(f"buffer_load_dwordx4 v[16:19], v7, s[{SRD_B}:{SRD_B+3}], s46 offen")
        a(f"v_mul_u32_u24 v10, {self.PPITCH}, v5")
        a("v_lshl_add_u32 v10, v6, 5, v10")
        a(f"v_add_u32 v10, {self.PBASE}, v10")
        a("s_barrier")
        def reduce4(dst):
            for p in range(4):
                a(f"ds_read_b128 {vr(32+8*p,4)}, v10 offset:{p*self.PPART}")
                a(f"ds_read_b128 {vr(36+8*p,4)}, v10 offset:{p*self.PPART+16}")
            a("s_waitcnt lgkmcnt(0)")
            for e in range(8):
                a(f"v_add_f32 v{32+e}, v{32+e}, v{40+e}")
                a(f"v_add_f32 v{48+e}, v{48+e}, v{56+e}")
            for e in range(8):
                a(f"v_add_f32 v{dst+e}, v{32+e}, v{48+e}")
        reduce4(20)
        a("v_lshrrev_b32 v6, 5, v0")
        a("v_bfe_u32 v7, v0, 2, 2")
        a("v_lshl_add_u32 v7, v6, 2, v7")
        a("v_lshlrev_b32 v7, 6, v7")
        a("v_bfe_u32 v9, v0, 4, 1")
        a("v_lshl_add_u32 v7, v9, 5, v7")
        a("v_and_b32 v9, 3, v0")
        a("v_lshl_add_u32 v7, v9, 3, v7")
        a("s_lshl_b32 s48, s45, 14")
        a("v_add_u32 v7, s48, v7")
        a("v_and_b32 v9, 31, v0")
        a(f"v_mul_u32_u24 v9, {self.PPITCH}, v9")
        a("v_lshl_add_u32 v9, v6, 4, v9")
        a(f"s_mul_i32 s48, s45, {self.PPART}")
        a(f"s_mul_i32 s49, s44, {32*self.PPITCH}")
        a("s_add_u32 s48, s48, s49")
        a(f"s_add_u32 s48, s48, {self.PBASE}")
        a("v_add_u32 v9, s48, v9")
        for r in range(32):
            a(f"v_mov_b32 v{ACC+r}, 0")
        a("s_waitcnt vmcnt(0)")
        for e in range(4):
            a(f"v_lshlrev_b32 v28, 16, v{16+e}")
            a(f"v_and_b32 v29, 0xffff0000, v{16+e}")
            a(f"v_add_f32 v{20+2*e}, v{20+2*e}, v28")
            a(f"v_add_f32 v{21+2*e}, v{21+2*e}, v29")
        a("s_barrier")
        W4 = 128
        wreg = lambda k: (W4 + 8 * k) if k < 4 else (32 + 8 * (k - 4))
        for e in range(8):
            a(f"v_mul_f32 v{32+e}, {f2u(-math.log2(math.e)):#x}, v{20+e}")
        for k in range(3):
            for cb in range(2):
                a(f"ds_read_b64_tr_b16 {vr(wreg(k)+4*cb,2)}, v7 offset:{k*2048+cb*1024}")
                a(f"ds_read_b64_tr_b16 {vr(wreg(k)+4*cb+2,2)}, v7 offset:{k*2048+cb*1024+512}")
        for e in range(8):
            a(f"v_exp_f32 v{32+e}, v{32+e}")
        for e in range(8):
            a(f"v_add_f32 v{32+e}, 1.0, v{32+e}")
        for e in range(8):
            a(f"v_rcp_f32 v{32+e}, v{32+e}")
        a("s_waitcnt lgkmcnt(0)")
        for e in range(8):
            a(f"v_mul_f32 v{20+e}, v{20+e}, v{32+e}")
        for k in range(3, 6):
            for cb in range(2):
                a(f"ds_read_b64_tr_b16 {vr(wreg(k)+4*cb,2)}, v7 offset:{k*2048+cb*1024}")
                a(f"ds_read_b64_tr_b16 {vr(wreg(k)+4*cb+2,2)}, v7 offset:{k*2048+cb*1024+512}")
        a("s_waitcnt lgkmcnt(0)")
        for k in range(6, 8):
            for cb in range(2):
                a(f"ds_read_b64_tr_b16 {vr(wreg(k)+4*cb,2)}, v7 offset:{k*2048+cb*1024}")
                a(f"ds_read_b64_tr_b16 {vr(wreg(k)+4*cb+2,2)}, v7 offset:{k*2048+cb*1024+512}")
        a("s_waitcnt lgkmcnt(0)")
        Lchk, Lok, Lrnd = self.lab("ochk"), self.lab("ook"), self.lab("ornd")
        a("s_mov_b32 s58, 0")
        a("s_mov_b32 s55, 0xff")
        a.label(Lchk)
        for k in range(8):
            Ln, Lr = self.lab("on"), self.lab("or")
            a(f"s_bitcmp1_b32 s55, {k}")
            a(f"s_cbranch_scc0 {Ln}")
            a(f"v_cmp_eq_u32 vcc, -1, v{OF+4*k}")
            a("s_nop 1")
            a("s_cmp_eq_u64 vcc, 0")
            a(f"s_cbranch_scc0 {Lr}")
            for cb in range(2):
                a(f"v_mfma_f32_32x32x16_bf16 {vr(ACC+16*cb,16)}, {vr(wreg(k)+4*cb,4)}, {vr(OF+4*k,4)}, {vr(ACC+16*cb,16)}")
            a(f"s_bitset0_b32 s55, {k}")
            a(f"s_branch {Ln}")
            a.label(Lr)
            oload(k)
            if 'inorder' in self.dbg: a(f"s_branch {Lrnd}")
            a.label(Ln)
        a("s_cmp_eq_u32 s55, 0")
        a(f"s_cbranch_scc1 {Lok}")
        a.label(Lrnd)
        a("s_add_u32 s58, s58, 1")
        a("s_waitcnt vmcnt(0)")
        a("s_cmp_lt_u32 s58, 0x4000")
        a(f"s_cbranch_scc1 {Lchk}")
        a.label(Lok)
        if 'loopdet' not in self.dbg: self.stamp(5)
        a("s_nop 7")
        a("s_nop 7")
        self.part_write(lambda tb, cb: ACC + 16 * cb, (0,), None)
        self.srd(SRD_B, S_OUT, 2048 * 1024)
        a("s_waitcnt lgkmcnt(0)")
        a("s_barrier")
        if 'loopdet' not in self.dbg: self.stamp(6)
        reduce4(96)
        for e in range(4):
            a(f"v_lshlrev_b32 v28, 16, v{12+e}")
            a(f"v_and_b32 v29, 0xffff0000, v{12+e}")
            a(f"v_fma_f32 v{96+2*e}, v{96+2*e}, v{20+2*e}, v28")
            a(f"v_fma_f32 v{97+2*e}, v{97+2*e}, v{21+2*e}, v29")
        for e in range(4):
            a(f"v_cvt_pk_bf16_f32 v{104+e}, v{96+2*e}, v{97+2*e}")
        sc = "" if 'outplain' in self.dbg else " sc1"
        a(f"buffer_store_dwordx4 v[104:107], v8, s[{SRD_B}:{SRD_B+3}], s47 offen{sc}")

    def build(self):
        a = self.a
        self.entry()
        self.role_qkv()
        self.role_v()
        self.role_x()
        self.role_w3()
        self.role_ffn()
        self.role_down()
        self.attn_slow()
        self.s2_idle()
        self.role_attn()
        self.tail()
        a.label("L_fin")
        if 'hdbg' in self.dbg:
            a("s_memrealtime s[90:91]")
            a("s_memtime s[84:85]")
            a("s_waitcnt lgkmcnt(0)")
            a(f"s_cmp_lg_u32 s{S_W}, 0")
            a("s_cbranch_scc1 L_hd_skip")
            self.srd(SRD_B, S_DBG, 256)
            a("s_not_b32 s92, s88")
            a("v_mov_b32 v2, s92")
            a("v_mov_b32 v3, s90")
            a("s_sub_u32 s92, s90, s88")
            a("v_mov_b32 v4, s92")
            a("s_sub_u32 s93, s84, s86")
            a("v_mov_b32 v5, s93")
            a("v_mov_b32 v6, 0")
            a("s_mov_b64 exec, 1")
            a(f"buffer_atomic_umax v2, v6, s[{SRD_B}:{SRD_B+3}], 0 offen offset:8")
            a(f"buffer_atomic_umax v3, v6, s[{SRD_B}:{SRD_B+3}], 0 offen offset:12")
            a(f"buffer_atomic_umax v4, v6, s[{SRD_B}:{SRD_B+3}], 0 offen offset:16")
            a(f"buffer_atomic_umax v5, v6, s[{SRD_B}:{SRD_B+3}], 0 offen offset:20")
            a("s_mov_b64 exec, -1")
            a.label("L_hd_skip")
        self.dump_stamps()
        a.label("L_end")
        a("s_endpgm")
        a.label("L_code_end")
        a(".fill 256, 4, 0xbf800000")
        return a

HEADER = """; Kernarg layout (88 bytes): A_x, A_wqkv, A_wo, B_x, B_w1, B_b1, B_w2, B_b2, d_out, d_debug, d_ws
; @launch grid=(256,1,1) block=(768,1,1) lds=163840
.amdgcn_target "amdgcn-amd-amdhsa--gfx950"
.text
.globl {kn}
.p2align 8
.type {kn},@function
{kn}:
"""
FOOTER = """.section .rodata,"a"
.p2align 6
.amdhsa_kernel {kn}
  .amdhsa_next_free_vgpr 168
  .amdhsa_next_free_sgpr 102
  .amdhsa_accum_offset 168
  .amdhsa_group_segment_fixed_size 0
  .amdhsa_kernarg_size 88
  .amdhsa_user_sgpr_count 2
  .amdhsa_user_sgpr_kernarg_segment_ptr 1
  .amdhsa_system_sgpr_workgroup_id_x 1
.end_amdhsa_kernel
"""
def emit(path, **kw):
    g = Gen(**kw)
    a = g.build()
    check_hazards(a.lines)
    open(path, "w").write(HEADER.format(kn=KN) + a.text() + FOOTER.format(kn=KN))

if __name__ == "__main__":
    out = sys.argv[1] if len(sys.argv) > 1 else "k.s"
    dbg = [x[6:] for x in sys.argv if x.startswith("--dbg=")]
    stop = [x[7:] for x in sys.argv if x.startswith("--stop=")]
    emit(out, stamps=("--stamps" in sys.argv), dbg=dbg[0] if dbg else "", stop_after=stop[0] if stop else "all")
```

```python
import sys, math
from asmlib import Asm, vr, sr, check_hazards

NAME = "recurrent_scan__mha_block__dense_activation_squared_relu__prompt"
KN = NAME + "_kernel"

WS_Q, WS_K, WS_V = 0, 2 << 20, 4 << 20
WS_H = 6 << 20
WS_O = 14 << 20
WS_F = 16 << 20
WS_DBG = WS_F + (64 << 10)
WS_SIZE = WS_DBG + (256 << 10)
if 'dumpf' in ' '.join(sys.argv): WS_SIZE = 32 << 20
FL1, FL2, FL3 = WS_F, WS_F + 4096, WS_F + 8192

LDS_RING = 131072
LDS_SCR = LDS_RING + 3 * 8192 + 7 * 1024
LDS_NONCE = LDS_RING + 3 * 8192 + 6 * 1024
LDS_XF = LDS_NONCE + 16
LDS_DROP = 0x30000

QSCALE = 0.25 * math.log2(math.e)

def f2u(x):
    import struct
    return struct.unpack("<I", struct.pack("<f", x))[0]

S_W = 3
S_X, S_WQKV, S_WO, S_W1, S_B1, S_W2, S_B2, S_OUT, S_DBG, S_WS = 4, 6, 8, 12, 14, 16, 18, 20, 22, 24
S_TG, S_J = 26, 27
SRD_WS, SRD_A, SRD_B = 28, 32, 36
S_NONCE = 40
S_ONES = 41
S_HEAD, S_QB, S_T, S_C = 96, 97, 98, 99

class Gen:
    def __init__(self, stop_after="all", stamps=False, dbg=""):
        self.dbg = dbg.split(",")
        self.a = Asm()
        self.stop = stop_after
        self.stamps = stamps
        self.uid = 0
    def lab(self, p):
        self.uid += 1
        return f"L_{p}_{self.uid}"

    def srd(self, dst, ptr, size):
        a = self.a
        a(f"s_mov_b32 s{dst}, s{ptr}")
        a(f"s_and_b32 s{dst+1}, s{ptr+1}, 0xffff")
        a(f"s_mov_b32 s{dst+2}, {size}")
        a(f"s_mov_b32 s{dst+3}, 0x20000")

    def stamp(self, slot):
        if not self.stamps: return
        a = self.a
        a("s_memtime s[90:91]" if 'cyc' in self.dbg and slot not in (14,) else "s_memrealtime s[90:91]")
        a("s_waitcnt lgkmcnt(0)")
        a(f"s_mov_b32 s{64+slot}, s90")

    def cstamp(self, slot):
        if not self.stamps or 'phclk' not in self.dbg: return
        a = self.a
        a("s_memtime s[90:91]")
        a("s_waitcnt lgkmcnt(0)")
        a(f"s_mov_b32 s{64+slot}, s90")

    def dump_stamps(self):
        if not self.stamps: return
        a = self.a
        a("s_lshl_b32 s92, s2, 4")
        a(f"s_add_u32 s92, s92, s{S_W}")
        a("s_lshl_b32 s92, s92, 6")
        a(f"s_add_u32 s92, s92, {WS_DBG}")
        a("v_mov_b32 v1, 0")
        a("s_memtime s[84:85]")
        self.stamp(14)
        a("s_mov_b32 s79, s88")
        a("s_getreg_b32 s76, hwreg(HW_REG_HW_ID)")
        a("s_sub_u32 s77, s84, s86")
        for i in range(16):
            a(f"v_mov_b32 v2, s{64+i}")
            a(f"buffer_store_dword v2, v1, s[{SRD_WS}:{SRD_WS+3}], s92 offen offset:{4*i}")
            a("s_nop 1")

    def entry(self):
        a = self.a
        if self.stamps or 'hdbg' in self.dbg:
            a("s_memrealtime s[88:89]")
            a("s_memtime s[86:87]")
        a(f"s_cmp_ge_u32 s2, 256")
        a(f"s_cbranch_scc1 L_end")
        a("s_load_dwordx16 s[4:19], s[0:1], 0")
        a("s_load_dwordx4 s[20:23], s[0:1], 64")
        a("s_load_dwordx2 s[24:25], s[0:1], 80")
        a("v_lshrrev_b32 v1, 6, v0")
        a("v_and_b32 v0, 63, v0")
        a("s_and_b32 s26, s2, 1")
        a(f"v_readfirstlane_b32 s{S_W}, v1")
        a("s_lshl_b32 s26, s26, 3")
        a("s_bfe_u32 s42, s2, 0x30003")
        a(f"s_add_u32 s{S_TG}, s26, s42")
        a("s_bfe_u32 s27, s2, 0x20001")
        a("s_lshl_b32 s27, s27, 2")
        a("s_lshr_b32 s42, s2, 6")
        a(f"s_add_u32 s{S_J}, s27, s42")
        a(f"s_mov_b32 s{S_ONES}, 0x3f803f80")
        if self.stamps:
            for i in range(16): a(f"s_mov_b32 s{64+i}, 0")
        a(f"s_cmp_ge_u32 s{S_W}, 8")
        a("s_cbranch_scc1 L_role_ffn")
        a(f"s_cmp_ge_u32 s{S_W}, 4")
        a("s_cbranch_scc1 L_role_x")
        a(f"s_cmp_eq_u32 s{S_W}, 3")
        a("s_cbranch_scc1 L_role_w3")

    ACC = 64
    XA, XB = 16, 32
    WA, WB = 48, 52
    CS = 56
    VXA = 4
    VWR = 8
    VWG = 9
    S_WOFF, S_WSTR, S_RING, S_RINGD, S_CNT = 42, 43, 44, 45, 46

    def gemm_setup_addrs(self):
        a = self.a
        a("v_and_b32 v10, 31, v0")
        a("v_lshrrev_b32 v11, 5, v0")
        a("v_bfe_u32 v12, v0, 1, 3")
        a("v_xor_b32 v12, v11, v12")
        a("v_lshlrev_b32 v12, 4, v12")
        a(f"v_lshl_or_b32 v{self.VXA}, v10, 7, v12")
        for m in range(1, 4):
            a(f"v_xor_b32 v{self.VXA+m}, {32*m}, v{self.VXA}")
        a("v_bfe_u32 v12, v0, 2, 2")
        a("v_lshl_add_u32 v12, v11, 3, v12")
        a("v_lshlrev_b32 v12, 6, v12")
        a("v_bfe_u32 v13, v0, 4, 1")
        a("v_lshl_add_u32 v12, v13, 5, v12")
        a("v_and_b32 v13, 3, v0")
        a(f"v_lshl_add_u32 v{self.VWR}, v13, 3, v12")
        a(f"v_add_u32 v{self.VWR}, s{self.S_RING}, v{self.VWR}")

    def gemm_wg_voffset(self, pitch):
        a = self.a
        a("v_lshrrev_b32 v12, 2, v0")
        a(f"s_mov_b32 s47, {pitch}")
        a("v_mul_lo_u32 v12, v12, s47")
        a("v_and_b32 v13, 3, v0")
        a(f"v_lshl_add_u32 v{self.VWG}, v13, 4, v12")

    def w_dma(self, slot, ring_reg):
        a = self.a
        a(f"s_add_u32 m0, s{ring_reg}, {slot*1024}")
        a(f"s_add_u32 s{self.S_WOFF}, s{self.S_WOFF}, s{self.S_WSTR}")
        a(f"buffer_load_dwordx4 v{self.VWG}, s[{SRD_A}:{SRD_A+3}], s{self.S_WOFF} offen lds")

    def frag_reads(self, ksn, X, W, base_ks):
        a = self.a
        rel = ksn - base_ks
        slot = ksn & 7
        m = ksn & 3
        kc = rel >> 2 if base_ks % 8 == 0 else None
        return rel, slot, m, kc

    VF = 144
    S_NEED = 56

    def xflag_check(self, L):
        a = self.a
        a(f"v_readfirstlane_b32 s57, v149")
        return L

    def gemm_loop(self, swapped, s1, tag):
        a = self.a
        L = self.lab("gl_" + tag)
        a(f"s_mov_b32 s{self.S_CNT}, 0")
        a(f"s_mov_b32 s{self.S_RINGD}, s{self.S_RING}")
        if s1: a(f"s_mov_b32 s{self.S_NEED}, 1")
        a.label(L)
        if 'loopdet' in self.dbg:
            a("s_memtime s[90:91]")
            a("s_waitcnt lgkmcnt(0)")
            for t in range(4):
                a(f"s_cmp_eq_u32 s{self.S_CNT}, {t}")
                sl = (0 if not s1 else 4) + t
                a(f"s_cselect_b32 s{64+sl}, s90, s{64+sl}")
        a(f"s_cmp_eq_u32 s{self.S_CNT}, 3")
        a(f"s_cselect_b32 s{self.S_RINGD}, {LDS_DROP}, s{self.S_RINGD}")
        if not s1 and self.stop != "s2":
            L0 = self.lab("x0")
            a(f"s_cbranch_scc0 {L0}")
            a("s_barrier")
            a.label(L0)
        for i in range(8):
            X, W = (self.XA, self.WA) if i % 2 == 0 else (self.XB, self.WB)
            Xn, Wn = (self.XB, self.WB) if i % 2 == 0 else (self.XA, self.WA)
            def mf(tb):
                acc = self.ACC + 16 * tb
                if swapped:
                    a(f"v_mfma_f32_32x32x16_bf16 {vr(acc,16)}, {vr(X+4*tb,4)}, {vr(W,4)}, {vr(acc,16)}")
                else:
                    a(f"v_mfma_f32_32x32x16_bf16 {vr(acc,16)}, {vr(W,4)}, {vr(X+4*tb,4)}, {vr(acc,16)}")
            chk = s1 and (i & 3) == 3
            a("s_waitcnt lgkmcnt(0)")
            mf(0)
            if chk:
                a(f"v_min3_u32 v149, v{self.VF}, v{self.VF+1}, v{self.VF+2}")
                a(f"s_add_u32 s{self.S_NEED}, s{self.S_NEED}, 1")
                a(f"v_min_u32 v149, v149, v{self.VF+3}")
                a(f"s_min_u32 s{self.S_NEED}, s{self.S_NEED}, 8")
            self.w_dma(i, self.S_RINGD)
            if chk: a("v_readfirstlane_b32 s57, v149")
            a("s_waitcnt vmcnt(7)")
            nslot = (i + 1) & 7
            a(f"ds_read_b64_tr_b16 {vr(Wn,2)}, v{self.VWR} offset:{nslot*1024}")
            a(f"ds_read_b64_tr_b16 {vr(Wn+2,2)}, v{self.VWR} offset:{nslot*1024+256}")
            if chk:
                Lok, Lsp = self.lab("xok"), self.lab("xsp")
                a(f"s_cmp_ge_u32 s57, s{self.S_NEED}")
                a(f"s_cbranch_scc1 {Lok}")
                a("s_mov_b32 s58, 0")
                a.label(Lsp)
                a(f"ds_read_b128 {vr(self.VF,4)}, v148")
                a("s_add_u32 s58, s58, 1")
                a("s_waitcnt lgkmcnt(0)")
                a(f"v_min3_u32 v149, v{self.VF}, v{self.VF+1}, v{self.VF+2}")
                a(f"v_min_u32 v149, v149, v{self.VF+3}")
                a("s_nop 0")
                a("v_readfirstlane_b32 s57, v149")
                a("s_cmp_ge_u32 s58, 0x100000")
                a(f"s_cbranch_scc1 {Lok}")
                a(f"s_cmp_lt_u32 s57, s{self.S_NEED}")
                a(f"s_cbranch_scc1 {Lsp}")
                a.label(Lok)
            mf(1)
            n = i + 1
            for tb in range(4):
                a(f"ds_read_b128 {vr(Xn+4*tb,4)}, v{self.VXA+(n&3)} offset:{(n>>2)*16384 + tb*4096}")
            if s1 and (i & 3) == 2:
                a(f"ds_read_b128 {vr(self.VF,4)}, v148")
            mf(2)
            if 'nocs' not in self.dbg:
                a(f"v_mfma_f32_16x16x32_bf16 {vr(self.CS4,4)}, {vr(W,4)}, {vr(self.PAR,4)}, {vr(self.CS4,4)}")
            mf(3)
        for m in range(4):
            a(f"v_add_u32 v{self.VXA+m}, 0x8000, v{self.VXA+m}")
        a(f"s_add_u32 s{self.S_CNT}, s{self.S_CNT}, 1")
        a(f"s_cmp_lt_u32 s{self.S_CNT}, 4")
        a(f"s_cbranch_scc1 {L}")

    def wait_xflags(self, regs, need, vaddr, vt):
        a = self.a
        Lsp, Lok = self.lab("wsp"), self.lab("wok")
        a("s_mov_b32 s58, 0")
        a.label(Lsp)
        n = len(regs)
        a(f"ds_read_b{32*n} {vr(regs[0], n)}, v{vaddr}")
        a("s_add_u32 s58, s58, 1")
        a("s_waitcnt lgkmcnt(0)")
        if n == 4:
            a(f"v_min3_u32 v{vt}, v{regs[0]}, v{regs[1]}, v{regs[2]}")
            a(f"v_min_u32 v{vt}, v{vt}, v{regs[3]}")
        else:
            a(f"v_min_u32 v{vt}, v{regs[0]}, v{regs[1]}")
        a("s_nop 0")
        a(f"v_readfirstlane_b32 s57, v{vt}")
        a("s_cmp_ge_u32 s58, 0x100000")
        a(f"s_cbranch_scc1 {Lok}")
        a(f"s_cmp_lt_u32 s57, {need}")
        a(f"s_cbranch_scc1 {Lsp}")
        a.label(Lok)

    CS4 = 56
    PAR = 60

    def cs_acc(self, W, q0, q1):
        a = self.a
        for q in range(q0, q1):
            t = 58 + 2 * (q & 1)
            a(f"v_lshlrev_b32 v{t}, 16, v{W+q}")
            a(f"v_and_b32 v{t+1}, 0xffff0000, v{W+q}")
            a(f"v_add_f32 v{self.CS}, v{t}, v{self.CS}")
            a(f"v_add_f32 v{self.CS+1}, v{t+1}, v{self.CS+1}")

    def gemm_first_frags(self):
        a = self.a
        a(f"ds_read_b64_tr_b16 {vr(self.WA,2)}, v{self.VWR} offset:0")
        a(f"ds_read_b64_tr_b16 {vr(self.WA+2,2)}, v{self.VWR} offset:256")
        for tb in range(4):
            a(f"ds_read_b128 {vr(self.XA+4*tb,4)}, v{self.VXA} offset:{tb*4096}")

    def zero_acc(self):
        a = self.a
        for i in range(64):
            a(f"v_mov_b32 v{self.ACC+i}, 0")

    def cs16_from_cs4(self):
        a = self.a
        a("v_lshrrev_b32 v11, 5, v0")
        a("v_lshlrev_b32 v11, 6, v11")
        a("s_waitcnt lgkmcnt(0)")
        for r in range(16):
            b, jj = r >> 2, r & 3
            a(f"ds_bpermute_b32 v{16+r}, v11, v{self.CS4+jj} offset:{128*(b&1)+4*(b>>1)}")

    def cs_total(self):
        a = self.a
        a(f"v_add_f32 v{self.CS}, v{self.CS}, v{self.CS+1}")
        a("s_nop 0")
        a(f"v_mov_b32 v{self.CS+1}, v{self.CS}")
        a("s_nop 1")
        a(f"v_permlane32_swap_b32 v{self.CS}, v{self.CS+1}")
        a("s_nop 1")
        a(f"v_add_f32 v{self.CS}, v{self.CS}, v{self.CS+1}")

    def read_nonce(self, vtmp):
        a = self.a
        a(f"v_mov_b32 v{vtmp}, {LDS_NONCE}")
        a(f"ds_read_b32 v{vtmp}, v{vtmp}")

    def publish_flag(self, s_off, vtmp):
        a = self.a
        a("s_waitcnt vmcnt(0)")
        a(f"v_mov_b32 v{vtmp}, s{S_NONCE}")
        a(f"v_mov_b32 v{vtmp+1}, 0")
        a("s_mov_b64 exec, 1")
        a(f"buffer_store_dword v{vtmp}, v{vtmp+1}, s[{SRD_WS}:{SRD_WS+3}], s{s_off} offen sc1")
        a("s_mov_b64 exec, -1")

    def tok_stats_read(self):
        a = self.a
        a("v_and_b32 v10, 31, v0")
        a(f"v_lshlrev_b32 v10, 2, v10")
        a(f"v_add_u32 v10, {LDS_SCR}, v10")
        for tb in range(4):
            a(f"ds_read_b32 v{32+2*tb}, v10 offset:{tb*128}")
            a(f"ds_read_b32 v{33+2*tb}, v10 offset:{512+tb*128}")
        self.read_nonce(40)
        a("v_lshrrev_b32 v11, 5, v0")
        a("v_lshlrev_b32 v11, 4, v11")
        for r in range(16):
            a(f"ds_bpermute_b32 v{16+r}, v11, v{self.CS} offset:{(8*(r>>2)+(r&3))*4}")

    def role_qkv(self):
        a = self.a
        a(f"s_lshl_b32 s{self.S_RING}, s{S_W}, 13")
        a(f"s_add_u32 s{self.S_RING}, s{self.S_RING}, {LDS_RING}")
        a(f"s_mul_i32 s53, s{S_J}, 3")
        a(f"s_add_u32 s53, s53, s{S_W}")
        self.gemm_wg_voffset(3072)
        a(f"s_lshl_b32 s{self.S_WOFF}, s53, 6")
        a(f"s_mov_b32 s{self.S_WSTR}, {16*3072 if 'wq0' not in self.dbg else 0}")
        a(f"s_sub_u32 s{self.S_WOFF}, s{self.S_WOFF}, s{self.S_WSTR}")
        a("s_waitcnt lgkmcnt(0)")
        self.srd(SRD_A, S_WQKV, 512 * 3072)
        n0 = 8 if 'w8first' in self.dbg else 2
        for sl in range(n0):
            self.w_dma(sl, self.S_RING)
        a("s_lshr_b32 s54, s53, 4")
        a("s_and_b32 s55, s53, 15")
        self.srd(SRD_WS, S_WS, WS_SIZE)
        self.gemm_setup_addrs()
        self.zero_acc()
        for sl in range(n0, 8):
            self.w_dma(sl, self.S_RING)
        self.cs4_init()
        a(f"v_mov_b32 v148, {LDS_XF}")
        self.stamp(0)
        a("s_barrier")
        self.wait_xflags([144, 145, 146, 147], 1, 148, 149)
        a("s_waitcnt vmcnt(7)")
        self.stamp(1)
        self.gemm_first_frags()
        a("s_cmp_eq_u32 s54, 2")
        a("s_cbranch_scc1 L_role_v")
        self.gemm_loop(False, True, "qk")
        self.stamp(2)
        a("s_barrier")
        a("v_and_b32 v10, 31, v0")
        a(f"v_lshlrev_b32 v10, 2, v10")
        a(f"v_add_u32 v10, {LDS_SCR}, v10")
        for tb in range(4):
            a(f"ds_read_b32 v{32+2*tb}, v10 offset:{tb*128}")
            a(f"ds_read_b32 v{33+2*tb}, v10 offset:{512+tb*128}")
        self.read_nonce(40)
        a("s_nop 3")
        self.cs16_from_cs4()
        a("s_waitcnt lgkmcnt(0)")
        a(f"v_readfirstlane_b32 s{S_NONCE}, v40")
        a("s_cmp_eq_u32 s54, 0")
        a(f"s_cselect_b32 s47, {f2u(QSCALE)}, 1.0")
        for tb in range(4):
            a(f"v_mul_f32 v{32+2*tb}, s47, v{32+2*tb}")
            a(f"v_mul_f32 v{33+2*tb}, s47, v{33+2*tb}")
        a("s_lshl_b32 s48, s54, 21")
        a("s_lshl_b32 s49, s55, 17")
        a("s_add_u32 s48, s48, s49")
        a(f"s_lshl_b32 s49, s{S_TG}, 12")
        a("s_add_u32 s48, s48, s49")
        a("v_lshlrev_b32 v10, 4, v0")
        self.tok_epilogue_store(ffn=False)
        a("s_barrier")
        a("s_lshl_b32 s48, s55, 8")
        a("s_lshl_b32 s49, s54, 6")
        a("s_add_u32 s48, s48, s49")
        a(f"s_lshl_b32 s49, s{S_TG}, 2")
        a("s_add_u32 s48, s48, s49")
        a(f"s_add_u32 s48, s48, {FL1}")
        self.publish_flag(48, 12)
        self.stamp(3)
        a("s_branch L_s2_idle")

    def tok_epilogue_store(self, ffn):
        a = self.a
        hb_stride = 1024 if ffn else 65536
        tb_stride = 112 * 1024 if ffn else 1024
        T = 44
        for tb in range(4):
            st = 32 + 2 * tb
            for hb in range(2):
                P = 48 + 4 * hb
                for p in range(4):
                    r = 8 * hb + 2 * p
                    acc = self.ACC + 16 * tb + r
                    w = T + 2 * (p & 1)
                    for e in range(2):
                        if ffn: a(f"v_fma_f32 v{w+e}, v{16+r+e}, v{st+1}, v{128+r+e}")
                        else:   a(f"v_mul_f32 v{w+e}, v{16+r+e}, v{st+1}")
                    for e in range(2):
                        a(f"v_fma_f32 v{acc+e}, v{acc+e}, v{st}, v{w+e}")
                    if ffn:
                        for e in range(2):
                            a(f"v_max_f32 v{w+e}, 0, v{acc+e}")
                        for e in range(2):
                            a(f"v_mul_f32 v{acc+e}, v{w+e}, v{w+e}")
                    a(f"v_cvt_pk_bf16_f32 v{P+p}, v{acc}, v{acc+1}")
                off = hb * hb_stride + tb * tb_stride
                a(f"s_add_u32 s49, s48, {off}")
                a(f"buffer_store_dwordx4 {vr(P,4)}, v10, s[{SRD_WS}:{SRD_WS+3}], s49 offen sc1")

    def role_v(self):
        a = self.a
        a.label("L_role_v")
        self.gemm_loop(True, True, "v")
        self.stamp(2)
        a("s_barrier")
        self.read_nonce(40)
        a("v_bfe_u32 v12, v0, 2, 2")
        a("v_bfe_u32 v13, v0, 4, 1")
        a("v_lshl_add_u32 v12, v12, 4, v13")
        a("v_lshlrev_b32 v12, 2, v12")
        a("s_nop 3")
        a("s_waitcnt lgkmcnt(0)")
        for jj in range(4):
            a(f"ds_bpermute_b32 v{16+jj}, v12, v{self.CS4+jj}")
        a("v_and_b32 v13, 3, v0")
        a("s_waitcnt lgkmcnt(0)")
        for jj in range(1, 4):
            a(f"v_cmp_eq_u32 vcc, {jj}, v13")
            a("s_nop 1")
            a(f"v_cndmask_b32 v16, v16, v{16+jj}, vcc")
        a(f"v_mov_b32 v{self.CS}, v16")
        a("v_lshrrev_b32 v11, 5, v0")
        a("v_lshlrev_b32 v11, 4, v11")
        a(f"v_add_u32 v11, {LDS_SCR}, v11")
        a("v_bfe_u32 v12, v0, 4, 1")
        a("v_lshlrev_b32 v12, 16, v12")
        a("v_lshrrev_b32 v13, 5, v0")
        a("v_lshl_add_u32 v12, v13, 8, v12")
        a("v_and_b32 v13, 15, v0")
        a("v_lshl_add_u32 v10, v13, 4, v12")
        a("s_lshl_b32 s48, s55, 17")
        a(f"s_lshl_b32 s49, s{S_TG}, 12")
        a("s_add_u32 s48, s48, s49")
        a(f"s_add_u32 s48, s48, {WS_V}")
        a("s_waitcnt lgkmcnt(0)")
        a(f"v_readfirstlane_b32 s{S_NONCE}, v40")
        for tb in range(4):
            for b in range(4):
                a(f"ds_read_b128 {vr(16+4*b,4)}, v11 offset:{(32*tb+8*b)*4}")
                a(f"ds_read_b128 {vr(32+4*b,4)}, v11 offset:{512+(32*tb+8*b)*4}")
            a("s_waitcnt lgkmcnt(0)")
            for t in range(2):
                P = 48 + 4 * t
                for p in range(4):
                    r = 8 * t + 2 * p
                    acc = self.ACC + 16 * tb + r
                    w = 58 + 2 * (p & 1)
                    for e in range(2):
                        a(f"v_mul_f32 v{w+e}, v{32+r+e}, v{self.CS}")
                    for e in range(2):
                        a(f"v_fma_f32 v{acc+e}, v{acc+e}, v{16+r+e}, v{w+e}")
                    a(f"v_cvt_pk_bf16_f32 v{P+p}, v{acc}, v{acc+1}")
                a(f"s_add_u32 s49, s48, {tb*1024 + t*512}")
                a(f"buffer_store_dwordx4 {vr(P,4)}, v10, s[{SRD_WS}:{SRD_WS+3}], s49 offen sc1")
        a("s_barrier")
        a("s_lshl_b32 s48, s55, 8")
        a(f"s_lshl_b32 s49, s{S_TG}, 2")
        a("s_add_u32 s48, s48, s49")
        a(f"s_add_u32 s48, s48, {FL1 + 128}")
        self.publish_flag(48, 12)
        self.stamp(3)
        a("s_branch L_s2_idle")

    def role_x(self):
        a = self.a
        a.label("L_role_x")
        a("v_lshrrev_b32 v1, 3, v0")
        a("v_lshrrev_b32 v2, 4, v0")
        a("v_and_b32 v3, 7, v0")
        a("v_xor_b32 v3, v2, v3")
        a("v_lshlrev_b32 v3, 4, v3")
        a("v_lshl_or_b32 v2, v1, 10, v3")
        a("v_xor_b32 v3, 64, v2")
        a(f"s_sub_u32 s42, s{S_W}, 4")
        a(f"s_lshl_b32 s43, s{S_TG}, 17")
        a("s_lshl_b32 s44, s42, 15")
        a("s_add_u32 s43, s43, s44")
        a("s_lshl_b32 s44, s42, 12")
        a("s_waitcnt lgkmcnt(0)")
        self.srd(SRD_A, S_X, 2048 * 1024)
        D = self.XLOOK
        def chunk(kc):
            for rg in range(4):
                a(f"s_add_u32 m0, s44, {kc*16384 + rg*1024}")
                a(f"s_add_u32 s45, s43, {rg*8192 + kc*128}")
                a(f"buffer_load_dwordx4 v{2+(rg&1)}, s[{SRD_A}:{SRD_A+3}], s45 offen lds")
        for kc in range(D): chunk(kc)
        self.srd(SRD_WS, S_WS, WS_SIZE)
        a("s_lshl_b32 s46, s42, 2")
        a(f"s_add_u32 s46, s46, {LDS_XF}")
        a("v_mov_b32 v4, s46")
        a("v_mov_b32 v5, 0")
        a("ds_write_b32 v4, v5")
        a("s_waitcnt lgkmcnt(0)")
        self.stamp(0)
        a("s_barrier")
        for kc in range(8):
            a(f"v_mov_b32 v5, {kc+1}")
            if 'nox' not in self.dbg or kc == 0: a(f"s_waitcnt vmcnt({4*min(D-1, 7-kc)})")
            a("ds_write_b32 v4, v5")
            if kc == 0: self.stamp(1)
            if 's1det' in self.dbg: self.stamp(kc + 4)
            if kc + D < 8 and 'nox' not in self.dbg: chunk(kc + D)
        a("s_waitcnt lgkmcnt(0)")
        a("s_barrier")
        self.read_nonce(40)
        a("s_waitcnt lgkmcnt(0)")
        a(f"v_readfirstlane_b32 s{S_NONCE}, v40")
        a("s_barrier")
        self.stamp(3)
        a("s_branch L_s2_idle")

    @property
    def XLOOK(self):
        for d in self.dbg:
            if d.startswith('xl'): return int(d[2:])
        return 3
    WLOOK = 4

    def stats_setup(self, tb0):
        a = self.a
        a("v_and_b32 v10, 31, v0")
        a("v_lshrrev_b32 v11, 5, v0")
        a("v_bfe_u32 v12, v0, 1, 3")
        a("v_xor_b32 v12, v11, v12")
        a("v_lshlrev_b32 v12, 4, v12")
        a("v_lshl_or_b32 v152, v10, 7, v12")
        a(f"v_add_u32 v152, {tb0*4096}, v152")
        for m in range(1, 4):
            a(f"v_xor_b32 v{152+m}, {32*m}, v152")
        for i in range(8):
            a(f"v_mov_b32 v{156+i}, 0")

    def stats_chunk(self, kc, tb0):
        a = self.a
        a(f"v_mov_b32 v12, {LDS_XF + 4*tb0}")
        self.wait_xflags([10, 11], kc + 1, 12, 13)
        if kc == 4:
            for m in range(4): a(f"v_add_u32 v{152+m}, 0x10000, v{152+m}")
        for m in range(4):
            for t in range(2):
                a(f"ds_read_b128 {vr(16+8*m+4*t,4)}, v{152+m} offset:{(kc&3)*16384 + t*4096}")
        for m in range(4):
            for t in range(2):
                a(f"s_waitcnt lgkmcnt({7-2*m-t})")
                F = 16 + 8*m + 4*t
                for q in range(4 if 'nostats' not in self.dbg else 0):
                    a(f"v_dot2c_f32_bf16 v{156+4*t+(q&1)}, s{S_ONES}, v{F+q}")
                    a(f"v_dot2c_f32_bf16 v{158+4*t+(q&1)}, v{F+q}, v{F+q}")

    def stats_final(self, tb0):
        a = self.a
        a("s_nop 2")
        for t in range(2):
            a(f"v_add_f32 v{156+4*t}, v{156+4*t}, v{157+4*t}")
            a(f"v_add_f32 v{158+4*t}, v{158+4*t}, v{159+4*t}")
        a("s_nop 0")
        for t in range(2):
            a(f"v_mov_b32 v{157+4*t}, v{156+4*t}")
            a(f"v_mov_b32 v{159+4*t}, v{158+4*t}")
        a("s_nop 1")
        for t in range(2):
            a(f"v_permlane32_swap_b32 v{156+4*t}, v{157+4*t}")
            a(f"v_permlane32_swap_b32 v{158+4*t}, v{159+4*t}")
        a("s_nop 1")
        a("v_and_b32 v12, 31, v0")
        a("v_lshlrev_b32 v12, 2, v12")
        a(f"v_add_u32 v12, {LDS_SCR + tb0*128}, v12")
        for t in range(2):
            S, Q = 156+4*t, 158+4*t
            a(f"v_add_f32 v{S}, v{S}, v{S+1}")
            a(f"v_add_f32 v{Q}, v{Q}, v{Q+1}")
            a(f"v_mul_f32 v{S}, {f2u(1.0/512)}, v{S}")
            a(f"v_mul_f32 v{Q}, {f2u(1.0/512)}, v{Q}")
            a(f"v_fma_f32 v{Q}, -v{S}, v{S}, v{Q}")
            a(f"v_max_f32 v{Q}, 0, v{Q}")
            a(f"v_add_f32 v{Q}, {f2u(1e-5)}, v{Q}")
            a(f"v_rsq_f32 v{Q}, v{Q}")
            a("s_nop 0")
            a(f"v_mul_f32 v{S}, v{S}, v{Q}")
            a(f"v_sub_f32 v{S}, 0, v{S}")
            a(f"ds_write_b32 v12, v{Q} offset:{t*128}")
            a(f"ds_write_b32 v12, v{S} offset:{512+t*128}")
        a("s_waitcnt lgkmcnt(0)")

    def role_w3(self):
        a = self.a
        a.label("L_role_w3")
        self.stats_setup(0)
        a("s_waitcnt lgkmcnt(0)")
        self.srd(SRD_WS, S_WS, WS_SIZE)
        self.srd(SRD_A, S_DBG, 256)
        a("v_mov_b32 v2, 0")
        a("s_cmp_lg_u32 s2, 0")
        a("s_cbranch_scc1 L_nc_np")
        a("s_memrealtime s[60:61]")
        a("s_waitcnt lgkmcnt(0)")
        a("s_or_b32 s60, s60, 1")
        a("v_mov_b32 v1, s60")
        a("s_mov_b64 exec, 1")
        a(f"buffer_store_dword v1, v2, s[{SRD_A}:{SRD_A+3}], 0 offen sc1")
        a("s_mov_b64 exec, -1")
        a.label("L_nc_np")
        a("s_barrier")
        for kc in range(8):
            if kc == 3:
                a(f"buffer_load_dword v1, v2, s[{SRD_A}:{SRD_A+3}], 0 offen sc1")
            if kc == 7:
                a("s_mov_b32 s62, 0")
                a.label("L_nc_chk")
                a("s_waitcnt vmcnt(0)")
                a(f"v_readfirstlane_b32 s{S_NONCE}, v1")
                a(f"s_cmp_lg_u32 s{S_NONCE}, 0")
                a("s_cbranch_scc1 L_nc_got")
                a("s_add_u32 s62, s62, 1")
                a("s_cmp_ge_u32 s62, 8192")
                a("s_cbranch_scc1 L_nc_got")
                a(f"buffer_load_dword v1, v2, s[{SRD_A}:{SRD_A+3}], 0 offen sc1")
                a("s_branch L_nc_chk")
                a.label("L_nc_got")
                a(f"v_mov_b32 v1, s{S_NONCE}")
                a(f"v_mov_b32 v2, {LDS_NONCE}")
                a("ds_write_b32 v2, v1")
            self.stats_chunk(kc, 0)
            if 's1det' in self.dbg: self.stamp(kc + 4)
        self.stats_final(0)
        self.stamp(2)
        a("s_barrier")
        a("s_barrier")
        a("s_branch L_s2_idle")

    def ffn_setup(self):
        a = self.a
        a(f"s_sub_u32 s50, s{S_W}, 8")
        a(f"s_lshl_b32 s{self.S_RING}, s50, 13")
        a(f"s_add_u32 s{self.S_RING}, s{self.S_RING}, {LDS_RING}")
        self.gemm_wg_voffset(3584)
        a(f"s_lshl_b32 s51, s{S_J}, 2")
        a("s_add_u32 s51, s51, s50")
        a(f"s_lshl_b32 s{self.S_WOFF}, s51, 6")
        a(f"s_mov_b32 s{self.S_WSTR}, {16*3584 if 'wstr0' not in self.dbg else 0}")
        a(f"s_sub_u32 s{self.S_WOFF}, s{self.S_WOFF}, s{self.S_WSTR}")
        self.srd(SRD_A, S_W1, 512 * 3584)
        self.srd(SRD_B, S_B1, 1792 * 2)
        a("v_lshrrev_b32 v12, 5, v0")
        a("v_lshlrev_b32 v12, 3, v12")
        a("s_lshl_b32 s52, s51, 6")
        for b in range(4):
            a(f"buffer_load_dwordx2 {vr(144+2*b,2)}, v12, s[{SRD_B}:{SRD_B+3}], s52 offen offset:{16*b}")
        self.gemm_setup_addrs()
        self.zero_acc()
        self.cs4_init()

    def cs4_init(self):
        a = self.a
        a("v_lshrrev_b32 v12, 4, v0")
        a("v_xor_b32 v12, v12, v0")
        a("v_and_b32 v12, 1, v12")
        a("v_cmp_eq_u32 vcc, 0, v12")
        a(f"v_mov_b32 v13, s{S_ONES}")
        for i in range(4):
            a(f"v_mov_b32 v{self.CS4+i}, 0")
        for i in range(4):
            a(f"v_cndmask_b32 v{self.PAR+i}, 0, v13, vcc")

    def role_ffn(self):
        a = self.a
        a.label("L_role_ffn")
        if 'nopf' not in self.dbg:
            a(f"s_cmp_lg_u32 s{S_W}, 9")
            a("s_cbranch_scc1 L_nopf")
            a("s_getpc_b64 s[46:47]")
            a.label("L_pc")
            a(f"s_sub_u32 s46, s46, L_pc-{KN}")
            a("s_subb_u32 s47, s47, 0")
            a("s_lshr_b32 s48, s2, 3")
            a("v_lshlrev_b32 v12, 4, v0")
            for k in range(2):
                a(f"s_cmp_ge_u32 s48, (L_code_end-{KN}+1023)/1024")
                a("s_cbranch_scc1 L_nopf")
                a("s_lshl_b32 s49, s48, 10")
                a("v_add_u32 v13, s49, v12")
                a(f"global_load_dwordx4 {vr(160+4*k,4)}, v13, s[46:47]")
                a("s_add_u32 s48, s48, 32")
            a.label("L_nopf")
        a("s_waitcnt lgkmcnt(0)")
        if 'tq' in self.dbg:
            a(f"s_cmp_eq_u32 s{S_W}, 10")
            a("s_cbranch_scc0 L_tch2")
            self.srd(SRD_B, S_WQKV, 512 * 3072)
            a("s_bfe_u32 s46, s2, 0x30003")
            a(f"s_mul_i32 s46, s46, {64*3072}")
            a(f"s_mul_i32 s47, s{S_J}, 192")
            a("s_and_b32 s47, s47, 0xffffff80")
            a("s_add_u32 s46, s46, s47")
            a("v_lshrrev_b32 v12, 1, v0")
            a("v_mul_u32_u24 v12, 3072, v12")
            a("v_and_b32 v13, 1, v0")
            a("v_lshl_add_u32 v12, v13, 7, v12")
            for i in range(2):
                a(f"buffer_load_dword v{160+i}, v12, s[{SRD_B}:{SRD_B+3}], s46 offen")
                a(f"s_add_u32 s46, s46, {32*3072}")
            a.label("L_tch2")
        self.srd(SRD_WS, S_WS, WS_SIZE)
        self.ffn_setup()
        a("s_barrier")
        tw = [d for d in self.dbg if d.startswith('tw')] or ['tw6']
        if tw[0] != 'tw0':
            a(f"s_cmp_eq_u32 s{S_W}, 10")
            a("s_cbranch_scc0 L_tw_skip")
            a(f"v_mov_b32 v166, {LDS_XF}")
            self.wait_xflags([160, 161, 162, 163], int(tw[0][2:]), 166, 167)
            self.srd(SRD_B, S_W1, 512 * 3584)
            a("s_bfe_u32 s46, s2, 0x30003")
            a(f"s_mul_i32 s46, s46, {64*3584}")
            a(f"s_lshl_b32 s47, s{S_J}, 8")
            a("s_add_u32 s46, s46, s47")
            a("v_lshrrev_b32 v12, 1, v0")
            a("v_mul_u32_u24 v12, 3584, v12")
            a("v_and_b32 v13, 1, v0")
            a("v_lshl_add_u32 v12, v13, 7, v12")
            for i in range(2):
                a(f"buffer_load_dword v{164+i}, v12, s[{SRD_B}:{SRD_B+3}], s46 offen")
                a(f"s_add_u32 s46, s46, {32*3584}")
            a.label("L_tw_skip")
        a(f"s_cmp_lg_u32 s{S_W}, 11")
        a("s_cbranch_scc1 L_ffn_b8")
        self.stats_setup(2)
        for kc in range(8):
            self.stats_chunk(kc, 2)
        self.stats_final(2)
        a.label("L_ffn_b8")
        a("s_barrier")
        a(f"s_cmp_ge_u32 s{S_J}, 14")
        a("s_cbranch_scc1 L_ffn_skip")
        for sl in range(6):
            self.w_dma(sl, self.S_RING)
        a("v_and_b32 v10, 31, v0")
        a(f"v_lshlrev_b32 v10, 2, v10")
        a(f"v_add_u32 v10, {LDS_SCR}, v10")
        for tb in range(4):
            a(f"ds_read_b32 v{152+2*tb}, v10 offset:{tb*128}")
            a(f"ds_read_b32 v{153+2*tb}, v10 offset:{512+tb*128}")
        self.read_nonce(40)
        a("s_waitcnt vmcnt(6) lgkmcnt(0)")
        a(f"v_readfirstlane_b32 s{S_NONCE}, v40")
        for b in range(4):
            a(f"v_lshlrev_b32 v{128+4*b}, 16, v{144+2*b}")
            a(f"v_and_b32 v{129+4*b}, 0xffff0000, v{144+2*b}")
            a(f"v_lshlrev_b32 v{130+4*b}, 16, v{145+2*b}")
            a(f"v_and_b32 v{131+4*b}, 0xffff0000, v{145+2*b}")
        a("s_barrier")
        if 'nos2prio' not in self.dbg: a("s_setprio 3")
        for sl in range(6, 8):
            self.w_dma(sl, self.S_RING)
        self.stamp(4)
        a("s_waitcnt vmcnt(7)")
        self.gemm_first_frags()
        self.gemm_loop(False, False, "ffn")
        self.stamp(5)
        a("s_barrier")
        if 'nogprio' not in self.dbg: a("s_setprio 3")
        a("s_nop 7")
        self.cs16_from_cs4()
        for tb in range(4):
            a(f"v_mov_b32 v{32+2*tb}, v{152+2*tb}")
            a(f"v_mov_b32 v{33+2*tb}, v{153+2*tb}")
        a(f"s_mul_i32 s48, s{S_TG}, {4*112*1024}")
        a("s_lshl_b32 s49, s51, 11")
        a("s_add_u32 s48, s48, s49")
        a(f"s_add_u32 s48, s48, {WS_H}")
        a("v_lshlrev_b32 v10, 4, v0")
        a("s_waitcnt lgkmcnt(0)")
        if 'dumpf' in self.dbg:
            a("s_lshl_b32 s92, s2, 2")
            a(f"s_add_u32 s92, s92, s50")
            a("s_mul_i32 s92, s92, 16384")
            a(f"s_add_u32 s92, s92, {20<<20}")
            a("v_lshlrev_b32 v12, 2, v0")
            regs = list(range(16,32)) + list(range(32,40)) + list(range(128,144)) + list(range(64,80))
            for n, r in enumerate(regs):
                a(f"buffer_store_dword v{r}, v12, s[{SRD_WS}:{SRD_WS+3}], s92 offen offset:{(n%16)*256}")
                if n % 16 == 15: a("s_add_u32 s92, s92, 4096")
        self.tok_epilogue_store(ffn=True)
        if self.stop != "s2": a("s_barrier")
        a(f"s_lshl_b32 s48, s{S_TG}, 8")
        a("s_lshl_b32 s49, s51, 2")
        a("s_add_u32 s48, s48, s49")
        a(f"s_add_u32 s48, s48, {FL2}")
        self.publish_flag(48, 12)
        self.stamp(6)
        a("s_branch L_s3_gemm")
        a.label("L_ffn_skip")
        self.read_nonce(40)
        a("s_waitcnt vmcnt(0) lgkmcnt(0)")
        a(f"v_readfirstlane_b32 s{S_NONCE}, v40")
        a("s_barrier")
        if self.stop != "s2":
            for _ in range(3): a("s_sleep 16")
            a("s_barrier")
        a("s_barrier")
        if self.stop != "s2":
            a("s_barrier")
        a("s_branch L_s3_gemm")

    def attn_ids(self):
        a = self.a
        a(f"s_and_b32 s{S_HEAD}, s2, 7")
        a("s_lshr_b32 s47, s2, 6")
        a("s_lshl_b32 s47, s47, 3")
        a(f"s_or_b32 s{S_HEAD}, s{S_HEAD}, s47")
        a(f"s_bfe_u32 s{S_QB}, s2, 0x30003")
        a(f"s_and_b32 s{S_T}, s2, 7")
        a(f"s_lshl_b32 s{S_T}, s{S_T}, 2")
        a("s_bfe_u32 s47, s2, 0x20003")
        a(f"s_add_u32 s{S_T}, s{S_T}, s47")
        a(f"s_lshr_b32 s{S_C}, s2, 5")

    def poll_flags(self, s_off, n, vt=2, sleep=2):
        a = self.a
        Lp, Ld = self.lab("pf"), self.lab("pfd")
        a(f"v_lshlrev_b32 v{vt}, 2, v0")
        a(f"v_cmp_gt_u32 vcc, {n}, v0")
        a("s_mov_b32 s58, 0")
        a("s_mov_b64 s[62:63], vcc")
        a.label(Lp)
        a(f"buffer_load_dword v{vt+1}, v{vt}, s[{SRD_WS}:{SRD_WS+3}], s{s_off} offen sc1")
        a("s_add_u32 s58, s58, 1")
        a("s_waitcnt vmcnt(0)")
        a(f"v_cmp_eq_u32 vcc, s{S_NONCE}, v{vt+1}")
        a("s_nop 1")
        a("s_and_b64 vcc, vcc, s[62:63]")
        a("s_cmp_eq_u64 vcc, s[62:63]")
        a(f"s_cbranch_scc1 {Ld}")
        a("s_cmp_ge_u32 s58, 0x4000")
        a(f"s_cbranch_scc1 {Ld}")
        a(f"s_sleep {sleep}")
        a(f"s_branch {Lp}")
        a.label(Ld)

    def clear_o(self):
        a = self.a
        L = self.lab("co")
        a(f"s_cmp_lg_u32 s{S_W}, 9")
        a(f"s_cbranch_scc1 {L}")
        a(f"s_lshl_b32 s46, s{S_QB}, 8")
        a(f"s_add_u32 s46, s46, s{S_HEAD}")
        a("s_lshl_b32 s46, s46, 10")
        a(f"s_add_u32 s46, s46, {WS_O}")
        for r in range(4): a(f"v_mov_b32 v{152+r}, -1")
        a("v_lshlrev_b32 v156, 4, v0")
        for i in range(8):
            a(f"buffer_store_dwordx4 v[152:155], v156, s[{SRD_WS}:{SRD_WS+3}], s46 offen sc1")
            a(f"s_add_u32 s46, s46, {32*1024}")
        a(f"s_lshl_b32 s48, s{S_QB}, 8")
        a(f"s_lshl_b32 s49, s{S_HEAD}, 2")
        a("s_add_u32 s48, s48, s49")
        a(f"s_add_u32 s48, s48, {FL3}")
        self.publish_flag(48, 157)
        a.label(L)

    def s2_idle(self):
        a = self.a
        a.label("L_s2_idle")
        if self.stop == "s2":
            a("s_barrier")
            a("s_branch L_fin")

    QA, QB, KA, KB, VA, VB = 4, 8, 12, 16, 20, 28
    SA, SB, PA, PB, OA, OB = 40, 56, 72, 80, 88, 104
    VK, VKN, VV0, VV1, VV0N, VV1N, VWA = 120, 121, 122, 123, 124, 125, 126
    TP = 2064
    LDS_W2 = 64 * 2064
    LDS_SYNC = 64 * 2064 + 4 * 6144
    S_NXT = 42

    def stg(self, i):
        return 128 + 8 * (i % 5)

    def mf32(self, d, x, y, c):
        self.a(f"v_mfma_f32_32x32x16_bf16 {vr(d,16)}, {vr(x,4)}, {vr(y,4)}, {c if c == 0 else vr(c,16)}")

    def attn_phase(self, S, P, m1, m2, m3, x1=None, x3=None):
        a = self.a
        E = lambda k: a(f"v_exp_f32 v{S+k}, v{S+k}")
        C = lambda k: a(f"v_cvt_pk_bf16_f32 v{P+k}, v{S+2*k}, v{S+2*k+1}")
        if 'noqk' not in self.dbg: self.mf32(*m1)
        if x1: x1()
        if 'noexp' in self.dbg: E = lambda k: a(f"v_mov_b32 v{S+k}, v{S+k}")
        E(0); E(1); E(2); E(3); C(0); E(4); E(5); C(1)
        if 'nopv' not in self.dbg: self.mf32(*m2)
        E(6); E(7); C(2); E(8); E(9); C(3); E(10); E(11)
        if 'nopv' not in self.dbg: self.mf32(*m3)
        if x3: x3()
        C(4); E(12); E(13); C(5); E(14); E(15); C(6); C(7)

    def attn_tile(self, i, first_group):
        a = self.a
        ev = (i & 1) == 0
        Kc, Kn = (self.KA, self.KB) if ev else (self.KB, self.KA)
        Vc, Vp = (self.VA, self.VB) if ev else (self.VB, self.VA)
        nxt = i == 7
        off = 0 if nxt else (i + 1) * self.TP
        rk, r0, r1 = (self.VKN, self.VV0N, self.VV1N) if nxt else (self.VK, self.VV0, self.VV1)
        def x1():
            if first_group and i <= 6:
                st = self.stg(i + 1)
                a(f"s_waitcnt vmcnt({[4, 4, 4, 4, 4, 2, 0][i]})")
                a(f"ds_write_b128 v{self.VWA}, {vr(st,4)} offset:{(i+1)*self.TP}")
                a(f"ds_write_b128 v{self.VWA}, {vr(st+4,4)} offset:{(i+1)*self.TP+1024}")
                if i + 4 <= 7: self.kv_load(i + 4, self.stg(i + 4))
            a(f"ds_read_b128 {vr(Kn,4)}, v{rk} offset:{off}")
        def x3():
            a(f"ds_read_b128 {vr(Vp,4)}, v{r0} offset:{off}")
            a(f"ds_read_b128 {vr(Vp+4,4)}, v{r1} offset:{off}")
        if first_group:
            a("s_waitcnt lgkmcnt(0)")
            if i == 7: a("s_barrier")
        else:
            a("s_waitcnt lgkmcnt(0)")
        self.attn_phase(self.SA, self.PA, (self.SB, Kc, self.QB, 0), (self.OB, Vp, self.PB, self.OB),
                        (self.OB, Vp + 4, self.PB + 4, self.OB), x1, x3)
        a("s_waitcnt lgkmcnt(2)")
        self.attn_phase(self.SB, self.PB, (self.SA, Kn, self.QA, 0), (self.OA, Vc, self.PA, self.OA),
                        (self.OA, Vc + 4, self.PA + 4, self.OA))

    def kv_load(self, i, st):
        a = self.a
        a(f"buffer_load_dwordx4 {vr(st,4)}, v1, s[{SRD_WS}:{SRD_WS+3}], s44 offen offset:{(i&3)*1024} sc1")
        a(f"buffer_load_dwordx4 {vr(st+4,4)}, v1, s[{SRD_WS}:{SRD_WS+3}], s45 offen offset:{(i&3)*1024} sc1")

    def group_advance(self):
        a = self.a
        G = 8 * self.TP
        a(f"v_mov_b32 v{self.VK}, v{self.VKN}")
        a(f"v_mov_b32 v{self.VV0}, v{self.VV0N}")
        a(f"v_mov_b32 v{self.VV1}, v{self.VV1N}")
        a(f"s_add_u32 s{self.S_NXT}, s{self.S_NXT}, {G}")
        a(f"s_cmp_eq_u32 s{self.S_NXT}, s59")
        a(f"s_cselect_b32 s46, {4*G}, 0")
        a(f"s_sub_u32 s{self.S_NXT}, s{self.S_NXT}, s46")
        a(f"v_add_u32 v{self.VKN}, s{self.S_NXT}, v1")
        a(f"v_add_u32 v{self.VV0N}, s{self.S_NXT}, v2")
        a(f"v_add_u32 v{self.VV1N}, s{self.S_NXT}, v3")

    def lds_spin(self, vaddr, n, vdst, want):
        a = self.a
        Lp, Ld = self.lab("sp"), self.lab("spd")
        a("s_mov_b32 s58, 0")
        a.label(Lp)
        a(f"ds_read_b{32*n} {vr(vdst,n)}, v{vaddr}")
        a("s_add_u32 s58, s58, 1")
        a("s_waitcnt lgkmcnt(0)")
        if n == 4:
            a(f"v_min3_u32 v{vdst}, v{vdst}, v{vdst+1}, v{vdst+2}")
            a(f"v_min_u32 v{vdst}, v{vdst}, v{vdst+3}")
        a("s_nop 0")
        a(f"v_readfirstlane_b32 s57, v{vdst}")
        a("s_cmp_ge_u32 s58, 0x100000")
        a(f"s_cbranch_scc1 {Ld}")
        a(f"s_cmp_lt_u32 s57, {want}")
        a(f"s_cbranch_scc1 {Lp}")
        a.label(Ld)

    def role_attn(self):
        a = self.a
        G = 8 * self.TP
        a.label("L_s3_attn")
        self.attn_ids()
        a("v_lshlrev_b32 v1, 4, v0")
        a(f"s_lshl_b32 s43, s{S_HEAD}, 16")
        a(f"s_lshl_b32 s47, s{S_W}, 13")
        a("s_add_u32 s44, s43, s47")
        a(f"s_add_u32 s45, s44, {WS_V}")
        a(f"s_add_u32 s44, s44, {WS_K}")
        a(f"s_lshl_b32 s46, s{S_QB}, 13")
        a("s_add_u32 s43, s43, s46")
        a(f"s_and_b32 s47, s{S_W}, 3")
        a("s_lshl_b32 s47, s47, 11")
        a("s_add_u32 s43, s43, s47")
        a(f"s_mul_i32 s46, s{S_W}, {G}")
        a(f"v_add_u32 v{self.VWA}, s46, v1")
        a(f"v_mov_b32 v{self.VK}, v{self.VWA}")
        a("v_lshrrev_b32 v2, 5, v0")
        a("v_lshlrev_b32 v2, 8, v2")
        a("v_and_b32 v3, 15, v0")
        a("v_lshl_add_u32 v2, v3, 4, v2")
        a("v_add_u32 v3, 1536, v2")
        a("v_add_u32 v2, 1024, v2")
        a("v_and_b32 v36, 31, v0")
        a("v_cmp_lt_u32 vcc, 15, v36")
        a("v_cmp_eq_u32 s[50:51], 16, v36")
        a(f"v_mov_b32 v37, {LDS_DROP if 'allones' not in self.dbg else 2048}")
        a("v_mov_b32 v38, 2048")
        a("s_nop 0")
        a("v_cndmask_b32 v37, v37, v38, s[50:51]")
        a("s_nop 0")
        a("v_cndmask_b32 v2, v2, v37, vcc")
        a("v_cndmask_b32 v3, v3, v37, vcc")
        a(f"v_add_u32 v{self.VV0}, s46, v2")
        a(f"v_add_u32 v{self.VV1}, s46, v3")
        a(f"s_lshr_b32 s47, s{S_W}, 2")
        a(f"s_mul_i32 s47, s47, {4*G}")
        a(f"s_add_u32 s59, s47, {4*G}")
        a(f"s_add_u32 s{self.S_NXT}, s46, {G}")
        a(f"s_cmp_eq_u32 s{self.S_NXT}, s59")
        a(f"s_cselect_b32 s47, {4*G}, 0")
        a(f"s_sub_u32 s{self.S_NXT}, s{self.S_NXT}, s47")
        a(f"v_add_u32 v{self.VKN}, s{self.S_NXT}, v1")
        a(f"v_add_u32 v{self.VV0N}, s{self.S_NXT}, v2")
        a(f"v_add_u32 v{self.VV1N}, s{self.S_NXT}, v3")
        a(f"v_mul_u32_u24 v36, {self.TP}, v0")
        a("v_add_u32 v36, s46, v36")
        for r in range(4): a(f"v_mov_b32 v{40+r}, s{S_ONES}")
        a("v_lshlrev_b32 v37, 2, v0")
        a(f"v_add_u32 v37, {self.LDS_SYNC}, v37")
        a("v_mov_b32 v38, 0")
        for r in range(32):
            a(f"v_mov_b32 v{self.OA+r}, 0")
        for r in range(8):
            a(f"v_mov_b32 v{self.PB+r}, 0")
            a(f"v_mov_b32 v{self.VB+r}, 0")
        a("v_lshrrev_b32 v127, 3, v0")
        a(f"s_lshl_b32 s48, s{S_W}, 3")
        a("v_add_u32 v127, s48, v127")
        a("v_lshlrev_b32 v127, 10, v127")
        a("v_and_b32 v39, 7, v0")
        a("v_lshl_add_u32 v127, v39, 4, v127")
        a(f"s_lshl_b32 s61, s{S_T}, 16")
        a(f"s_lshl_b32 s48, s{S_C}, 7")
        a("s_add_u32 s61, s61, s48")
        a(f"s_lshl_b32 s60, s{S_QB}, 3")
        a(f"s_and_b32 s48, s{S_W}, 3")
        a("s_lshl_b32 s48, s48, 1")
        a("s_add_u32 s60, s60, s48")
        a(f"s_lshr_b32 s48, s{S_W}, 2")
        a("s_add_u32 s60, s60, s48")
        a("s_lshl_b32 s60, s60, 5")
        a(f"s_add_u32 s60, s60, s{S_HEAD}")
        a("s_lshl_b32 s60, s60, 10")
        a(f"s_add_u32 s60, s60, {WS_O}")
        a("s_barrier")
        a(f"s_cmp_lg_u32 s{S_W}, 3")
        a("s_cbranch_scc1 L_at_np")
        a(f"s_lshr_b32 s47, s{S_HEAD}, 1")
        a("s_lshl_b32 s47, s47, 8")
        a(f"s_add_u32 s47, s47, {FL1}")
        ps = [d for d in self.dbg if d.startswith('ps')]
        pd = [d for d in self.dbg if d.startswith('pd')]
        if pd:
            for _ in range(int(pd[0][2:])): a("s_sleep 16")
        self.poll_flags(47, 48, vt=44, sleep=int(ps[0][2:]) if ps else 2)
        self.stamp(4)
        a.label("L_at_np")
        a("s_barrier")
        a(f"buffer_load_dwordx4 {vr(self.QA,4)}, v1, s[{SRD_WS}:{SRD_WS+3}], s43 offen sc1")
        a(f"buffer_load_dwordx4 {vr(self.QB,4)}, v1, s[{SRD_WS}:{SRD_WS+3}], s43 offen offset:1024 sc1")
        self.kv_load(0, self.stg(0))
        self.stamp(7)
        self.cstamp(0)
        a("s_setprio 2")
        a("s_mov_b64 exec, 0xff")
        a(f"ds_write_b128 v36, v[40:43] offset:2048")
        a("s_mov_b64 exec, -1")
        a(f"s_cmp_lg_u32 s{S_W}, 0")
        a("s_cbranch_scc1 L_at_nz")
        a("s_mov_b64 exec, 0xfff")
        a("ds_write_b32 v37, v38")
        a("s_mov_b64 exec, -1")
        a.label("L_at_nz")
        for i in range(1, 3):
            self.kv_load(i, self.stg(i))
        a("s_waitcnt vmcnt(4)")
        self.stamp(8)
        st = self.stg(0)
        a(f"ds_write_b128 v{self.VWA}, {vr(st,4)}")
        a(f"ds_write_b128 v{self.VWA}, {vr(st+4,4)} offset:1024")
        self.kv_load(3, self.stg(3))
        a("s_add_u32 s44, s44, 4096")
        a("s_add_u32 s45, s45, 4096")
        a(f"ds_read_b128 {vr(self.KA,4)}, v{self.VK}")
        a(f"ds_read_b128 {vr(self.VA,4)}, v{self.VV0}")
        a(f"ds_read_b128 {vr(self.VA+4,4)}, v{self.VV1}")
        a("s_waitcnt lgkmcnt(0)")
        self.mf32(self.SA, self.KA, self.QA, 0)
        a("s_nop 7")
        a("s_nop 3")
        for i in range(8):
            if 'g0det' in self.dbg: self.stamp(i)
            self.attn_tile(i, True)
        self.group_advance()
        self.stamp(9)
        self.srd(SRD_A, S_X, 2048 * 1024)
        a(f"buffer_load_dwordx4 v[160:163], v127, s[{SRD_A}:{SRD_A+3}], s61 offen")
        self.srd(SRD_B, S_B2, 1024)
        a("v_and_b32 v36, 7, v0")
        a("v_lshlrev_b32 v36, 4, v36")
        a(f"s_lshl_b32 s48, s{S_C}, 7")
        a(f"buffer_load_dwordx4 v[164:167], v36, s[{SRD_B}:{SRD_B+3}], s48 offen")
        a("s_mov_b32 s43, 0")
        a.label("L_attn_loop")
        if 'noaprio' not in self.dbg:
            a("s_cmp_eq_u32 s43, 1")
            a("s_cbranch_scc0 L_ap1")
            a("s_setprio 1")
            a.label("L_ap1")
            a("s_cmp_eq_u32 s43, 2")
            a("s_cbranch_scc0 L_ap2")
            a("s_setprio 0")
            a.label("L_ap2")
        for i in range(8):
            self.attn_tile(i, False)
        self.group_advance()
        a("s_add_u32 s43, s43, 1")
        a("s_cmp_lt_u32 s43, 3")
        a("s_cbranch_scc1 L_attn_loop")
        self.mf32(self.OB, self.VB, self.PB, self.OB)
        self.mf32(self.OB, self.VB + 4, self.PB + 4, self.OB)
        self.stamp(10)
        self.cstamp(1)
        a(f"s_lshr_b32 s47, s{S_W}, 2")
        a(f"v_mov_b32 v36, {self.LDS_SYNC}")
        self.lds_spin(36, 4, 40, 1)
        a("s_nop 7")
        a("s_cmp_eq_u32 s47, 0")
        a("s_cbranch_scc1 L_at_ns")
        for r in range(9): a(f"v_swap_b32 v{self.OA+r}, v{self.OB+r}")
        for r in range(4): a(f"v_swap_b32 v{self.QA+r}, v{self.QB+r}")
        a.label("L_at_ns")
        XP = 9 * 256
        a(f"s_mul_i32 s46, s{S_W}, {XP}")
        a(f"s_add_u32 s46, s46, {self.LDS_W2}")
        a("v_add_u32 v36, s46, v1")
        a("v_lshlrev_b32 v37, 2, v0")
        a("v_add_u32 v37, s46, v37")
        a(f"ds_write_b128 v36, {vr(self.OB,4)}")
        a(f"ds_write_b128 v36, {vr(self.OB+4,4)} offset:1024")
        a(f"ds_write_b32 v37, v{self.OB+8} offset:2048")
        a(f"s_lshl_b32 s48, s{S_W}, 2")
        a(f"s_add_u32 s48, s48, {self.LDS_SYNC+16}")
        a("v_mov_b32 v38, s48")
        a("v_mov_b32 v39, 1")
        a("s_waitcnt lgkmcnt(0)")
        a("ds_write_b32 v38, v39")
        a(f"s_xor_b32 s48, s{S_W}, 4")
        a("s_lshl_b32 s46, s48, 2")
        a(f"s_add_u32 s46, s46, {self.LDS_SYNC+16}")
        a("v_mov_b32 v38, s46")
        self.lds_spin(38, 1, 40, 1)
        a(f"s_mul_i32 s46, s48, {XP}")
        a(f"s_add_u32 s46, s46, {self.LDS_W2}")
        a("v_add_u32 v36, s46, v1")
        a("v_lshlrev_b32 v37, 2, v0")
        a("v_add_u32 v37, s46, v37")
        a("ds_read_b128 v[40:43], v36")
        a("ds_read_b128 v[44:47], v36 offset:1024")
        a("ds_read_b32 v48, v37 offset:2048")
        a("s_waitcnt lgkmcnt(0)")
        O = self.OA
        for r in range(9):
            a(f"v_add_f32 v{O+r}, v{O+r}, v{40+r}")
        self.bcast_l()
        a(f"v_mul_f32 v36, 0, v{O}")
        for r in range(1, 8):
            a(f"v_fma_f32 v36, v{O+r}, 0, v36")
        a(f"s_mov_b32 s46, {f2u(2.0**-64):#x}")
        a(f"s_mov_b32 s48, {f2u(2.0**64):#x}")
        a(f"v_cmp_le_f32 s[50:51], s46, v{O+8}")
        a(f"v_cmp_ge_f32 s[52:53], s48, v{O+8}")
        a("v_cmp_eq_f32 vcc, 0, v36")
        a("s_nop 1")
        a("s_and_b64 s[50:51], s[50:51], s[52:53]")
        a("s_and_b64 vcc, vcc, s[50:51]")
        if 'slow' in self.dbg:
            a("s_mov_b64 vcc, 0")
        a("s_cmp_eq_u64 vcc, -1")
        a("s_cbranch_scc0 L_attn_slow")
        a.label("L_attn_norm")
        self.bcast_l()
        a(f"v_rcp_f32 v36, v{O+8}")
        a("s_nop 0")
        for r in range(8):
            a(f"v_mul_f32 v{O+r}, v{O+r}, v36")
        for p in range(4):
            a(f"v_cvt_pk_bf16_f32 v{self.PA+p}, v{O+2*p}, v{O+2*p+1}")
        a(f"v_cmp_eq_u32 vcc, -1, v{self.PA}")
        a("v_mov_b32 v36, 0x7fc07fc0")
        a("s_nop 0")
        a(f"v_cndmask_b32 v{self.PA}, v{self.PA}, v36, vcc")
        a(f"buffer_store_dwordx4 {vr(self.PA,4)}, v1, s[{SRD_WS}:{SRD_WS+3}], s60 offen sc1")
        a("s_branch L_tail_attn")

    def bcast_l(self):
        a = self.a
        a("s_nop 1")
        a(f"v_mov_b32 v37, v{self.OA+8}")
        a("s_nop 1")
        a(f"v_permlane32_swap_b32 v{self.OA+8}, v37")
        a("s_nop 1")

    def attn_slow(self):
        a = self.a
        O, S, P = self.OA, self.SA, self.PA
        a.label("L_attn_slow")
        for r in range(16):
            a(f"v_mov_b32 v{O+r}, 0")
        a(f"v_mov_b32 v136, {f2u(-3.0e38):#x}")
        a("v_mov_b32 v137, v1")
        a("v_mov_b32 v138, v2")
        a("v_mov_b32 v141, v3")
        a("s_mov_b32 s43, 0")
        a.label("L_slow_loop")
        a(f"ds_read_b128 {vr(self.KA,4)}, v137")
        a(f"ds_read_b128 {vr(self.VA,4)}, v138")
        a(f"ds_read_b128 {vr(self.VA+4,4)}, v141")
        a("s_waitcnt lgkmcnt(0)")
        self.mf32(S, self.KA, self.QA, 0)
        a(f"v_add_u32 v137, {self.TP}, v137")
        a(f"v_add_u32 v138, {self.TP}, v138")
        a(f"v_add_u32 v141, {self.TP}, v141")
        a("s_nop 7")
        a("s_nop 7")
        a(f"v_max3_f32 v139, v{S}, v{S+1}, v{S+2}")
        for r in range(3, 15, 2):
            a(f"v_max3_f32 v139, v139, v{S+r}, v{S+r+1}")
        a(f"v_max_f32 v139, v139, v{S+15}")
        a("s_nop 0")
        a("v_mov_b32 v140, v139")
        a("s_nop 1")
        a("v_permlane32_swap_b32 v139, v140")
        a("s_nop 1")
        a("v_max3_f32 v139, v139, v140, v136")
        a("v_sub_f32 v140, v136, v139")
        a("v_exp_f32 v140, v140")
        a("v_mov_b32 v136, v139")
        for r in range(16):
            a(f"v_sub_f32 v{S+r}, v{S+r}, v139")
        for r in range(16):
            a(f"v_exp_f32 v{S+r}, v{S+r}")
        for r in range(9):
            a(f"v_mul_f32 v{O+r}, v{O+r}, v140")
        for p in range(8):
            a(f"v_cvt_pk_bf16_f32 v{P+p}, v{S+2*p}, v{S+2*p+1}")
        a("s_nop 1")
        self.mf32(O, self.VA, P, O)
        self.mf32(O, self.VA + 4, P + 4, O)
        a("s_add_u32 s43, s43, 1")
        a("s_nop 7")
        a("s_nop 7")
        a("s_cmp_lt_u32 s43, 64")
        a("s_cbranch_scc1 L_slow_loop")
        a("s_branch L_attn_norm")

    def role_down(self):
        a = self.a
        a.label("L_s3_gemm")
        if self.stop == "s2":
            a("s_branch L_fin")
        if 'nogprio' not in self.dbg: a("s_setprio 3")
        self.attn_ids()
        a(f"s_sub_u32 s50, s{S_W}, 8")
        self.clear_o()
        self.srd(SRD_A, S_W2, 1792 * 1024)
        ACC, HST, WF = 64, 16, 48
        a("v_lshrrev_b32 v4, 2, v0")
        a("v_lshlrev_b32 v4, 10, v4")
        a("v_and_b32 v5, 3, v0")
        a("v_lshl_add_u32 v4, v5, 4, v4")
        a("s_mul_i32 s44, s50, 6144")
        a(f"s_add_u32 s44, s44, {self.LDS_W2}")
        a("v_lshrrev_b32 v6, 5, v0")
        a("v_bfe_u32 v7, v0, 2, 2")
        a("v_lshl_add_u32 v7, v6, 2, v7")
        a("v_lshlrev_b32 v7, 6, v7")
        a("v_bfe_u32 v8, v0, 4, 1")
        a("v_lshl_add_u32 v7, v8, 5, v7")
        a("v_and_b32 v8, 3, v0")
        a("v_lshl_add_u32 v7, v8, 3, v7")
        a("v_add_u32 v7, s44, v7")
        a("v_lshlrev_b32 v1, 4, v0")
        a("s_mul_i32 s45, s50, 28")
        a("s_lshl_b32 s46, s45, 14")
        a(f"s_lshl_b32 s47, s{S_C}, 7")
        a("s_add_u32 s46, s46, s47")
        a(f"s_mul_i32 s47, s{S_T}, {2*112*1024}")
        a("s_lshl_b32 s48, s45, 10")
        a("s_add_u32 s47, s47, s48")
        a(f"s_add_u32 s47, s47, {WS_H}")
        a(f"s_add_u32 s48, s47, {112*1024}")
        for r in range(64):
            a(f"v_mov_b32 v{ACC+r}, 0")
        def w2dma(slot):
            for cb in range(2):
                a(f"s_add_u32 m0, s44, {slot*2048 + cb*1024}")
                a(f"s_add_u32 s49, s46, {cb*64}")
                a(f"buffer_load_dwordx4 v4, s[{SRD_A}:{SRD_A+3}], s49 offen lds")
            a("s_add_u32 s46, s46, 16384")
        def hload(slot):
            a(f"buffer_load_dwordx4 {vr(HST+8*slot,4)}, v1, s[{SRD_WS}:{SRD_WS+3}], s47 offen sc1")
            a(f"buffer_load_dwordx4 {vr(HST+8*slot+4,4)}, v1, s[{SRD_WS}:{SRD_WS+3}], s48 offen sc1")
            a("s_add_u32 s47, s47, 1024")
            a("s_add_u32 s48, s48, 1024")
        a(f"s_lshr_b32 s51, s{S_T}, 1")
        a("s_lshl_b32 s51, s51, 8")
        a("s_mul_i32 s52, s50, 56")
        a("s_add_u32 s51, s51, s52")
        a(f"s_add_u32 s51, s51, {FL2}")
        if 'nodown' in self.dbg:
            a(f"s_lshl_b32 s48, s50, 2")
            a(f"s_add_u32 s48, s48, {self.LDS_SYNC}")
            a("v_mov_b32 v2, s48")
            a("v_mov_b32 v3, 1")
            a("ds_write_b32 v2, v3")
            a("s_branch L_tail_gemm")
        self.poll_flags(51, 14)
        self.stamp(7)

        for sl in range(3):
            w2dma(sl); hload(sl)
        if 'glow' in self.dbg: a("s_setprio 0")
        def kstep(sl, vm, pre):
            a(f"s_waitcnt vmcnt({vm})")
            for cb in range(2):
                a(f"ds_read_b64_tr_b16 {vr(WF+4*cb,2)}, v7 offset:{sl*2048+cb*1024}")
                a(f"ds_read_b64_tr_b16 {vr(WF+4*cb+2,2)}, v7 offset:{sl*2048+cb*1024+512}")
            a("s_waitcnt lgkmcnt(0)")
            for tb in range(2):
                for cb in range(2):
                    acc = ACC + 16 * (2 * tb + cb)
                    a(f"v_mfma_f32_32x32x16_bf16 {vr(acc,16)}, {vr(WF+4*cb,4)}, {vr(HST+8*sl+4*tb,4)}, {vr(acc,16)}")
                    if 'gspace' in self.dbg: a("s_sleep 1")
                    if 'gspace2' in self.dbg: a("s_sleep 2")
            if pre:
                w2dma(sl); hload(sl)
        a("s_mov_b32 s43, 0")
        a.label("L_down_loop")
        for sl in range(3): kstep(sl, 8, True)
        a("s_add_u32 s43, s43, 1")
        a("s_cmp_lt_u32 s43, 8")
        a("s_cbranch_scc1 L_down_loop")
        kstep(0, 8, True)
        kstep(1, 8, False)
        kstep(2, 4, False)
        kstep(0, 0, False)
        self.srd(SRD_A, S_WO, 512 * 1024)
        a("v_lshrrev_b32 v4, 3, v0")
        a("v_lshlrev_b32 v4, 10, v4")
        a("v_and_b32 v5, 7, v0")
        a("v_lshl_add_u32 v4, v5, 4, v4")
        a("s_lshl_b32 s46, s50, 17")
        a(f"s_lshl_b32 s47, s{S_C}, 7")
        a("s_add_u32 s46, s46, s47")
        for i in range(16):
            a(f"buffer_load_dwordx4 {vr(self.wo_reg(i),4)}, v4, s[{SRD_A}:{SRD_A+3}], s46 offen")
            a("s_add_u32 s46, s46, 8192")
        a(f"s_lshl_b32 s48, s50, 2")
        a(f"s_add_u32 s48, s48, {self.LDS_SYNC}")
        a("v_mov_b32 v2, s48")
        a("v_mov_b32 v3, 1")
        a("ds_write_b32 v2, v3")
        self.stamp(8)
        a("s_branch L_tail_gemm")

    PPITCH, PPART, PBASE = 272, 64 * 272, 4 * 64 * 272

    def wo_reg(self, i):
        return 16 + 4 * i if i < 8 else 128 + 4 * (i - 8)

    def part_write(self, acc_of, tbs, part_sreg):
        a = self.a
        for tb in tbs:
            for cb in range(2):
                acc = acc_of(tb, cb)
                for b in range(4):
                    a(f"ds_write_b128 v9, {vr(acc+4*b,4)} offset:{tb*32*self.PPITCH + (32*cb+8*b)*4}")

    def tail(self):
        a = self.a
        a.label("L_tail_gemm")
        a(f"s_cmp_lg_u32 s{S_W}, 8")
        a("s_cbranch_scc1 L_tail_g1")
        a(f"s_lshr_b32 s51, s{S_T}, 2")
        a("s_lshl_b32 s51, s51, 8")
        a(f"s_add_u32 s51, s51, {FL3}")
        self.poll_flags(51, 32, vt=2)
        self.stamp(9)
        a.label("L_tail_g1")
        a("v_bfe_u32 v6, v0, 2, 1")
        a("v_lshlrev_b32 v6, 10, v6")
        a("v_lshrrev_b32 v7, 3, v0")
        a("v_lshl_add_u32 v6, v7, 6, v6")
        a("v_and_b32 v7, 3, v0")
        a("v_lshl_add_u32 v6, v7, 4, v6")
        a("s_lshl_b32 s44, s50, 14")
        a("v_add_u32 v6, s44, v6")
        a("v_and_b32 v9, 31, v0")
        a(f"v_mul_u32_u24 v9, {self.PPITCH}, v9")
        a("v_lshrrev_b32 v10, 5, v0")
        a("v_lshl_add_u32 v9, v10, 4, v9")
        a(f"s_mul_i32 s44, s50, {self.PPART}")
        a(f"s_add_u32 s44, s44, {self.PBASE}")
        a("v_add_u32 v9, s44, v9")
        a("s_waitcnt vmcnt(0)")
        a("s_barrier")
        for i in range(16):
            a(f"ds_write_b128 v6, {vr(self.wo_reg(i),4)} offset:{(i>>1)*2048 + (i&1)*512}")
        a("s_waitcnt lgkmcnt(0)")
        a("s_barrier")
        self.part_write(lambda tb, cb: 64 + 16 * (2 * tb + cb), (0, 1), None)
        a("s_waitcnt lgkmcnt(0)")
        a("s_barrier")
        a("s_barrier")
        a("s_branch L_fin")
        a.label("L_tail_attn")
        a(f"s_and_b32 s44, s{S_W}, 1")
        a(f"s_lshr_b32 s45, s{S_W}, 1")
        a(f"s_lshl_b32 s52, s{S_T}, 1")
        a("s_add_u32 s52, s52, s44")
        a("s_lshl_b32 s52, s52, 15")
        a("s_lshl_b32 s48, s45, 13")
        a("s_add_u32 s52, s52, s48")
        a(f"s_add_u32 s52, s52, {WS_O}")
        a("s_add_u32 s53, s52, 4096")
        OF, ACC = 96, 64
        a("v_mov_b32 v8, v127")
        def oload(k):
            a(f"buffer_load_dwordx4 {vr(OF+4*k,4)}, v1, s[{SRD_WS}:{SRD_WS+3}], s{52+(k>>2)} offen offset:{(k&3)*1024} sc1")
        a("s_barrier")
        self.stamp(11)
        for k in range(8): oload(k)
        a("v_lshrrev_b32 v5, 3, v0")
        a(f"s_lshl_b32 s46, s{S_W}, 3")
        a("v_add_u32 v5, s46, v5")
        a("v_and_b32 v6, 7, v0")
        a(f"v_mul_u32_u24 v10, {self.PPITCH}, v5")
        a("v_lshl_add_u32 v10, v6, 5, v10")
        a(f"v_add_u32 v11, {self.PBASE}, v10")
        a("v_lshrrev_b32 v6, 5, v0")
        a("v_bfe_u32 v7, v0, 2, 2")
        a("v_lshl_add_u32 v7, v6, 2, v7")
        a("v_lshlrev_b32 v7, 6, v7")
        a("v_bfe_u32 v9, v0, 4, 1")
        a("v_lshl_add_u32 v7, v9, 5, v7")
        a("v_and_b32 v9, 3, v0")
        a("v_lshl_add_u32 v7, v9, 3, v7")
        a("s_lshl_b32 s48, s45, 14")
        a("v_add_u32 v7, s48, v7")
        a("v_and_b32 v9, 31, v0")
        a(f"v_mul_u32_u24 v9, {self.PPITCH}, v9")
        a("v_lshl_add_u32 v9, v6, 4, v9")
        a(f"s_mul_i32 s48, s45, {self.PPART}")
        a(f"s_mul_i32 s49, s44, {32*self.PPITCH}")
        a("s_add_u32 s48, s48, s49")
        a("v_add_u32 v9, s48, v9")
        for r in range(32):
            a(f"v_mov_b32 v{ACC+r}, 0")
        a("s_barrier")
        wreg = lambda k: (128 + 8 * k) if k < 4 else (32 + 8 * (k - 4))
        for k0 in (0, 3, 6):
            for k in range(k0, min(k0 + 3, 8)):
                for cb in range(2):
                    a(f"ds_read_b64_tr_b16 {vr(wreg(k)+4*cb,2)}, v7 offset:{k*2048+cb*1024}")
                    a(f"ds_read_b64_tr_b16 {vr(wreg(k)+4*cb+2,2)}, v7 offset:{k*2048+cb*1024+512}")
            a("s_waitcnt lgkmcnt(0)")
        a("s_barrier")
        for half in range(2):
            for pp in range(2):
                a(f"ds_read_b128 v[12:15], v11 offset:{(2*pp)*self.PPART + 16*half}")
                a(f"ds_read_b128 v[16:19], v11 offset:{(2*pp+1)*self.PPART + 16*half}")
                a("s_waitcnt lgkmcnt(0)")
                for e in range(4):
                    if pp == 0: a(f"v_add_f32 v{20+4*half+e}, v{12+e}, v{16+e}")
                    else:
                        a(f"v_add_f32 v{12+e}, v{12+e}, v{16+e}")
                        a(f"v_add_f32 v{20+4*half+e}, v{20+4*half+e}, v{12+e}")
        a("s_waitcnt vmcnt(0)")
        for e in range(4):
            a(f"v_lshlrev_b32 v28, 16, v{164+e}")
            a(f"v_and_b32 v29, 0xffff0000, v{164+e}")
            a(f"v_add_f32 v{20+2*e}, v{20+2*e}, v28")
            a(f"v_add_f32 v{21+2*e}, v{21+2*e}, v29")
        Lchk, Lok, Lrnd = self.lab("ochk"), self.lab("ook"), self.lab("ornd")
        self.stamp(3) if 'taildet' in self.dbg else None
        a("s_mov_b32 s58, 0")
        a("s_mov_b32 s55, 0xff")
        a.label(Lchk)
        for k in range(8):
            Ln, Lr = self.lab("on"), self.lab("or")
            a(f"s_bitcmp1_b32 s55, {k}")
            a(f"s_cbranch_scc0 {Ln}")
            a(f"v_cmp_eq_u32 vcc, -1, v{OF+4*k}")
            a("s_nop 1")
            a("s_cmp_eq_u64 vcc, 0")
            a(f"s_cbranch_scc0 {Lr}")
            for cb in range(2):
                a(f"v_mfma_f32_32x32x16_bf16 {vr(ACC+16*cb,16)}, {vr(wreg(k)+4*cb,4)}, {vr(OF+4*k,4)}, {vr(ACC+16*cb,16)}")
            a(f"s_bitset0_b32 s55, {k}")
            a(f"s_branch {Ln}")
            a.label(Lr)
            oload(k)
            if 'inorder' in self.dbg: a(f"s_branch {Lrnd}")
            a.label(Ln)
        a("s_cmp_eq_u32 s55, 0")
        a(f"s_cbranch_scc1 {Lok}")
        a.label(Lrnd)
        a("s_add_u32 s58, s58, 1")
        a("s_waitcnt vmcnt(0)")
        a("s_cmp_lt_u32 s58, 0x4000")
        a(f"s_cbranch_scc1 {Lchk}")
        a.label(Lok)
        if 'loopdet' not in self.dbg: self.stamp(5)
        if self.stamps: a("s_mov_b32 s64, s58")
        for e in range(8):
            a(f"v_mul_f32 v{12+e}, {f2u(-math.log2(math.e)):#x}, v{20+e}")
        for e in range(8):
            a(f"v_exp_f32 v{12+e}, v{12+e}")
        self.part_write(lambda tb, cb: ACC + 16 * cb, (0,), None)
        for e in range(8):
            a(f"v_add_f32 v{12+e}, 1.0, v{12+e}")
        for e in range(8):
            a(f"v_rcp_f32 v{12+e}, v{12+e}")
        self.srd(SRD_B, S_OUT, 2048 * 1024)
        for e in range(8):
            a(f"v_mul_f32 v{20+e}, v{20+e}, v{12+e}")
        a("s_waitcnt lgkmcnt(0)")
        a("s_barrier")
        if 'loopdet' not in self.dbg: self.stamp(6)
        for p in range(4):
            a(f"ds_read_b128 {vr(32+8*p,4)}, v10 offset:{p*self.PPART}")
            a(f"ds_read_b128 {vr(36+8*p,4)}, v10 offset:{p*self.PPART+16}")
        a("s_waitcnt lgkmcnt(0)")
        for e in range(8):
            a(f"v_add_f32 v{32+e}, v{32+e}, v{40+e}")
            a(f"v_add_f32 v{48+e}, v{48+e}, v{56+e}")
        for e in range(8):
            a(f"v_add_f32 v{96+e}, v{32+e}, v{48+e}")
        for e in range(4):
            a(f"v_lshlrev_b32 v28, 16, v{160+e}")
            a(f"v_and_b32 v29, 0xffff0000, v{160+e}")
            a(f"v_fma_f32 v{96+2*e}, v{96+2*e}, v{20+2*e}, v28")
            a(f"v_fma_f32 v{97+2*e}, v{97+2*e}, v{21+2*e}, v29")
        for e in range(4):
            a(f"v_cvt_pk_bf16_f32 v{104+e}, v{96+2*e}, v{97+2*e}")
        sc = "" if 'outplain' in self.dbg else " sc1"
        a(f"buffer_store_dwordx4 v[104:107], v8, s[{SRD_B}:{SRD_B+3}], s61 offen{sc}")

    def build(self):
        a = self.a
        self.entry()
        self.role_qkv()
        self.role_v()
        self.role_x()
        self.role_w3()
        self.role_ffn()
        self.role_down()
        self.attn_slow()
        self.s2_idle()
        self.role_attn()
        self.tail()
        a.label("L_fin")
        if 'hdbg' in self.dbg:
            a("s_memrealtime s[90:91]")
            a("s_memtime s[84:85]")
            a("s_waitcnt lgkmcnt(0)")
            a(f"s_cmp_lg_u32 s{S_W}, 0")
            a("s_cbranch_scc1 L_hd_skip")
            self.srd(SRD_B, S_DBG, 256)
            a("s_not_b32 s92, s88")
            a("v_mov_b32 v2, s92")
            a("v_mov_b32 v3, s90")
            a("s_sub_u32 s92, s90, s88")
            a("v_mov_b32 v4, s92")
            a("s_sub_u32 s93, s84, s86")
            a("v_mov_b32 v5, s93")
            a("v_mov_b32 v6, 0")
            a("s_mov_b64 exec, 1")
            a(f"buffer_atomic_umax v2, v6, s[{SRD_B}:{SRD_B+3}], 0 offen offset:8")
            a(f"buffer_atomic_umax v3, v6, s[{SRD_B}:{SRD_B+3}], 0 offen offset:12")
            a(f"buffer_atomic_umax v4, v6, s[{SRD_B}:{SRD_B+3}], 0 offen offset:16")
            a(f"buffer_atomic_umax v5, v6, s[{SRD_B}:{SRD_B+3}], 0 offen offset:20")
            a("s_mov_b64 exec, -1")
            a.label("L_hd_skip")
        self.dump_stamps()
        a.label("L_end")
        a("s_endpgm")
        a.label("L_code_end")
        a(".fill 256, 4, 0xbf800000")
        return a

HEADER = """; Kernarg layout (88 bytes): A_x, A_wqkv, A_wo, B_x, B_w1, B_b1, B_w2, B_b2, d_out, d_debug, d_ws
; @launch grid=(256,1,1) block=(768,1,1) lds=163840
.amdgcn_target "amdgcn-amd-amdhsa--gfx950"
.text
.globl {kn}
.p2align 8
.type {kn},@function
{kn}:
"""
FOOTER = """.section .rodata,"a"
.p2align 6
.amdhsa_kernel {kn}
  .amdhsa_next_free_vgpr 168
  .amdhsa_next_free_sgpr 102
  .amdhsa_accum_offset 168
  .amdhsa_group_segment_fixed_size 0
  .amdhsa_kernarg_size 88
  .amdhsa_user_sgpr_count 2
  .amdhsa_user_sgpr_kernarg_segment_ptr 1
  .amdhsa_system_sgpr_workgroup_id_x 1
.end_amdhsa_kernel
"""
def emit(path, **kw):
    g = Gen(**kw)
    a = g.build()
    check_hazards(a.lines)
    open(path, "w").write(HEADER.format(kn=KN) + a.text() + FOOTER.format(kn=KN))

if __name__ == "__main__":
    out = sys.argv[1] if len(sys.argv) > 1 else "k.s"
    dbg = [x[6:] for x in sys.argv if x.startswith("--dbg=")]
    stop = [x[7:] for x in sys.argv if x.startswith("--stop=")]
    emit(out, stamps=("--stamps" in sys.argv), dbg=dbg[0] if dbg else "", stop_after=stop[0] if stop else "all")
```

```python
import sys, math
from asmlib import Asm, vr, sr, check_hazards

NAME = "recurrent_scan__mha_block__dense_activation_squared_relu__prompt"
KN = NAME + "_kernel"

WS_Q, WS_K, WS_V = 0, 2 << 20, 4 << 20
WS_H = 6 << 20
WS_O = 14 << 20
WS_F = 16 << 20
WS_DBG = WS_F + (64 << 10)
WS_SIZE = WS_DBG + (256 << 10)
if 'dumpf' in ' '.join(sys.argv): WS_SIZE = 32 << 20
FL1, FL2, FL3 = WS_F, WS_F + 4096, WS_F + 8192

LDS_RING = 131072
LDS_SCR = LDS_RING + 3 * 8192 + 7 * 1024
LDS_NONCE = LDS_RING + 3 * 8192 + 6 * 1024
LDS_XF = LDS_NONCE + 16
LDS_DROP = 0x30000

QSCALE = 0.25 * math.log2(math.e)

def f2u(x):
    import struct
    return struct.unpack("<I", struct.pack("<f", x))[0]

S_W = 3
S_X, S_WQKV, S_WO, S_W1, S_B1, S_W2, S_B2, S_OUT, S_DBG, S_WS = 4, 6, 8, 12, 14, 16, 18, 20, 22, 24
S_TG, S_J = 26, 27
SRD_WS, SRD_A, SRD_B = 28, 32, 36
S_NONCE = 40
S_ONES = 41
S_HEAD, S_QB, S_T, S_C = 96, 97, 98, 99

class Gen:
    def __init__(self, stop_after="all", stamps=False, dbg=""):
        self.dbg = dbg.split(",")
        self.a = Asm()
        self.stop = stop_after
        self.stamps = stamps
        self.uid = 0
    def lab(self, p):
        self.uid += 1
        return f"L_{p}_{self.uid}"

    def srd(self, dst, ptr, size):
        a = self.a
        a(f"s_mov_b32 s{dst}, s{ptr}")
        a(f"s_and_b32 s{dst+1}, s{ptr+1}, 0xffff")
        a(f"s_mov_b32 s{dst+2}, {size}")
        a(f"s_mov_b32 s{dst+3}, 0x20000")

    def stamp(self, slot):
        if not self.stamps: return
        a = self.a
        a("s_memtime s[90:91]" if 'cyc' in self.dbg and slot not in (14,) else "s_memrealtime s[90:91]")
        a("s_waitcnt lgkmcnt(0)")
        a(f"s_mov_b32 s{64+slot}, s90")

    def cstamp(self, slot):
        if not self.stamps or 'phclk' not in self.dbg: return
        a = self.a
        a("s_memtime s[90:91]")
        a("s_waitcnt lgkmcnt(0)")
        a(f"s_mov_b32 s{64+slot}, s90")

    def dump_stamps(self):
        if not self.stamps: return
        a = self.a
        a("s_lshl_b32 s92, s2, 4")
        a(f"s_add_u32 s92, s92, s{S_W}")
        a("s_lshl_b32 s92, s92, 6")
        a(f"s_add_u32 s92, s92, {WS_DBG}")
        a("v_mov_b32 v1, 0")
        a("s_memtime s[84:85]")
        self.stamp(14)
        a("s_mov_b32 s79, s88")
        a("s_getreg_b32 s76, hwreg(HW_REG_HW_ID)")
        a("s_sub_u32 s77, s84, s86")
        for i in range(16):
            a(f"v_mov_b32 v2, s{64+i}")
            a(f"buffer_store_dword v2, v1, s[{SRD_WS}:{SRD_WS+3}], s92 offen offset:{4*i}")
            a("s_nop 1")

    def entry(self):
        a = self.a
        if self.stamps or 'hdbg' in self.dbg:
            a("s_memrealtime s[88:89]")
            a("s_memtime s[86:87]")
        a(f"s_cmp_ge_u32 s2, 256")
        a(f"s_cbranch_scc1 L_end")
        if 'dlyA' in self.dbg: a("s_sleep 127")
        a("s_load_dwordx16 s[4:19], s[0:1], 0")
        a("s_load_dwordx4 s[20:23], s[0:1], 64")
        a("s_load_dwordx2 s[24:25], s[0:1], 80")
        a("v_lshrrev_b32 v1, 6, v0")
        a("v_and_b32 v0, 63, v0")
        a("s_and_b32 s26, s2, 1")
        a(f"v_readfirstlane_b32 s{S_W}, v1")
        a("s_lshl_b32 s26, s26, 3")
        a("s_bfe_u32 s42, s2, 0x30003")
        a(f"s_add_u32 s{S_TG}, s26, s42")
        a("s_bfe_u32 s27, s2, 0x20001")
        if 'swap' in self.dbg:
            a("s_lshr_b32 s42, s27, 1")
            a("s_xor_b32 s27, s27, s42")
        a("s_lshl_b32 s27, s27, 2")
        a("s_lshr_b32 s42, s2, 6")
        a(f"s_add_u32 s{S_J}, s27, s42")
        a(f"s_mov_b32 s{S_ONES}, 0x3f803f80")
        if self.stamps:
            for i in range(16): a(f"s_mov_b32 s{64+i}, 0")
        if 'oldorder' in self.dbg:
            a(f"s_cmp_ge_u32 s{S_W}, 8")
            a("s_cbranch_scc1 L_role_ffn")
            a(f"s_cmp_ge_u32 s{S_W}, 4")
            a("s_cbranch_scc1 L_role_x")
            a(f"s_cmp_eq_u32 s{S_W}, 3")
            a("s_cbranch_scc1 L_role_w3")
        else:
            a(f"s_cmp_lt_u32 s{S_W}, 3")
            a("s_cbranch_scc1 L_role_qkv")
            a(f"s_cmp_ge_u32 s{S_W}, 8")
            a("s_cbranch_scc1 L_role_ffn")
            a(f"s_cmp_eq_u32 s{S_W}, 3")
            a("s_cbranch_scc1 L_role_w3")

    ACC = 64
    XA, XB = 16, 32
    WA, WB = 48, 52
    CS = 56
    VXA = 4
    VWR = 8
    VWG = 9
    S_WOFF, S_WSTR, S_RING, S_RINGD, S_CNT = 42, 43, 44, 45, 46

    def gemm_setup_addrs(self):
        a = self.a
        a("v_and_b32 v10, 31, v0")
        a("v_lshrrev_b32 v11, 5, v0")
        a("v_bfe_u32 v12, v0, 1, 3")
        a("v_xor_b32 v12, v11, v12")
        a("v_lshlrev_b32 v12, 4, v12")
        a(f"v_lshl_or_b32 v{self.VXA}, v10, 7, v12")
        for m in range(1, 4):
            a(f"v_xor_b32 v{self.VXA+m}, {32*m}, v{self.VXA}")
        a("v_bfe_u32 v12, v0, 2, 2")
        a("v_lshl_add_u32 v12, v11, 3, v12")
        a("v_lshlrev_b32 v12, 6, v12")
        a("v_bfe_u32 v13, v0, 4, 1")
        a("v_lshl_add_u32 v12, v13, 5, v12")
        a("v_and_b32 v13, 3, v0")
        a(f"v_lshl_add_u32 v{self.VWR}, v13, 3, v12")
        a(f"v_add_u32 v{self.VWR}, s{self.S_RING}, v{self.VWR}")

    def gemm_wg_voffset(self, pitch):
        a = self.a
        a("v_lshrrev_b32 v12, 2, v0")
        a(f"s_mov_b32 s47, {pitch}")
        a("v_mul_lo_u32 v12, v12, s47")
        a("v_and_b32 v13, 3, v0")
        a(f"v_lshl_add_u32 v{self.VWG}, v13, 4, v12")

    def w_dma(self, slot, ring_reg):
        a = self.a
        a(f"s_add_u32 m0, s{ring_reg}, {slot*1024}")
        a(f"s_add_u32 s{self.S_WOFF}, s{self.S_WOFF}, s{self.S_WSTR}")
        a(f"buffer_load_dwordx4 v{self.VWG}, s[{SRD_A}:{SRD_A+3}], s{self.S_WOFF} offen lds")

    def frag_reads(self, ksn, X, W, base_ks):
        a = self.a
        rel = ksn - base_ks
        slot = ksn & 7
        m = ksn & 3
        kc = rel >> 2 if base_ks % 8 == 0 else None
        return rel, slot, m, kc

    VF = 144
    S_NEED = 56

    def xflag_check(self, L):
        a = self.a
        a(f"v_readfirstlane_b32 s57, v149")
        return L

    def gemm_loop(self, swapped, s1, tag):
        a = self.a
        L = self.lab("gl_" + tag)
        a(f"s_mov_b32 s{self.S_CNT}, 0")
        a(f"s_mov_b32 s{self.S_RINGD}, s{self.S_RING}")
        if s1: a(f"s_mov_b32 s{self.S_NEED}, 1")
        a.label(L)
        if 'loopdet' in self.dbg:
            a("s_memtime s[90:91]")
            a("s_waitcnt lgkmcnt(0)")
            for t in range(4):
                a(f"s_cmp_eq_u32 s{self.S_CNT}, {t}")
                sl = (0 if not s1 else 4) + t
                a(f"s_cselect_b32 s{64+sl}, s90, s{64+sl}")
        a(f"s_cmp_eq_u32 s{self.S_CNT}, 3")
        a(f"s_cselect_b32 s{self.S_RINGD}, {LDS_DROP}, s{self.S_RINGD}")
        if not s1 and self.stop != "s2":
            L0 = self.lab("x0")
            a(f"s_cbranch_scc0 {L0}")
            a("s_barrier")
            a.label(L0)
        for i in range(8):
            X, W = (self.XA, self.WA) if i % 2 == 0 else (self.XB, self.WB)
            Xn, Wn = (self.XB, self.WB) if i % 2 == 0 else (self.XA, self.WA)
            def mf(tb):
                acc = self.ACC + 16 * tb
                if swapped:
                    a(f"v_mfma_f32_32x32x16_bf16 {vr(acc,16)}, {vr(X+4*tb,4)}, {vr(W,4)}, {vr(acc,16)}")
                else:
                    a(f"v_mfma_f32_32x32x16_bf16 {vr(acc,16)}, {vr(W,4)}, {vr(X+4*tb,4)}, {vr(acc,16)}")
            chk = s1 and (i & 3) == 3
            a("s_waitcnt lgkmcnt(0)")
            mf(0)
            if chk:
                a(f"v_min3_u32 v149, v{self.VF}, v{self.VF+1}, v{self.VF+2}")
                a(f"s_add_u32 s{self.S_NEED}, s{self.S_NEED}, 1")
                a(f"v_min_u32 v149, v149, v{self.VF+3}")
                a(f"s_min_u32 s{self.S_NEED}, s{self.S_NEED}, 8")
            self.w_dma(i, self.S_RINGD)
            if chk: a("v_readfirstlane_b32 s57, v149")
            a("s_waitcnt vmcnt(7)")
            nslot = (i + 1) & 7
            a(f"ds_read_b64_tr_b16 {vr(Wn,2)}, v{self.VWR} offset:{nslot*1024}")
            a(f"ds_read_b64_tr_b16 {vr(Wn+2,2)}, v{self.VWR} offset:{nslot*1024+256}")
            if chk:
                Lok, Lsp = self.lab("xok"), self.lab("xsp")
                a(f"s_cmp_ge_u32 s57, s{self.S_NEED}")
                a(f"s_cbranch_scc1 {Lok}")
                a("s_mov_b32 s58, 0")
                a.label(Lsp)
                a(f"ds_read_b128 {vr(self.VF,4)}, v148")
                a("s_add_u32 s58, s58, 1")
                a("s_waitcnt lgkmcnt(0)")
                a(f"v_min3_u32 v149, v{self.VF}, v{self.VF+1}, v{self.VF+2}")
                a(f"v_min_u32 v149, v149, v{self.VF+3}")
                a("s_nop 0")
                a("v_readfirstlane_b32 s57, v149")
                a("s_cmp_ge_u32 s58, 0x100000")
                a(f"s_cbranch_scc1 {Lok}")
                a(f"s_cmp_lt_u32 s57, s{self.S_NEED}")
                a(f"s_cbranch_scc1 {Lsp}")
                a.label(Lok)
            mf(1)
            n = i + 1
            for tb in range(4):
                a(f"ds_read_b128 {vr(Xn+4*tb,4)}, v{self.VXA+(n&3)} offset:{(n>>2)*16384 + tb*4096}")
            if s1 and (i & 3) == 2:
                a(f"ds_read_b128 {vr(self.VF,4)}, v148")
            mf(2)
            if 'nocs' not in self.dbg:
                a(f"v_mfma_f32_16x16x32_bf16 {vr(self.CS4,4)}, {vr(W,4)}, {vr(self.PAR,4)}, {vr(self.CS4,4)}")
            mf(3)
        for m in range(4):
            a(f"v_add_u32 v{self.VXA+m}, 0x8000, v{self.VXA+m}")
        a(f"s_add_u32 s{self.S_CNT}, s{self.S_CNT}, 1")
        a(f"s_cmp_lt_u32 s{self.S_CNT}, 4")
        a(f"s_cbranch_scc1 {L}")

    def wait_xflags(self, regs, need, vaddr, vt):
        a = self.a
        Lsp, Lok = self.lab("wsp"), self.lab("wok")
        a("s_mov_b32 s58, 0")
        a.label(Lsp)
        n = len(regs)
        a(f"ds_read_b{32*n} {vr(regs[0], n)}, v{vaddr}")
        a("s_add_u32 s58, s58, 1")
        a("s_waitcnt lgkmcnt(0)")
        if n == 4:
            a(f"v_min3_u32 v{vt}, v{regs[0]}, v{regs[1]}, v{regs[2]}")
            a(f"v_min_u32 v{vt}, v{vt}, v{regs[3]}")
        else:
            a(f"v_min_u32 v{vt}, v{regs[0]}, v{regs[1]}")
        a("s_nop 0")
        a(f"v_readfirstlane_b32 s57, v{vt}")
        a("s_cmp_ge_u32 s58, 0x100000")
        a(f"s_cbranch_scc1 {Lok}")
        a(f"s_cmp_lt_u32 s57, {need}")
        a(f"s_cbranch_scc1 {Lsp}")
        a.label(Lok)

    CS4 = 56
    PAR = 60

    def cs_acc(self, W, q0, q1):
        a = self.a
        for q in range(q0, q1):
            t = 58 + 2 * (q & 1)
            a(f"v_lshlrev_b32 v{t}, 16, v{W+q}")
            a(f"v_and_b32 v{t+1}, 0xffff0000, v{W+q}")
            a(f"v_add_f32 v{self.CS}, v{t}, v{self.CS}")
            a(f"v_add_f32 v{self.CS+1}, v{t+1}, v{self.CS+1}")

    def gemm_first_frags(self):
        a = self.a
        a(f"ds_read_b64_tr_b16 {vr(self.WA,2)}, v{self.VWR} offset:0")
        a(f"ds_read_b64_tr_b16 {vr(self.WA+2,2)}, v{self.VWR} offset:256")
        for tb in range(4):
            a(f"ds_read_b128 {vr(self.XA+4*tb,4)}, v{self.VXA} offset:{tb*4096}")

    def zero_acc(self):
        a = self.a
        for i in range(64):
            a(f"v_mov_b32 v{self.ACC+i}, 0")

    def cs16_from_cs4(self):
        a = self.a
        a("v_lshrrev_b32 v11, 5, v0")
        a("v_lshlrev_b32 v11, 6, v11")
        a("s_waitcnt lgkmcnt(0)")
        for r in range(16):
            b, jj = r >> 2, r & 3
            a(f"ds_bpermute_b32 v{16+r}, v11, v{self.CS4+jj} offset:{128*(b&1)+4*(b>>1)}")

    def cs_total(self):
        a = self.a
        a(f"v_add_f32 v{self.CS}, v{self.CS}, v{self.CS+1}")
        a("s_nop 0")
        a(f"v_mov_b32 v{self.CS+1}, v{self.CS}")
        a("s_nop 1")
        a(f"v_permlane32_swap_b32 v{self.CS}, v{self.CS+1}")
        a("s_nop 1")
        a(f"v_add_f32 v{self.CS}, v{self.CS}, v{self.CS+1}")

    def read_nonce(self, vtmp):
        a = self.a
        a(f"v_mov_b32 v{vtmp}, {LDS_NONCE}")
        a(f"ds_read_b32 v{vtmp}, v{vtmp}")

    def publish_flag(self, s_off, vtmp):
        a = self.a
        a("s_waitcnt vmcnt(0)")
        a(f"v_mov_b32 v{vtmp}, s{S_NONCE}")
        a(f"v_mov_b32 v{vtmp+1}, 0")
        a("s_mov_b64 exec, 1")
        a(f"buffer_store_dword v{vtmp}, v{vtmp+1}, s[{SRD_WS}:{SRD_WS+3}], s{s_off} offen sc1")
        a("s_mov_b64 exec, -1")

    def tok_stats_read(self):
        a = self.a
        a("v_and_b32 v10, 31, v0")
        a(f"v_lshlrev_b32 v10, 2, v10")
        a(f"v_add_u32 v10, {LDS_SCR}, v10")
        for tb in range(4):
            a(f"ds_read_b32 v{32+2*tb}, v10 offset:{tb*128}")
            a(f"ds_read_b32 v{33+2*tb}, v10 offset:{512+tb*128}")
        self.read_nonce(40)
        a("v_lshrrev_b32 v11, 5, v0")
        a("v_lshlrev_b32 v11, 4, v11")
        for r in range(16):
            a(f"ds_bpermute_b32 v{16+r}, v11, v{self.CS} offset:{(8*(r>>2)+(r&3))*4}")

    def role_qkv(self):
        a = self.a
        a.label("L_role_qkv")
        a(f"s_lshl_b32 s{self.S_RING}, s{S_W}, 13")
        a(f"s_add_u32 s{self.S_RING}, s{self.S_RING}, {LDS_RING}")
        a(f"s_mul_i32 s53, s{S_J}, 3")
        a(f"s_add_u32 s53, s53, s{S_W}")
        self.gemm_wg_voffset(3072)
        a(f"s_lshl_b32 s{self.S_WOFF}, s53, 6")
        a(f"s_mov_b32 s{self.S_WSTR}, {16*3072 if 'wq0' not in self.dbg else 0}")
        a(f"s_sub_u32 s{self.S_WOFF}, s{self.S_WOFF}, s{self.S_WSTR}")
        a("s_waitcnt lgkmcnt(0)")
        self.srd(SRD_A, S_WQKV, 512 * 3072)
        n0 = 8 if 'w8first' in self.dbg else 2
        for sl in range(n0):
            self.w_dma(sl, self.S_RING)
        a("s_lshr_b32 s54, s53, 4")
        a("s_and_b32 s55, s53, 15")
        self.srd(SRD_WS, S_WS, WS_SIZE)
        self.gemm_setup_addrs()
        self.zero_acc()
        for sl in range(n0, 8):
            self.w_dma(sl, self.S_RING)
        self.cs4_init()
        a(f"v_mov_b32 v148, {LDS_XF}")
        self.stamp(0)
        a("s_barrier")
        self.wait_xflags([144, 145, 146, 147], 1, 148, 149)
        a("s_waitcnt vmcnt(7)")
        self.stamp(1)
        self.gemm_first_frags()
        a("s_cmp_eq_u32 s54, 2")
        a("s_cbranch_scc1 L_role_v")
        self.gemm_loop(False, True, "qk")
        self.stamp(2)
        a("s_barrier")
        a("v_and_b32 v10, 31, v0")
        a(f"v_lshlrev_b32 v10, 2, v10")
        a(f"v_add_u32 v10, {LDS_SCR}, v10")
        for tb in range(4):
            a(f"ds_read_b32 v{32+2*tb}, v10 offset:{tb*128}")
            a(f"ds_read_b32 v{33+2*tb}, v10 offset:{512+tb*128}")
        self.read_nonce(40)
        a("s_nop 3")
        self.cs16_from_cs4()
        a("s_waitcnt lgkmcnt(0)")
        a(f"v_readfirstlane_b32 s{S_NONCE}, v40")
        a("s_cmp_eq_u32 s54, 0")
        a(f"s_cselect_b32 s47, {f2u(QSCALE)}, 1.0")
        for tb in range(4):
            a(f"v_mul_f32 v{32+2*tb}, s47, v{32+2*tb}")
            a(f"v_mul_f32 v{33+2*tb}, s47, v{33+2*tb}")
        a("s_lshl_b32 s48, s54, 21")
        a("s_lshl_b32 s49, s55, 17")
        a("s_add_u32 s48, s48, s49")
        a(f"s_lshl_b32 s49, s{S_TG}, 12")
        a("s_add_u32 s48, s48, s49")
        a("v_lshlrev_b32 v10, 4, v0")
        self.tok_epilogue_store(ffn=False)
        a("s_barrier")
        a("s_lshl_b32 s48, s55, 8")
        a("s_lshl_b32 s49, s54, 6")
        a("s_add_u32 s48, s48, s49")
        a(f"s_lshl_b32 s49, s{S_TG}, 2")
        a("s_add_u32 s48, s48, s49")
        a(f"s_add_u32 s48, s48, {FL1}")
        self.publish_flag(48, 12)
        self.stamp(3)
        a("s_branch L_s2_idle")

    def tok_epilogue_store(self, ffn):
        a = self.a
        hb_stride = 1024 if ffn else 65536
        tb_stride = 112 * 1024 if ffn else 1024
        T = 44
        for tb in range(4):
            st = 32 + 2 * tb
            for hb in range(2):
                P = 48 + 4 * hb
                for p in range(4):
                    r = 8 * hb + 2 * p
                    acc = self.ACC + 16 * tb + r
                    w = T + 2 * (p & 1)
                    for e in range(2):
                        if ffn: a(f"v_fma_f32 v{w+e}, v{16+r+e}, v{st+1}, v{128+r+e}")
                        else:   a(f"v_mul_f32 v{w+e}, v{16+r+e}, v{st+1}")
                    for e in range(2):
                        a(f"v_fma_f32 v{acc+e}, v{acc+e}, v{st}, v{w+e}")
                    if ffn:
                        for e in range(2):
                            a(f"v_max_f32 v{w+e}, 0, v{acc+e}")
                        for e in range(2):
                            a(f"v_mul_f32 v{acc+e}, v{w+e}, v{w+e}")
                    a(f"v_cvt_pk_bf16_f32 v{P+p}, v{acc}, v{acc+1}")
                off = hb * hb_stride + tb * tb_stride
                a(f"s_add_u32 s49, s48, {off}")
                a(f"buffer_store_dwordx4 {vr(P,4)}, v10, s[{SRD_WS}:{SRD_WS+3}], s49 offen sc1")

    def role_v(self):
        a = self.a
        a.label("L_role_v")
        self.gemm_loop(True, True, "v")
        self.stamp(2)
        a("s_barrier")
        self.read_nonce(40)
        a("v_bfe_u32 v12, v0, 2, 2")
        a("v_bfe_u32 v13, v0, 4, 1")
        a("v_lshl_add_u32 v12, v12, 4, v13")
        a("v_lshlrev_b32 v12, 2, v12")
        a("s_nop 3")
        a("s_waitcnt lgkmcnt(0)")
        for jj in range(4):
            a(f"ds_bpermute_b32 v{16+jj}, v12, v{self.CS4+jj}")
        a("v_and_b32 v13, 3, v0")
        a("s_waitcnt lgkmcnt(0)")
        for jj in range(1, 4):
            a(f"v_cmp_eq_u32 vcc, {jj}, v13")
            a("s_nop 1")
            a(f"v_cndmask_b32 v16, v16, v{16+jj}, vcc")
        a(f"v_mov_b32 v{self.CS}, v16")
        a("v_lshrrev_b32 v11, 5, v0")
        a("v_lshlrev_b32 v11, 4, v11")
        a(f"v_add_u32 v11, {LDS_SCR}, v11")
        a("v_bfe_u32 v12, v0, 4, 1")
        a("v_lshlrev_b32 v12, 16, v12")
        a("v_lshrrev_b32 v13, 5, v0")
        a("v_lshl_add_u32 v12, v13, 8, v12")
        a("v_and_b32 v13, 15, v0")
        a("v_lshl_add_u32 v10, v13, 4, v12")
        a("s_lshl_b32 s48, s55, 17")
        a(f"s_lshl_b32 s49, s{S_TG}, 12")
        a("s_add_u32 s48, s48, s49")
        a(f"s_add_u32 s48, s48, {WS_V}")
        a("s_waitcnt lgkmcnt(0)")
        a(f"v_readfirstlane_b32 s{S_NONCE}, v40")
        for tb in range(4):
            for b in range(4):
                a(f"ds_read_b128 {vr(16+4*b,4)}, v11 offset:{(32*tb+8*b)*4}")
                a(f"ds_read_b128 {vr(32+4*b,4)}, v11 offset:{512+(32*tb+8*b)*4}")
            a("s_waitcnt lgkmcnt(0)")
            for t in range(2):
                P = 48 + 4 * t
                for p in range(4):
                    r = 8 * t + 2 * p
                    acc = self.ACC + 16 * tb + r
                    w = 58 + 2 * (p & 1)
                    for e in range(2):
                        a(f"v_mul_f32 v{w+e}, v{32+r+e}, v{self.CS}")
                    for e in range(2):
                        a(f"v_fma_f32 v{acc+e}, v{acc+e}, v{16+r+e}, v{w+e}")
                    a(f"v_cvt_pk_bf16_f32 v{P+p}, v{acc}, v{acc+1}")
                a(f"s_add_u32 s49, s48, {tb*1024 + t*512}")
                a(f"buffer_store_dwordx4 {vr(P,4)}, v10, s[{SRD_WS}:{SRD_WS+3}], s49 offen sc1")
        a("s_barrier")
        a("s_lshl_b32 s48, s55, 8")
        a(f"s_lshl_b32 s49, s{S_TG}, 2")
        a("s_add_u32 s48, s48, s49")
        a(f"s_add_u32 s48, s48, {FL1 + 128}")
        self.publish_flag(48, 12)
        self.stamp(3)
        a("s_branch L_s2_idle")

    def role_x(self):
        a = self.a
        a.label("L_role_x")
        a("v_lshrrev_b32 v1, 3, v0")
        a("v_lshrrev_b32 v2, 4, v0")
        a("v_and_b32 v3, 7, v0")
        a("v_xor_b32 v3, v2, v3")
        a("v_lshlrev_b32 v3, 4, v3")
        a("v_lshl_or_b32 v2, v1, 10, v3")
        a("v_xor_b32 v3, 64, v2")
        a(f"s_sub_u32 s42, s{S_W}, 4")
        a(f"s_lshl_b32 s43, s{S_TG}, 17")
        a("s_lshl_b32 s44, s42, 15")
        a("s_add_u32 s43, s43, s44")
        a("s_lshl_b32 s44, s42, 12")
        a("s_waitcnt lgkmcnt(0)")
        self.srd(SRD_A, S_X, 2048 * 1024)
        D = self.XLOOK
        def chunk(kc):
            for rg in range(4):
                a(f"s_add_u32 m0, s44, {kc*16384 + rg*1024}")
                a(f"s_add_u32 s45, s43, {rg*8192 + kc*128}")
                a(f"buffer_load_dwordx4 v{2+(rg&1)}, s[{SRD_A}:{SRD_A+3}], s45 offen lds")
        for kc in range(D): chunk(kc)
        self.srd(SRD_WS, S_WS, WS_SIZE)
        a("s_lshl_b32 s46, s42, 2")
        a(f"s_add_u32 s46, s46, {LDS_XF}")
        a("v_mov_b32 v4, s46")
        a("v_mov_b32 v5, 0")
        a("ds_write_b32 v4, v5")
        a("s_waitcnt lgkmcnt(0)")
        self.stamp(0)
        a("s_barrier")
        for kc in range(8):
            a(f"v_mov_b32 v5, {kc+1}")
            if 'nox' not in self.dbg or kc == 0: a(f"s_waitcnt vmcnt({4*min(D-1, 7-kc)})")
            a("ds_write_b32 v4, v5")
            if kc == 0: self.stamp(1)
            if 's1det' in self.dbg: self.stamp(kc + 4)
            if kc + D < 8 and 'nox' not in self.dbg: chunk(kc + D)
        a("s_waitcnt lgkmcnt(0)")
        a("s_barrier")
        self.read_nonce(40)
        a("s_waitcnt lgkmcnt(0)")
        a(f"v_readfirstlane_b32 s{S_NONCE}, v40")
        a("s_barrier")
        self.stamp(3)
        a("s_branch L_s2_idle")

    @property
    def XLOOK(self):
        for d in self.dbg:
            if d.startswith('xl'): return int(d[2:])
        return 3
    WLOOK = 4

    def stats_setup(self, tb0):
        a = self.a
        a("v_and_b32 v10, 31, v0")
        a("v_lshrrev_b32 v11, 5, v0")
        a("v_bfe_u32 v12, v0, 1, 3")
        a("v_xor_b32 v12, v11, v12")
        a("v_lshlrev_b32 v12, 4, v12")
        a("v_lshl_or_b32 v152, v10, 7, v12")
        a(f"v_add_u32 v152, {tb0*4096}, v152")
        for m in range(1, 4):
            a(f"v_xor_b32 v{152+m}, {32*m}, v152")
        for i in range(8):
            a(f"v_mov_b32 v{156+i}, 0")

    def stats_chunk(self, kc, tb0):
        a = self.a
        a(f"v_mov_b32 v12, {LDS_XF + 4*tb0}")
        self.wait_xflags([10, 11], kc + 1, 12, 13)
        if kc == 4:
            for m in range(4): a(f"v_add_u32 v{152+m}, 0x10000, v{152+m}")
        for m in range(4):
            for t in range(2):
                a(f"ds_read_b128 {vr(16+8*m+4*t,4)}, v{152+m} offset:{(kc&3)*16384 + t*4096}")
        for m in range(4):
            for t in range(2):
                a(f"s_waitcnt lgkmcnt({7-2*m-t})")
                F = 16 + 8*m + 4*t
                for q in range(4 if 'nostats' not in self.dbg else 0):
                    a(f"v_dot2c_f32_bf16 v{156+4*t+(q&1)}, s{S_ONES}, v{F+q}")
                    a(f"v_dot2c_f32_bf16 v{158+4*t+(q&1)}, v{F+q}, v{F+q}")

    def stats_final(self, tb0):
        a = self.a
        a("s_nop 2")
        for t in range(2):
            a(f"v_add_f32 v{156+4*t}, v{156+4*t}, v{157+4*t}")
            a(f"v_add_f32 v{158+4*t}, v{158+4*t}, v{159+4*t}")
        a("s_nop 0")
        for t in range(2):
            a(f"v_mov_b32 v{157+4*t}, v{156+4*t}")
            a(f"v_mov_b32 v{159+4*t}, v{158+4*t}")
        a("s_nop 1")
        for t in range(2):
            a(f"v_permlane32_swap_b32 v{156+4*t}, v{157+4*t}")
            a(f"v_permlane32_swap_b32 v{158+4*t}, v{159+4*t}")
        a("s_nop 1")
        a("v_and_b32 v12, 31, v0")
        a("v_lshlrev_b32 v12, 2, v12")
        a(f"v_add_u32 v12, {LDS_SCR + tb0*128}, v12")
        for t in range(2):
            S, Q = 156+4*t, 158+4*t
            a(f"v_add_f32 v{S}, v{S}, v{S+1}")
            a(f"v_add_f32 v{Q}, v{Q}, v{Q+1}")
            a(f"v_mul_f32 v{S}, {f2u(1.0/512)}, v{S}")
            a(f"v_mul_f32 v{Q}, {f2u(1.0/512)}, v{Q}")
            a(f"v_fma_f32 v{Q}, -v{S}, v{S}, v{Q}")
            a(f"v_max_f32 v{Q}, 0, v{Q}")
            a(f"v_add_f32 v{Q}, {f2u(1e-5)}, v{Q}")
            a(f"v_rsq_f32 v{Q}, v{Q}")
            a("s_nop 0")
            a(f"v_mul_f32 v{S}, v{S}, v{Q}")
            a(f"v_sub_f32 v{S}, 0, v{S}")
            a(f"ds_write_b32 v12, v{Q} offset:{t*128}")
            a(f"ds_write_b32 v12, v{S} offset:{512+t*128}")
        a("s_waitcnt lgkmcnt(0)")

    def role_w3(self):
        a = self.a
        a.label("L_role_w3")
        self.stats_setup(0)
        a("s_waitcnt lgkmcnt(0)")
        self.srd(SRD_WS, S_WS, WS_SIZE)
        self.srd(SRD_A, S_DBG, 256)
        a("v_mov_b32 v2, 0")
        a("s_cmp_lg_u32 s2, 0")
        a("s_cbranch_scc1 L_nc_np")
        a("s_memrealtime s[60:61]")
        a("s_waitcnt lgkmcnt(0)")
        a("s_or_b32 s60, s60, 1")
        a("v_mov_b32 v1, s60")
        a("s_mov_b64 exec, 1")
        a(f"buffer_store_dword v1, v2, s[{SRD_A}:{SRD_A+3}], 0 offen sc1")
        a("s_mov_b64 exec, -1")
        a.label("L_nc_np")
        a("s_barrier")
        for kc in range(8):
            if kc == 3:
                a(f"buffer_load_dword v1, v2, s[{SRD_A}:{SRD_A+3}], 0 offen sc1")
            if kc == 7:
                a("s_mov_b32 s62, 0")
                a.label("L_nc_chk")
                a("s_waitcnt vmcnt(0)")
                a(f"v_readfirstlane_b32 s{S_NONCE}, v1")
                a(f"s_cmp_lg_u32 s{S_NONCE}, 0")
                a("s_cbranch_scc1 L_nc_got")
                a("s_add_u32 s62, s62, 1")
                a("s_cmp_ge_u32 s62, 8192")
                a("s_cbranch_scc1 L_nc_got")
                a(f"buffer_load_dword v1, v2, s[{SRD_A}:{SRD_A+3}], 0 offen sc1")
                a("s_branch L_nc_chk")
                a.label("L_nc_got")
                a(f"v_mov_b32 v1, s{S_NONCE}")
                a(f"v_mov_b32 v2, {LDS_NONCE}")
                a("ds_write_b32 v2, v1")
            self.stats_chunk(kc, 0)
            if 's1det' in self.dbg: self.stamp(kc + 4)
        self.stats_final(0)
        self.stamp(2)
        a("s_barrier")
        a("s_barrier")
        a("s_branch L_s2_idle")

    def ffn_setup(self):
        a = self.a
        a(f"s_sub_u32 s50, s{S_W}, 8")
        a(f"s_lshl_b32 s{self.S_RING}, s50, 13")
        a(f"s_add_u32 s{self.S_RING}, s{self.S_RING}, {LDS_RING}")
        self.gemm_wg_voffset(3584)
        a(f"s_lshl_b32 s51, s{S_J}, 2")
        a("s_add_u32 s51, s51, s50")
        a(f"s_lshl_b32 s{self.S_WOFF}, s51, 6")
        a(f"s_mov_b32 s{self.S_WSTR}, {16*3584 if 'wstr0' not in self.dbg else 0}")
        a(f"s_sub_u32 s{self.S_WOFF}, s{self.S_WOFF}, s{self.S_WSTR}")
        self.srd(SRD_A, S_W1, 512 * 3584)
        self.srd(SRD_B, S_B1, 1792 * 2)
        a("v_lshrrev_b32 v12, 5, v0")
        a("v_lshlrev_b32 v12, 3, v12")
        a("s_lshl_b32 s52, s51, 6")
        for b in range(4):
            a(f"buffer_load_dwordx2 {vr(144+2*b,2)}, v12, s[{SRD_B}:{SRD_B+3}], s52 offen offset:{16*b}")
        self.gemm_setup_addrs()
        self.zero_acc()
        self.cs4_init()

    def cs4_init(self):
        a = self.a
        a("v_lshrrev_b32 v12, 4, v0")
        a("v_xor_b32 v12, v12, v0")
        a("v_and_b32 v12, 1, v12")
        a("v_cmp_eq_u32 vcc, 0, v12")
        a(f"v_mov_b32 v13, s{S_ONES}")
        for i in range(4):
            a(f"v_mov_b32 v{self.CS4+i}, 0")
        for i in range(4):
            a(f"v_cndmask_b32 v{self.PAR+i}, 0, v13, vcc")

    def role_ffn(self):
        a = self.a
        a.label("L_role_ffn")
        if 'nopf' not in self.dbg:
            a(f"s_cmp_lg_u32 s{S_W}, 9")
            a("s_cbranch_scc1 L_nopf")
            a("s_getpc_b64 s[46:47]")
            a.label("L_pc")
            a(f"s_sub_u32 s46, s46, L_pc-{KN}")
            a("s_subb_u32 s47, s47, 0")
            a("s_lshr_b32 s48, s2, 3")
            a("v_lshlrev_b32 v12, 4, v0")
            for k in range(2):
                a(f"s_cmp_ge_u32 s48, (L_code_end-{KN}+1023)/1024")
                a("s_cbranch_scc1 L_nopf")
                a("s_lshl_b32 s49, s48, 10")
                a("v_add_u32 v13, s49, v12")
                a(f"global_load_dwordx4 {vr(160+4*k,4)}, v13, s[46:47]")
                a("s_add_u32 s48, s48, 32")
            a.label("L_nopf")
        a("s_waitcnt lgkmcnt(0)")
        if 'tq' in self.dbg:
            a(f"s_cmp_eq_u32 s{S_W}, 10")
            a("s_cbranch_scc0 L_tch2")
            self.srd(SRD_B, S_WQKV, 512 * 3072)
            a("s_bfe_u32 s46, s2, 0x30003")
            a(f"s_mul_i32 s46, s46, {64*3072}")
            a(f"s_mul_i32 s47, s{S_J}, 192")
            a("s_and_b32 s47, s47, 0xffffff80")
            a("s_add_u32 s46, s46, s47")
            a("v_lshrrev_b32 v12, 1, v0")
            a("v_mul_u32_u24 v12, 3072, v12")
            a("v_and_b32 v13, 1, v0")
            a("v_lshl_add_u32 v12, v13, 7, v12")
            for i in range(2):
                a(f"buffer_load_dword v{160+i}, v12, s[{SRD_B}:{SRD_B+3}], s46 offen")
                a(f"s_add_u32 s46, s46, {32*3072}")
            a.label("L_tch2")
        self.srd(SRD_WS, S_WS, WS_SIZE)
        self.ffn_setup()
        a("s_barrier")
        tw = [d for d in self.dbg if d.startswith('tw')] or ['tw6']
        if tw[0] != 'tw0':
            a(f"s_cmp_eq_u32 s{S_W}, 10")
            a("s_cbranch_scc0 L_tw_skip")
            a(f"v_mov_b32 v166, {LDS_XF}")
            self.wait_xflags([160, 161, 162, 163], int(tw[0][2:]), 166, 167)
            self.srd(SRD_B, S_W1, 512 * 3584)
            a("s_bfe_u32 s46, s2, 0x30003")
            a(f"s_mul_i32 s46, s46, {64*3584}")
            a(f"s_lshl_b32 s47, s{S_J}, 8")
            a("s_add_u32 s46, s46, s47")
            a("v_lshrrev_b32 v12, 1, v0")
            a("v_mul_u32_u24 v12, 3584, v12")
            a("v_and_b32 v13, 1, v0")
            a("v_lshl_add_u32 v12, v13, 7, v12")
            for i in range(2):
                a(f"buffer_load_dword v{164+i}, v12, s[{SRD_B}:{SRD_B+3}], s46 offen")
                a(f"s_add_u32 s46, s46, {32*3584}")
            a.label("L_tw_skip")
        a(f"s_cmp_lg_u32 s{S_W}, 11")
        a("s_cbranch_scc1 L_ffn_b8")
        self.stats_setup(2)
        for kc in range(8):
            self.stats_chunk(kc, 2)
        self.stats_final(2)
        a.label("L_ffn_b8")
        a("s_barrier")
        a(f"s_cmp_ge_u32 s{S_J}, 14")
        a("s_cbranch_scc1 L_ffn_skip")
        for sl in range(6):
            self.w_dma(sl, self.S_RING)
        a("v_and_b32 v10, 31, v0")
        a(f"v_lshlrev_b32 v10, 2, v10")
        a(f"v_add_u32 v10, {LDS_SCR}, v10")
        for tb in range(4):
            a(f"ds_read_b32 v{152+2*tb}, v10 offset:{tb*128}")
            a(f"ds_read_b32 v{153+2*tb}, v10 offset:{512+tb*128}")
        self.read_nonce(40)
        a("s_waitcnt vmcnt(6) lgkmcnt(0)")
        a(f"v_readfirstlane_b32 s{S_NONCE}, v40")
        for b in range(4):
            a(f"v_lshlrev_b32 v{128+4*b}, 16, v{144+2*b}")
            a(f"v_and_b32 v{129+4*b}, 0xffff0000, v{144+2*b}")
            a(f"v_lshlrev_b32 v{130+4*b}, 16, v{145+2*b}")
            a(f"v_and_b32 v{131+4*b}, 0xffff0000, v{145+2*b}")
        a("s_barrier")
        if 'nos2prio' not in self.dbg: a("s_setprio 3")
        for sl in range(6, 8):
            self.w_dma(sl, self.S_RING)
        self.stamp(4)
        a("s_waitcnt vmcnt(7)")
        self.gemm_first_frags()
        self.gemm_loop(False, False, "ffn")
        self.stamp(5)
        a("s_barrier")
        if 'nogprio' not in self.dbg: a("s_setprio 3")
        a("s_nop 7")
        self.cs16_from_cs4()
        for tb in range(4):
            a(f"v_mov_b32 v{32+2*tb}, v{152+2*tb}")
            a(f"v_mov_b32 v{33+2*tb}, v{153+2*tb}")
        a(f"s_mul_i32 s48, s{S_TG}, {4*112*1024}")
        a("s_lshl_b32 s49, s51, 11")
        a("s_add_u32 s48, s48, s49")
        a(f"s_add_u32 s48, s48, {WS_H}")
        a("v_lshlrev_b32 v10, 4, v0")
        a("s_waitcnt lgkmcnt(0)")
        if 'dumpf' in self.dbg:
            a("s_lshl_b32 s92, s2, 2")
            a(f"s_add_u32 s92, s92, s50")
            a("s_mul_i32 s92, s92, 16384")
            a(f"s_add_u32 s92, s92, {20<<20}")
            a("v_lshlrev_b32 v12, 2, v0")
            regs = list(range(16,32)) + list(range(32,40)) + list(range(128,144)) + list(range(64,80))
            for n, r in enumerate(regs):
                a(f"buffer_store_dword v{r}, v12, s[{SRD_WS}:{SRD_WS+3}], s92 offen offset:{(n%16)*256}")
                if n % 16 == 15: a("s_add_u32 s92, s92, 4096")
        self.tok_epilogue_store(ffn=True)
        if self.stop != "s2": a("s_barrier")
        a(f"s_lshl_b32 s48, s{S_TG}, 8")
        a("s_lshl_b32 s49, s51, 2")
        a("s_add_u32 s48, s48, s49")
        a(f"s_add_u32 s48, s48, {FL2}")
        self.publish_flag(48, 12)
        self.stamp(6)
        a("s_branch L_s3_gemm")
        a.label("L_ffn_skip")
        self.read_nonce(40)
        a("s_waitcnt vmcnt(0) lgkmcnt(0)")
        a(f"v_readfirstlane_b32 s{S_NONCE}, v40")
        a("s_barrier")
        if self.stop != "s2":
            for _ in range(3): a("s_sleep 16")
            a("s_barrier")
        a("s_barrier")
        if self.stop != "s2":
            a("s_barrier")
        a("s_branch L_s3_gemm")

    def attn_ids(self):
        a = self.a
        a(f"s_and_b32 s{S_HEAD}, s2, 7")
        a("s_lshr_b32 s47, s2, 6")
        a("s_lshl_b32 s47, s47, 3")
        a(f"s_or_b32 s{S_HEAD}, s{S_HEAD}, s47")
        a(f"s_bfe_u32 s{S_QB}, s2, 0x30003")
        a(f"s_and_b32 s{S_T}, s2, 7")
        a(f"s_lshl_b32 s{S_T}, s{S_T}, 2")
        a("s_bfe_u32 s47, s2, 0x20003")
        a(f"s_add_u32 s{S_T}, s{S_T}, s47")
        a(f"s_lshr_b32 s{S_C}, s2, 5")

    def poll_flags(self, s_off, n, vt=2, sleep=2):
        a = self.a
        Lp, Ld = self.lab("pf"), self.lab("pfd")
        a(f"v_lshlrev_b32 v{vt}, 2, v0")
        a(f"v_cmp_gt_u32 vcc, {n}, v0")
        a("s_mov_b32 s58, 0")
        a("s_mov_b64 s[62:63], vcc")
        a.label(Lp)
        a(f"buffer_load_dword v{vt+1}, v{vt}, s[{SRD_WS}:{SRD_WS+3}], s{s_off} offen sc1")
        a("s_add_u32 s58, s58, 1")
        a("s_waitcnt vmcnt(0)")
        a(f"v_cmp_eq_u32 vcc, s{S_NONCE}, v{vt+1}")
        a("s_nop 1")
        a("s_and_b64 vcc, vcc, s[62:63]")
        a("s_cmp_eq_u64 vcc, s[62:63]")
        a(f"s_cbranch_scc1 {Ld}")
        a("s_cmp_ge_u32 s58, 0x4000")
        a(f"s_cbranch_scc1 {Ld}")
        a(f"s_sleep {sleep}")
        a(f"s_branch {Lp}")
        a.label(Ld)

    def clear_o(self):
        a = self.a
        L = self.lab("co")
        a(f"s_cmp_lg_u32 s{S_W}, 9")
        a(f"s_cbranch_scc1 {L}")
        a(f"s_lshl_b32 s46, s{S_QB}, 8")
        a(f"s_add_u32 s46, s46, s{S_HEAD}")
        a("s_lshl_b32 s46, s46, 10")
        a(f"s_add_u32 s46, s46, {WS_O}")
        for r in range(4): a(f"v_mov_b32 v{152+r}, -1")
        a("v_lshlrev_b32 v156, 4, v0")
        for i in range(8):
            a(f"buffer_store_dwordx4 v[152:155], v156, s[{SRD_WS}:{SRD_WS+3}], s46 offen sc1")
            a(f"s_add_u32 s46, s46, {32*1024}")
        a(f"s_lshl_b32 s48, s{S_QB}, 8")
        a(f"s_lshl_b32 s49, s{S_HEAD}, 2")
        a("s_add_u32 s48, s48, s49")
        a(f"s_add_u32 s48, s48, {FL3}")
        self.publish_flag(48, 157)
        a.label(L)

    def s2_idle(self):
        a = self.a
        a.label("L_s2_idle")
        if self.stop == "s2":
            a("s_barrier")
            a("s_branch L_fin")

    QA, QB, KA, KB, VA, VB = 4, 8, 12, 16, 20, 28
    SA, SB, PA, PB, OA, OB = 40, 56, 72, 80, 88, 104
    VK, VKN, VV0, VV1, VV0N, VV1N, VWA = 120, 121, 122, 123, 124, 125, 126
    TP = 2064
    LDS_W2 = 64 * 2064
    LDS_SYNC = 64 * 2064 + 4 * 6144
    S_NXT = 42

    def stg(self, i):
        return 128 + 8 * (i % 5)

    def mf32(self, d, x, y, c):
        self.a(f"v_mfma_f32_32x32x16_bf16 {vr(d,16)}, {vr(x,4)}, {vr(y,4)}, {c if c == 0 else vr(c,16)}")

    def attn_phase(self, S, P, m1, m2, m3, x1=None, x3=None):
        a = self.a
        E = lambda k: a(f"v_exp_f32 v{S+k}, v{S+k}")
        C = lambda k: a(f"v_cvt_pk_bf16_f32 v{P+k}, v{S+2*k}, v{S+2*k+1}")
        if 'noqk' not in self.dbg: self.mf32(*m1)
        if x1: x1()
        if 'noexp' in self.dbg: E = lambda k: a(f"v_mov_b32 v{S+k}, v{S+k}")
        E(0); E(1); E(2); E(3); C(0); E(4); E(5); C(1)
        if 'nopv' not in self.dbg: self.mf32(*m2)
        E(6); E(7); C(2); E(8); E(9); C(3); E(10); E(11)
        if 'nopv' not in self.dbg: self.mf32(*m3)
        if x3: x3()
        C(4); E(12); E(13); C(5); E(14); E(15); C(6); C(7)

    def attn_tile(self, i, first_group):
        a = self.a
        ev = (i & 1) == 0
        Kc, Kn = (self.KA, self.KB) if ev else (self.KB, self.KA)
        Vc, Vp = (self.VA, self.VB) if ev else (self.VB, self.VA)
        nxt = i == 7
        off = 0 if nxt else (i + 1) * self.TP
        rk, r0, r1 = (self.VKN, self.VV0N, self.VV1N) if nxt else (self.VK, self.VV0, self.VV1)
        def x1():
            if first_group and i <= 6:
                st = self.stg(i + 1)
                a(f"s_waitcnt vmcnt({[4, 4, 4, 4, 4, 2, 0][i]})")
                a(f"ds_write_b128 v{self.VWA}, {vr(st,4)} offset:{(i+1)*self.TP}")
                a(f"ds_write_b128 v{self.VWA}, {vr(st+4,4)} offset:{(i+1)*self.TP+1024}")
                if i + 4 <= 7: self.kv_load(i + 4, self.stg(i + 4))
            a(f"ds_read_b128 {vr(Kn,4)}, v{rk} offset:{off}")
        def x3():
            a(f"ds_read_b128 {vr(Vp,4)}, v{r0} offset:{off}")
            a(f"ds_read_b128 {vr(Vp+4,4)}, v{r1} offset:{off}")
        if first_group:
            a("s_waitcnt lgkmcnt(0)")
            if i == 7: a("s_barrier")
        else:
            a("s_waitcnt lgkmcnt(0)")
        self.attn_phase(self.SA, self.PA, (self.SB, Kc, self.QB, 0), (self.OB, Vp, self.PB, self.OB),
                        (self.OB, Vp + 4, self.PB + 4, self.OB), x1, x3)
        a("s_waitcnt lgkmcnt(2)")
        self.attn_phase(self.SB, self.PB, (self.SA, Kn, self.QA, 0), (self.OA, Vc, self.PA, self.OA),
                        (self.OA, Vc + 4, self.PA + 4, self.OA))

    def kv_load(self, i, st):
        a = self.a
        a(f"buffer_load_dwordx4 {vr(st,4)}, v1, s[{SRD_WS}:{SRD_WS+3}], s44 offen offset:{(i&3)*1024} sc1")
        a(f"buffer_load_dwordx4 {vr(st+4,4)}, v1, s[{SRD_WS}:{SRD_WS+3}], s45 offen offset:{(i&3)*1024} sc1")

    def group_advance(self):
        a = self.a
        G = 8 * self.TP
        a(f"v_mov_b32 v{self.VK}, v{self.VKN}")
        a(f"v_mov_b32 v{self.VV0}, v{self.VV0N}")
        a(f"v_mov_b32 v{self.VV1}, v{self.VV1N}")
        a(f"s_add_u32 s{self.S_NXT}, s{self.S_NXT}, {G}")
        a(f"s_cmp_eq_u32 s{self.S_NXT}, s59")
        a(f"s_cselect_b32 s46, {4*G}, 0")
        a(f"s_sub_u32 s{self.S_NXT}, s{self.S_NXT}, s46")
        a(f"v_add_u32 v{self.VKN}, s{self.S_NXT}, v1")
        a(f"v_add_u32 v{self.VV0N}, s{self.S_NXT}, v2")
        a(f"v_add_u32 v{self.VV1N}, s{self.S_NXT}, v3")

    def lds_spin(self, vaddr, n, vdst, want):
        a = self.a
        Lp, Ld = self.lab("sp"), self.lab("spd")
        a("s_mov_b32 s58, 0")
        a.label(Lp)
        a(f"ds_read_b{32*n} {vr(vdst,n)}, v{vaddr}")
        a("s_add_u32 s58, s58, 1")
        a("s_waitcnt lgkmcnt(0)")
        if n == 4:
            a(f"v_min3_u32 v{vdst}, v{vdst}, v{vdst+1}, v{vdst+2}")
            a(f"v_min_u32 v{vdst}, v{vdst}, v{vdst+3}")
        a("s_nop 0")
        a(f"v_readfirstlane_b32 s57, v{vdst}")
        a("s_cmp_ge_u32 s58, 0x100000")
        a(f"s_cbranch_scc1 {Ld}")
        a(f"s_cmp_lt_u32 s57, {want}")
        a(f"s_cbranch_scc1 {Lp}")
        a.label(Ld)

    def role_attn(self):
        a = self.a
        G = 8 * self.TP
        a.label("L_s3_attn")
        self.attn_ids()
        a("v_lshlrev_b32 v1, 4, v0")
        a(f"s_lshl_b32 s43, s{S_HEAD}, 16")
        a(f"s_lshl_b32 s47, s{S_W}, 13")
        a("s_add_u32 s44, s43, s47")
        a(f"s_add_u32 s45, s44, {WS_V}")
        a(f"s_add_u32 s44, s44, {WS_K}")
        a(f"s_lshl_b32 s46, s{S_QB}, 13")
        a("s_add_u32 s43, s43, s46")
        a(f"s_and_b32 s47, s{S_W}, 3")
        a("s_lshl_b32 s47, s47, 11")
        a("s_add_u32 s43, s43, s47")
        a(f"s_mul_i32 s46, s{S_W}, {G}")
        a(f"v_add_u32 v{self.VWA}, s46, v1")
        a(f"v_mov_b32 v{self.VK}, v{self.VWA}")
        a("v_lshrrev_b32 v2, 5, v0")
        a("v_lshlrev_b32 v2, 8, v2")
        a("v_and_b32 v3, 15, v0")
        a("v_lshl_add_u32 v2, v3, 4, v2")
        a("v_add_u32 v3, 1536, v2")
        a("v_add_u32 v2, 1024, v2")
        a("v_and_b32 v36, 31, v0")
        a("v_cmp_lt_u32 vcc, 15, v36")
        a("v_cmp_eq_u32 s[50:51], 16, v36")
        a(f"v_mov_b32 v37, {LDS_DROP if 'allones' not in self.dbg else 2048}")
        a("v_mov_b32 v38, 2048")
        a("s_nop 0")
        a("v_cndmask_b32 v37, v37, v38, s[50:51]")
        a("s_nop 0")
        a("v_cndmask_b32 v2, v2, v37, vcc")
        a("v_cndmask_b32 v3, v3, v37, vcc")
        a(f"v_add_u32 v{self.VV0}, s46, v2")
        a(f"v_add_u32 v{self.VV1}, s46, v3")
        a(f"s_lshr_b32 s47, s{S_W}, 2")
        a(f"s_mul_i32 s47, s47, {4*G}")
        a(f"s_add_u32 s59, s47, {4*G}")
        a(f"s_add_u32 s{self.S_NXT}, s46, {G}")
        a(f"s_cmp_eq_u32 s{self.S_NXT}, s59")
        a(f"s_cselect_b32 s47, {4*G}, 0")
        a(f"s_sub_u32 s{self.S_NXT}, s{self.S_NXT}, s47")
        a(f"v_add_u32 v{self.VKN}, s{self.S_NXT}, v1")
        a(f"v_add_u32 v{self.VV0N}, s{self.S_NXT}, v2")
        a(f"v_add_u32 v{self.VV1N}, s{self.S_NXT}, v3")
        a(f"v_mul_u32_u24 v36, {self.TP}, v0")
        a("v_add_u32 v36, s46, v36")
        for r in range(4): a(f"v_mov_b32 v{40+r}, s{S_ONES}")
        a("v_lshlrev_b32 v37, 2, v0")
        a(f"v_add_u32 v37, {self.LDS_SYNC}, v37")
        a("v_mov_b32 v38, 0")
        for r in range(32):
            a(f"v_mov_b32 v{self.OA+r}, 0")
        for r in range(8):
            a(f"v_mov_b32 v{self.PB+r}, 0")
            a(f"v_mov_b32 v{self.VB+r}, 0")
        a("v_lshrrev_b32 v127, 3, v0")
        a(f"s_lshl_b32 s48, s{S_W}, 3")
        a("v_add_u32 v127, s48, v127")
        a("v_lshlrev_b32 v127, 10, v127")
        a("v_and_b32 v39, 7, v0")
        a("v_lshl_add_u32 v127, v39, 4, v127")
        a(f"s_lshl_b32 s61, s{S_T}, 16")
        a(f"s_lshl_b32 s48, s{S_C}, 7")
        a("s_add_u32 s61, s61, s48")
        a(f"s_lshl_b32 s60, s{S_QB}, 3")
        a(f"s_and_b32 s48, s{S_W}, 3")
        a("s_lshl_b32 s48, s48, 1")
        a("s_add_u32 s60, s60, s48")
        a(f"s_lshr_b32 s48, s{S_W}, 2")
        a("s_add_u32 s60, s60, s48")
        a("s_lshl_b32 s60, s60, 5")
        a(f"s_add_u32 s60, s60, s{S_HEAD}")
        a("s_lshl_b32 s60, s60, 10")
        a(f"s_add_u32 s60, s60, {WS_O}")
        a("s_barrier")
        a(f"s_cmp_lg_u32 s{S_W}, 3")
        a("s_cbranch_scc1 L_at_np")
        a(f"s_lshr_b32 s47, s{S_HEAD}, 1")
        a("s_lshl_b32 s47, s47, 8")
        a(f"s_add_u32 s47, s47, {FL1}")
        ps = [d for d in self.dbg if d.startswith('ps')]
        pd = [d for d in self.dbg if d.startswith('pd')]
        if pd:
            for _ in range(int(pd[0][2:])): a("s_sleep 16")
        self.poll_flags(47, 48, vt=44, sleep=int(ps[0][2:]) if ps else 2)
        self.stamp(4)
        a.label("L_at_np")
        a("s_barrier")
        a(f"buffer_load_dwordx4 {vr(self.QA,4)}, v1, s[{SRD_WS}:{SRD_WS+3}], s43 offen sc1")
        a(f"buffer_load_dwordx4 {vr(self.QB,4)}, v1, s[{SRD_WS}:{SRD_WS+3}], s43 offen offset:1024 sc1")
        self.kv_load(0, self.stg(0))
        self.stamp(7)
        self.cstamp(0)
        if 'dlyB' in self.dbg: a("s_sleep 127")
        a("s_setprio 2")
        a("s_mov_b64 exec, 0xff")
        a(f"ds_write_b128 v36, v[40:43] offset:2048")
        a("s_mov_b64 exec, -1")
        a(f"s_cmp_lg_u32 s{S_W}, 0")
        a("s_cbranch_scc1 L_at_nz")
        a("s_mov_b64 exec, 0xfff")
        a("ds_write_b32 v37, v38")
        a("s_mov_b64 exec, -1")
        a.label("L_at_nz")
        for i in range(1, 3):
            self.kv_load(i, self.stg(i))
        a("s_waitcnt vmcnt(4)")
        self.stamp(8)
        st = self.stg(0)
        a(f"ds_write_b128 v{self.VWA}, {vr(st,4)}")
        a(f"ds_write_b128 v{self.VWA}, {vr(st+4,4)} offset:1024")
        self.kv_load(3, self.stg(3))
        a("s_add_u32 s44, s44, 4096")
        a("s_add_u32 s45, s45, 4096")
        a(f"ds_read_b128 {vr(self.KA,4)}, v{self.VK}")
        a(f"ds_read_b128 {vr(self.VA,4)}, v{self.VV0}")
        a(f"ds_read_b128 {vr(self.VA+4,4)}, v{self.VV1}")
        a("s_waitcnt lgkmcnt(0)")
        self.mf32(self.SA, self.KA, self.QA, 0)
        a("s_nop 7")
        a("s_nop 3")
        for i in range(8):
            if 'g0det' in self.dbg: self.stamp(i)
            self.attn_tile(i, True)
        self.group_advance()
        self.stamp(9)
        self.srd(SRD_A, S_X, 2048 * 1024)
        a(f"buffer_load_dwordx4 v[160:163], v127, s[{SRD_A}:{SRD_A+3}], s61 offen")
        self.srd(SRD_B, S_B2, 1024)
        a("v_and_b32 v36, 7, v0")
        a("v_lshlrev_b32 v36, 4, v36")
        a(f"s_lshl_b32 s48, s{S_C}, 7")
        a(f"buffer_load_dwordx4 v[164:167], v36, s[{SRD_B}:{SRD_B+3}], s48 offen")
        a("s_mov_b32 s43, 0")
        a.label("L_attn_loop")
        if 'noaprio' not in self.dbg:
            a("s_cmp_eq_u32 s43, 1")
            a("s_cbranch_scc0 L_ap1")
            a("s_setprio 1")
            a.label("L_ap1")
            a("s_cmp_eq_u32 s43, 2")
            a("s_cbranch_scc0 L_ap2")
            a("s_setprio 0")
            a.label("L_ap2")
        for i in range(8):
            self.attn_tile(i, False)
        self.group_advance()
        a("s_add_u32 s43, s43, 1")
        a("s_cmp_lt_u32 s43, 3")
        a("s_cbranch_scc1 L_attn_loop")
        self.mf32(self.OB, self.VB, self.PB, self.OB)
        self.mf32(self.OB, self.VB + 4, self.PB + 4, self.OB)
        self.stamp(10)
        self.cstamp(1)
        a(f"s_lshr_b32 s47, s{S_W}, 2")
        a(f"v_mov_b32 v36, {self.LDS_SYNC}")
        self.lds_spin(36, 4, 40, 1)
        a("s_nop 7")
        a("s_cmp_eq_u32 s47, 0")
        a("s_cbranch_scc1 L_at_ns")
        for r in range(9): a(f"v_swap_b32 v{self.OA+r}, v{self.OB+r}")
        for r in range(4): a(f"v_swap_b32 v{self.QA+r}, v{self.QB+r}")
        a.label("L_at_ns")
        XP = 9 * 256
        a(f"s_mul_i32 s46, s{S_W}, {XP}")
        a(f"s_add_u32 s46, s46, {self.LDS_W2}")
        a("v_add_u32 v36, s46, v1")
        a("v_lshlrev_b32 v37, 2, v0")
        a("v_add_u32 v37, s46, v37")
        a(f"ds_write_b128 v36, {vr(self.OB,4)}")
        a(f"ds_write_b128 v36, {vr(self.OB+4,4)} offset:1024")
        a(f"ds_write_b32 v37, v{self.OB+8} offset:2048")
        a(f"s_lshl_b32 s48, s{S_W}, 2")
        a(f"s_add_u32 s48, s48, {self.LDS_SYNC+16}")
        a("v_mov_b32 v38, s48")
        a("v_mov_b32 v39, 1")
        a("s_waitcnt lgkmcnt(0)")
        a("ds_write_b32 v38, v39")
        a(f"s_xor_b32 s48, s{S_W}, 4")
        a("s_lshl_b32 s46, s48, 2")
        a(f"s_add_u32 s46, s46, {self.LDS_SYNC+16}")
        a("v_mov_b32 v38, s46")
        self.lds_spin(38, 1, 40, 1)
        a(f"s_mul_i32 s46, s48, {XP}")
        a(f"s_add_u32 s46, s46, {self.LDS_W2}")
        a("v_add_u32 v36, s46, v1")
        a("v_lshlrev_b32 v37, 2, v0")
        a("v_add_u32 v37, s46, v37")
        a("ds_read_b128 v[40:43], v36")
        a("ds_read_b128 v[44:47], v36 offset:1024")
        a("ds_read_b32 v48, v37 offset:2048")
        a("s_waitcnt lgkmcnt(0)")
        O = self.OA
        for r in range(9):
            a(f"v_add_f32 v{O+r}, v{O+r}, v{40+r}")
        self.bcast_l()
        a(f"v_mul_f32 v36, 0, v{O}")
        for r in range(1, 8):
            a(f"v_fma_f32 v36, v{O+r}, 0, v36")
        a(f"s_mov_b32 s46, {f2u(2.0**-64):#x}")
        a(f"s_mov_b32 s48, {f2u(2.0**64):#x}")
        a(f"v_cmp_le_f32 s[50:51], s46, v{O+8}")
        a(f"v_cmp_ge_f32 s[52:53], s48, v{O+8}")
        a("v_cmp_eq_f32 vcc, 0, v36")
        a("s_nop 1")
        a("s_and_b64 s[50:51], s[50:51], s[52:53]")
        a("s_and_b64 vcc, vcc, s[50:51]")
        if 'slow' in self.dbg:
            a("s_mov_b64 vcc, 0")
        a("s_cmp_eq_u64 vcc, -1")
        a("s_cbranch_scc0 L_attn_slow")
        a.label("L_attn_norm")
        self.bcast_l()
        a(f"v_rcp_f32 v36, v{O+8}")
        a("s_nop 0")
        for r in range(8):
            a(f"v_mul_f32 v{O+r}, v{O+r}, v36")
        for p in range(4):
            a(f"v_cvt_pk_bf16_f32 v{self.PA+p}, v{O+2*p}, v{O+2*p+1}")
        a(f"v_cmp_eq_u32 vcc, -1, v{self.PA}")
        a("v_mov_b32 v36, 0x7fc07fc0")
        a("s_nop 0")
        a(f"v_cndmask_b32 v{self.PA}, v{self.PA}, v36, vcc")
        a(f"buffer_store_dwordx4 {vr(self.PA,4)}, v1, s[{SRD_WS}:{SRD_WS+3}], s60 offen sc1")
        a("s_branch L_tail_attn")

    def bcast_l(self):
        a = self.a
        a("s_nop 1")
        a(f"v_mov_b32 v37, v{self.OA+8}")
        a("s_nop 1")
        a(f"v_permlane32_swap_b32 v{self.OA+8}, v37")
        a("s_nop 1")

    def attn_slow(self):
        a = self.a
        O, S, P = self.OA, self.SA, self.PA
        a.label("L_attn_slow")
        for r in range(16):
            a(f"v_mov_b32 v{O+r}, 0")
        a(f"v_mov_b32 v136, {f2u(-3.0e38):#x}")
        a("v_mov_b32 v137, v1")
        a("v_mov_b32 v138, v2")
        a("v_mov_b32 v141, v3")
        a("s_mov_b32 s43, 0")
        a.label("L_slow_loop")
        a(f"ds_read_b128 {vr(self.KA,4)}, v137")
        a(f"ds_read_b128 {vr(self.VA,4)}, v138")
        a(f"ds_read_b128 {vr(self.VA+4,4)}, v141")
        a("s_waitcnt lgkmcnt(0)")
        self.mf32(S, self.KA, self.QA, 0)
        a(f"v_add_u32 v137, {self.TP}, v137")
        a(f"v_add_u32 v138, {self.TP}, v138")
        a(f"v_add_u32 v141, {self.TP}, v141")
        a("s_nop 7")
        a("s_nop 7")
        a(f"v_max3_f32 v139, v{S}, v{S+1}, v{S+2}")
        for r in range(3, 15, 2):
            a(f"v_max3_f32 v139, v139, v{S+r}, v{S+r+1}")
        a(f"v_max_f32 v139, v139, v{S+15}")
        a("s_nop 0")
        a("v_mov_b32 v140, v139")
        a("s_nop 1")
        a("v_permlane32_swap_b32 v139, v140")
        a("s_nop 1")
        a("v_max3_f32 v139, v139, v140, v136")
        a("v_sub_f32 v140, v136, v139")
        a("v_exp_f32 v140, v140")
        a("v_mov_b32 v136, v139")
        for r in range(16):
            a(f"v_sub_f32 v{S+r}, v{S+r}, v139")
        for r in range(16):
            a(f"v_exp_f32 v{S+r}, v{S+r}")
        for r in range(9):
            a(f"v_mul_f32 v{O+r}, v{O+r}, v140")
        for p in range(8):
            a(f"v_cvt_pk_bf16_f32 v{P+p}, v{S+2*p}, v{S+2*p+1}")
        a("s_nop 1")
        self.mf32(O, self.VA, P, O)
        self.mf32(O, self.VA + 4, P + 4, O)
        a("s_add_u32 s43, s43, 1")
        a("s_nop 7")
        a("s_nop 7")
        a("s_cmp_lt_u32 s43, 64")
        a("s_cbranch_scc1 L_slow_loop")
        a("s_branch L_attn_norm")

    def role_down(self):
        a = self.a
        a.label("L_s3_gemm")
        if self.stop == "s2":
            a("s_branch L_fin")
        if 'nogprio' not in self.dbg: a("s_setprio 3")
        self.attn_ids()
        a(f"s_sub_u32 s50, s{S_W}, 8")
        self.clear_o()
        self.srd(SRD_A, S_W2, 1792 * 1024)
        ACC, HST, WF = 64, 16, 48
        a("v_lshrrev_b32 v4, 2, v0")
        a("v_lshlrev_b32 v4, 10, v4")
        a("v_and_b32 v5, 3, v0")
        a("v_lshl_add_u32 v4, v5, 4, v4")
        a("s_mul_i32 s44, s50, 6144")
        a(f"s_add_u32 s44, s44, {self.LDS_W2}")
        a("v_lshrrev_b32 v6, 5, v0")
        a("v_bfe_u32 v7, v0, 2, 2")
        a("v_lshl_add_u32 v7, v6, 2, v7")
        a("v_lshlrev_b32 v7, 6, v7")
        a("v_bfe_u32 v8, v0, 4, 1")
        a("v_lshl_add_u32 v7, v8, 5, v7")
        a("v_and_b32 v8, 3, v0")
        a("v_lshl_add_u32 v7, v8, 3, v7")
        a("v_add_u32 v7, s44, v7")
        a("v_lshlrev_b32 v1, 4, v0")
        a("s_mul_i32 s45, s50, 28")
        a("s_lshl_b32 s46, s45, 14")
        a(f"s_lshl_b32 s47, s{S_C}, 7")
        a("s_add_u32 s46, s46, s47")
        a(f"s_mul_i32 s47, s{S_T}, {2*112*1024}")
        a("s_lshl_b32 s48, s45, 10")
        a("s_add_u32 s47, s47, s48")
        a(f"s_add_u32 s47, s47, {WS_H}")
        a(f"s_add_u32 s48, s47, {112*1024}")
        for r in range(64):
            a(f"v_mov_b32 v{ACC+r}, 0")
        def w2dma(slot):
            for cb in range(2):
                a(f"s_add_u32 m0, s44, {slot*2048 + cb*1024}")
                a(f"s_add_u32 s49, s46, {cb*64}")
                a(f"buffer_load_dwordx4 v4, s[{SRD_A}:{SRD_A+3}], s49 offen lds")
            a("s_add_u32 s46, s46, 16384")
        def hload(slot):
            a(f"buffer_load_dwordx4 {vr(HST+8*slot,4)}, v1, s[{SRD_WS}:{SRD_WS+3}], s47 offen sc1")
            a(f"buffer_load_dwordx4 {vr(HST+8*slot+4,4)}, v1, s[{SRD_WS}:{SRD_WS+3}], s48 offen sc1")
            a("s_add_u32 s47, s47, 1024")
            a("s_add_u32 s48, s48, 1024")
        a(f"s_lshr_b32 s51, s{S_T}, 1")
        a("s_lshl_b32 s51, s51, 8")
        a("s_mul_i32 s52, s50, 56")
        a("s_add_u32 s51, s51, s52")
        a(f"s_add_u32 s51, s51, {FL2}")
        if 'nodown' in self.dbg:
            a(f"s_lshl_b32 s48, s50, 2")
            a(f"s_add_u32 s48, s48, {self.LDS_SYNC}")
            a("v_mov_b32 v2, s48")
            a("v_mov_b32 v3, 1")
            a("ds_write_b32 v2, v3")
            a("s_branch L_tail_gemm")
        self.poll_flags(51, 14)
        self.stamp(7)

        for sl in range(3):
            w2dma(sl); hload(sl)
        if 'glow' in self.dbg: a("s_setprio 0")
        def kstep(sl, vm, pre):
            a(f"s_waitcnt vmcnt({vm})")
            for cb in range(2):
                a(f"ds_read_b64_tr_b16 {vr(WF+4*cb,2)}, v7 offset:{sl*2048+cb*1024}")
                a(f"ds_read_b64_tr_b16 {vr(WF+4*cb+2,2)}, v7 offset:{sl*2048+cb*1024+512}")
            a("s_waitcnt lgkmcnt(0)")
            for tb in range(2):
                for cb in range(2):
                    acc = ACC + 16 * (2 * tb + cb)
                    a(f"v_mfma_f32_32x32x16_bf16 {vr(acc,16)}, {vr(WF+4*cb,4)}, {vr(HST+8*sl+4*tb,4)}, {vr(acc,16)}")
                    if 'gspace' in self.dbg: a("s_sleep 1")
                    if 'gspace2' in self.dbg: a("s_sleep 2")
            if pre:
                w2dma(sl); hload(sl)
        a("s_mov_b32 s43, 0")
        a.label("L_down_loop")
        for sl in range(3): kstep(sl, 8, True)
        a("s_add_u32 s43, s43, 1")
        a("s_cmp_lt_u32 s43, 8")
        a("s_cbranch_scc1 L_down_loop")
        kstep(0, 8, True)
        kstep(1, 8, False)
        kstep(2, 4, False)
        kstep(0, 0, False)
        self.srd(SRD_A, S_WO, 512 * 1024)
        a("v_lshrrev_b32 v4, 3, v0")
        a("v_lshlrev_b32 v4, 10, v4")
        a("v_and_b32 v5, 7, v0")
        a("v_lshl_add_u32 v4, v5, 4, v4")
        a("s_lshl_b32 s46, s50, 17")
        a(f"s_lshl_b32 s47, s{S_C}, 7")
        a("s_add_u32 s46, s46, s47")
        for i in range(16):
            a(f"buffer_load_dwordx4 {vr(self.wo_reg(i),4)}, v4, s[{SRD_A}:{SRD_A+3}], s46 offen")
            a("s_add_u32 s46, s46, 8192")
        a(f"s_lshl_b32 s48, s50, 2")
        a(f"s_add_u32 s48, s48, {self.LDS_SYNC}")
        a("v_mov_b32 v2, s48")
        a("v_mov_b32 v3, 1")
        a("ds_write_b32 v2, v3")
        self.stamp(8)
        a("s_branch L_tail_gemm")

    PPITCH, PPART, PBASE = 272, 64 * 272, 4 * 64 * 272

    def wo_reg(self, i):
        return 16 + 4 * i if i < 8 else 128 + 4 * (i - 8)

    def part_write(self, acc_of, tbs, part_sreg):
        a = self.a
        for tb in tbs:
            for cb in range(2):
                acc = acc_of(tb, cb)
                for b in range(4):
                    a(f"ds_write_b128 v9, {vr(acc+4*b,4)} offset:{tb*32*self.PPITCH + (32*cb+8*b)*4}")

    def tail(self):
        a = self.a
        a.label("L_tail_gemm")
        a(f"s_cmp_lg_u32 s{S_W}, 8")
        a("s_cbranch_scc1 L_tail_g1")
        a(f"s_lshr_b32 s51, s{S_T}, 2")
        a("s_lshl_b32 s51, s51, 8")
        a(f"s_add_u32 s51, s51, {FL3}")
        self.poll_flags(51, 32, vt=2)
        self.stamp(9)
        a.label("L_tail_g1")
        a("v_bfe_u32 v6, v0, 2, 1")
        a("v_lshlrev_b32 v6, 10, v6")
        a("v_lshrrev_b32 v7, 3, v0")
        a("v_lshl_add_u32 v6, v7, 6, v6")
        a("v_and_b32 v7, 3, v0")
        a("v_lshl_add_u32 v6, v7, 4, v6")
        a("s_lshl_b32 s44, s50, 14")
        a("v_add_u32 v6, s44, v6")
        a("v_and_b32 v9, 31, v0")
        a(f"v_mul_u32_u24 v9, {self.PPITCH}, v9")
        a("v_lshrrev_b32 v10, 5, v0")
        a("v_lshl_add_u32 v9, v10, 4, v9")
        a(f"s_mul_i32 s44, s50, {self.PPART}")
        a(f"s_add_u32 s44, s44, {self.PBASE}")
        a("v_add_u32 v9, s44, v9")
        a("s_waitcnt vmcnt(0)")
        a("s_barrier")
        for i in range(16):
            a(f"ds_write_b128 v6, {vr(self.wo_reg(i),4)} offset:{(i>>1)*2048 + (i&1)*512}")
        a("s_waitcnt lgkmcnt(0)")
        a("s_barrier")
        self.part_write(lambda tb, cb: 64 + 16 * (2 * tb + cb), (0, 1), None)
        a("s_waitcnt lgkmcnt(0)")
        a("s_barrier")
        a("s_barrier")
        a("s_branch L_fin")
        a.label("L_tail_attn")
        a(f"s_and_b32 s44, s{S_W}, 1")
        a(f"s_lshr_b32 s45, s{S_W}, 1")
        a(f"s_lshl_b32 s52, s{S_T}, 1")
        a("s_add_u32 s52, s52, s44")
        a("s_lshl_b32 s52, s52, 15")
        a("s_lshl_b32 s48, s45, 13")
        a("s_add_u32 s52, s52, s48")
        a(f"s_add_u32 s52, s52, {WS_O}")
        a("s_add_u32 s53, s52, 4096")
        OF, ACC = 96, 64
        a("v_mov_b32 v8, v127")
        def oload(k):
            a(f"buffer_load_dwordx4 {vr(OF+4*k,4)}, v1, s[{SRD_WS}:{SRD_WS+3}], s{52+(k>>2)} offen offset:{(k&3)*1024} sc1")
        a("s_barrier")
        self.stamp(11)
        for k in range(8): oload(k)
        a("v_lshrrev_b32 v5, 3, v0")
        a(f"s_lshl_b32 s46, s{S_W}, 3")
        a("v_add_u32 v5, s46, v5")
        a("v_and_b32 v6, 7, v0")
        a(f"v_mul_u32_u24 v10, {self.PPITCH}, v5")
        a("v_lshl_add_u32 v10, v6, 5, v10")
        a(f"v_add_u32 v11, {self.PBASE}, v10")
        a("v_lshrrev_b32 v6, 5, v0")
        a("v_bfe_u32 v7, v0, 2, 2")
        a("v_lshl_add_u32 v7, v6, 2, v7")
        a("v_lshlrev_b32 v7, 6, v7")
        a("v_bfe_u32 v9, v0, 4, 1")
        a("v_lshl_add_u32 v7, v9, 5, v7")
        a("v_and_b32 v9, 3, v0")
        a("v_lshl_add_u32 v7, v9, 3, v7")
        a("s_lshl_b32 s48, s45, 14")
        a("v_add_u32 v7, s48, v7")
        a("v_and_b32 v9, 31, v0")
        a(f"v_mul_u32_u24 v9, {self.PPITCH}, v9")
        a("v_lshl_add_u32 v9, v6, 4, v9")
        a(f"s_mul_i32 s48, s45, {self.PPART}")
        a(f"s_mul_i32 s49, s44, {32*self.PPITCH}")
        a("s_add_u32 s48, s48, s49")
        a("v_add_u32 v9, s48, v9")
        for r in range(32):
            a(f"v_mov_b32 v{ACC+r}, 0")
        a("s_barrier")
        if 'taildet' in self.dbg: self.stamp(1)
        wreg = lambda k: (128 + 8 * k) if k < 4 else (32 + 8 * (k - 4))
        for k0 in (0, 3, 6):
            for k in range(k0, min(k0 + 3, 8)):
                for cb in range(2):
                    a(f"ds_read_b64_tr_b16 {vr(wreg(k)+4*cb,2)}, v7 offset:{k*2048+cb*1024}")
                    a(f"ds_read_b64_tr_b16 {vr(wreg(k)+4*cb+2,2)}, v7 offset:{k*2048+cb*1024+512}")
            a("s_waitcnt lgkmcnt(0)")
        Lchk, Lok, Lrnd = self.lab("ochk"), self.lab("ook"), self.lab("ornd")
        def check_pass(brk):
            for k in range(8):
                Ln, Lr = self.lab("on"), self.lab("or")
                a(f"s_bitcmp1_b32 s55, {k}")
                a(f"s_cbranch_scc0 {Ln}")
                a(f"v_cmp_eq_u32 vcc, -1, v{OF+4*k}")
                a("s_nop 1")
                a("s_cmp_eq_u64 vcc, 0")
                a(f"s_cbranch_scc0 {Lr}")
                for cb in range(2):
                    a(f"v_mfma_f32_32x32x16_bf16 {vr(ACC+16*cb,16)}, {vr(wreg(k)+4*cb,4)}, {vr(OF+4*k,4)}, {vr(ACC+16*cb,16)}")
                a(f"s_bitset0_b32 s55, {k}")
                a(f"s_branch {Ln}")
                a.label(Lr)
                oload(k)
                if 'inorder' in self.dbg: a(f"s_branch {brk}")
                a.label(Ln)
        if 'taildet' in self.dbg: self.stamp(2)
        a("s_mov_b32 s58, 0")
        a("s_mov_b32 s55, 0xff")
        a("s_waitcnt vmcnt(0)")
        Lp1 = self.lab("p1")
        check_pass(Lp1)
        a.label(Lp1)
        if 'taildet' in self.dbg: self.stamp(3)
        a("s_barrier")
        for half in range(2):
            for pp in range(2):
                a(f"ds_read_b128 v[12:15], v11 offset:{(2*pp)*self.PPART + 16*half}")
                a(f"ds_read_b128 v[16:19], v11 offset:{(2*pp+1)*self.PPART + 16*half}")
                a("s_waitcnt lgkmcnt(0)")
                for e in range(4):
                    if pp == 0: a(f"v_add_f32 v{20+4*half+e}, v{12+e}, v{16+e}")
                    else:
                        a(f"v_add_f32 v{12+e}, v{12+e}, v{16+e}")
                        a(f"v_add_f32 v{20+4*half+e}, v{20+4*half+e}, v{12+e}")
        for e in range(4):
            a(f"v_lshlrev_b32 v28, 16, v{164+e}")
            a(f"v_and_b32 v29, 0xffff0000, v{164+e}")
            a(f"v_add_f32 v{20+2*e}, v{20+2*e}, v28")
            a(f"v_add_f32 v{21+2*e}, v{21+2*e}, v29")
        if 'taildet' in self.dbg: self.stamp(4)
        a.label(Lchk)
        a("s_cmp_eq_u32 s55, 0")
        a(f"s_cbranch_scc1 {Lok}")
        a("s_add_u32 s58, s58, 1")
        a("s_cmp_ge_u32 s58, 0x4000")
        a(f"s_cbranch_scc1 {Lok}")
        a("s_waitcnt vmcnt(0)")
        check_pass(Lchk)
        a(f"s_branch {Lchk}")
        a.label(Lok)
        if 'loopdet' not in self.dbg: self.stamp(5)
        if self.stamps: a("s_mov_b32 s64, s58")
        for e in range(8):
            a(f"v_mul_f32 v{12+e}, {f2u(-math.log2(math.e)):#x}, v{20+e}")
        for e in range(8):
            a(f"v_exp_f32 v{12+e}, v{12+e}")
        self.part_write(lambda tb, cb: ACC + 16 * cb, (0,), None)
        for e in range(8):
            a(f"v_add_f32 v{12+e}, 1.0, v{12+e}")
        for e in range(8):
            a(f"v_rcp_f32 v{12+e}, v{12+e}")
        self.srd(SRD_B, S_OUT, 2048 * 1024)
        for e in range(8):
            a(f"v_mul_f32 v{20+e}, v{20+e}, v{12+e}")
        a("s_waitcnt lgkmcnt(0)")
        a("s_barrier")
        if 'loopdet' not in self.dbg: self.stamp(6)
        for p in range(4):
            a(f"ds_read_b128 {vr(32+8*p,4)}, v10 offset:{p*self.PPART}")
            a(f"ds_read_b128 {vr(36+8*p,4)}, v10 offset:{p*self.PPART+16}")
        a("s_waitcnt lgkmcnt(0)")
        for e in range(8):
            a(f"v_add_f32 v{32+e}, v{32+e}, v{40+e}")
            a(f"v_add_f32 v{48+e}, v{48+e}, v{56+e}")
        for e in range(8):
            a(f"v_add_f32 v{96+e}, v{32+e}, v{48+e}")
        for e in range(4):
            a(f"v_lshlrev_b32 v28, 16, v{160+e}")
            a(f"v_and_b32 v29, 0xffff0000, v{160+e}")
            a(f"v_fma_f32 v{96+2*e}, v{96+2*e}, v{20+2*e}, v28")
            a(f"v_fma_f32 v{97+2*e}, v{97+2*e}, v{21+2*e}, v29")
        for e in range(4):
            a(f"v_cvt_pk_bf16_f32 v{104+e}, v{96+2*e}, v{97+2*e}")
        if 'dlyC' in self.dbg: a("s_sleep 127")
        sc = "" if 'outplain' in self.dbg else " sc1"
        a(f"buffer_store_dwordx4 v[104:107], v8, s[{SRD_B}:{SRD_B+3}], s61 offen{sc}")

    def build(self):
        a = self.a
        self.entry()
        if 'oldorder' in self.dbg:
            self.role_qkv()
            self.role_v()
            self.role_x()
        else:
            self.role_x()
            self.role_qkv()
            self.role_v()
        self.role_w3()
        self.role_ffn()
        self.role_down()
        self.attn_slow()
        self.s2_idle()
        self.role_attn()
        self.tail()
        a.label("L_fin")
        if 'hdbg' in self.dbg:
            a("s_memrealtime s[90:91]")
            a("s_memtime s[84:85]")
            a("s_waitcnt lgkmcnt(0)")
            a(f"s_cmp_lg_u32 s{S_W}, 0")
            a("s_cbranch_scc1 L_hd_skip")
            self.srd(SRD_B, S_DBG, 256)
            a("s_not_b32 s92, s88")
            a("v_mov_b32 v2, s92")
            a("v_mov_b32 v3, s90")
            a("s_sub_u32 s92, s90, s88")
            a("v_mov_b32 v4, s92")
            a("s_sub_u32 s93, s84, s86")
            a("v_mov_b32 v5, s93")
            a("v_mov_b32 v6, 0")
            a("s_mov_b64 exec, 1")
            a(f"buffer_atomic_umax v2, v6, s[{SRD_B}:{SRD_B+3}], 0 offen offset:8")
            a(f"buffer_atomic_umax v3, v6, s[{SRD_B}:{SRD_B+3}], 0 offen offset:12")
            a(f"buffer_atomic_umax v4, v6, s[{SRD_B}:{SRD_B+3}], 0 offen offset:16")
            a(f"buffer_atomic_umax v5, v6, s[{SRD_B}:{SRD_B+3}], 0 offen offset:20")
            a("s_mov_b64 exec, -1")
            a.label("L_hd_skip")
        self.dump_stamps()
        a.label("L_end")
        a("s_endpgm")
        a.label("L_code_end")
        a(".fill 256, 4, 0xbf800000")
        return a

HEADER = """; Kernarg layout (88 bytes): A_x, A_wqkv, A_wo, B_x, B_w1, B_b1, B_w2, B_b2, d_out, d_debug, d_ws
; @launch grid=(256,1,1) block=(768,1,1) lds=163840
.amdgcn_target "amdgcn-amd-amdhsa--gfx950"
.text
.globl {kn}
.p2align 8
.type {kn},@function
{kn}:
"""
FOOTER = """.section .rodata,"a"
.p2align 6
.amdhsa_kernel {kn}
  .amdhsa_next_free_vgpr 168
  .amdhsa_next_free_sgpr 102
  .amdhsa_accum_offset 168
  .amdhsa_group_segment_fixed_size 0
  .amdhsa_kernarg_size 88
  .amdhsa_user_sgpr_count 2
  .amdhsa_user_sgpr_kernarg_segment_ptr 1
  .amdhsa_system_sgpr_workgroup_id_x 1
.end_amdhsa_kernel
"""
def emit(path, **kw):
    g = Gen(**kw)
    a = g.build()
    check_hazards(a.lines)
    open(path, "w").write(HEADER.format(kn=KN) + a.text() + FOOTER.format(kn=KN))

if __name__ == "__main__":
    out = sys.argv[1] if len(sys.argv) > 1 else "k.s"
    dbg = [x[6:] for x in sys.argv if x.startswith("--dbg=")]
    stop = [x[7:] for x in sys.argv if x.startswith("--stop=")]
    emit(out, stamps=("--stamps" in sys.argv), dbg=dbg[0] if dbg else "", stop_after=stop[0] if stop else "all")
```

```python
import sys, math
from asmlib import Asm, vr, sr, check_hazards

NAME = "recurrent_scan__mha_block__dense_activation_squared_relu__prompt"
KN = NAME + "_kernel"

WS_Q, WS_K, WS_V = 0, 2 << 20, 4 << 20
WS_H = 6 << 20
WS_O = 14 << 20
WS_F = 16 << 20
WS_DBG = WS_F + (64 << 10)
WS_SIZE = WS_DBG + (256 << 10)
if 'dumpf' in ' '.join(sys.argv): WS_SIZE = 32 << 20
FL1, FL2, FL3 = WS_F, WS_F + 4096, WS_F + 8192

LDS_RING = 131072
LDS_SCR = LDS_RING + 3 * 8192 + 7 * 1024
LDS_NONCE = LDS_RING + 3 * 8192 + 6 * 1024
LDS_XF = LDS_NONCE + 16
LDS_DROP = 0x30000

QSCALE = 0.25 * math.log2(math.e)

def f2u(x):
    import struct
    return struct.unpack("<I", struct.pack("<f", x))[0]

S_W = 3
S_X, S_WQKV, S_WO, S_W1, S_B1, S_W2, S_B2, S_OUT, S_DBG, S_WS = 4, 6, 8, 12, 14, 16, 18, 20, 22, 24
S_TG, S_J = 26, 27
SRD_WS, SRD_A, SRD_B = 28, 32, 36
S_NONCE = 40
S_ONES = 41
S_HEAD, S_QB, S_T, S_C = 96, 97, 98, 99

class Gen:
    def __init__(self, stop_after="all", stamps=False, dbg=""):
        self.dbg = dbg.split(",")
        self.a = Asm()
        self.stop = stop_after
        self.stamps = stamps
        self.uid = 0
    def lab(self, p):
        self.uid += 1
        return f"L_{p}_{self.uid}"

    def srd(self, dst, ptr, size):
        a = self.a
        a(f"s_mov_b32 s{dst}, s{ptr}")
        a(f"s_and_b32 s{dst+1}, s{ptr+1}, 0xffff")
        a(f"s_mov_b32 s{dst+2}, {size}")
        a(f"s_mov_b32 s{dst+3}, 0x20000")

    def stamp(self, slot):
        if not self.stamps: return
        a = self.a
        a("s_memtime s[90:91]" if 'cyc' in self.dbg and slot not in (14,) else "s_memrealtime s[90:91]")
        a("s_waitcnt lgkmcnt(0)")
        a(f"s_mov_b32 s{64+slot}, s90")

    def cstamp(self, slot):
        if not self.stamps or 'phclk' not in self.dbg: return
        a = self.a
        a("s_memtime s[90:91]")
        a("s_waitcnt lgkmcnt(0)")
        a(f"s_mov_b32 s{64+slot}, s90")

    def dump_stamps(self):
        if not self.stamps: return
        a = self.a
        a("s_lshl_b32 s92, s2, 4")
        a(f"s_add_u32 s92, s92, s{S_W}")
        a("s_lshl_b32 s92, s92, 6")
        a(f"s_add_u32 s92, s92, {WS_DBG}")
        a("v_mov_b32 v1, 0")
        a("s_memtime s[84:85]")
        self.stamp(14)
        a("s_mov_b32 s79, s88")
        a("s_getreg_b32 s76, hwreg(HW_REG_HW_ID)")
        a("s_sub_u32 s77, s84, s86")
        for i in range(16):
            a(f"v_mov_b32 v2, s{64+i}")
            a(f"buffer_store_dword v2, v1, s[{SRD_WS}:{SRD_WS+3}], s92 offen offset:{4*i}")
            a("s_nop 1")

    def entry(self):
        a = self.a
        if self.stamps or 'hdbg' in self.dbg:
            a("s_memrealtime s[88:89]")
            a("s_memtime s[86:87]")
        a(f"s_cmp_ge_u32 s2, 256")
        a(f"s_cbranch_scc1 L_end")
        if 'dlyA' in self.dbg: a("s_sleep 127")
        a("s_load_dwordx16 s[4:19], s[0:1], 0")
        a("s_load_dwordx4 s[20:23], s[0:1], 64")
        a("s_load_dwordx2 s[24:25], s[0:1], 80")
        a("v_lshrrev_b32 v1, 6, v0")
        a("v_and_b32 v0, 63, v0")
        a("s_and_b32 s26, s2, 1")
        a(f"v_readfirstlane_b32 s{S_W}, v1")
        a("s_lshl_b32 s26, s26, 3")
        a("s_bfe_u32 s42, s2, 0x30003")
        a(f"s_add_u32 s{S_TG}, s26, s42")
        a("s_bfe_u32 s27, s2, 0x20001")
        if 'swap' in self.dbg:
            a("s_lshr_b32 s42, s27, 1")
            a("s_xor_b32 s27, s27, s42")
        a("s_lshl_b32 s27, s27, 2")
        a("s_lshr_b32 s42, s2, 6")
        a(f"s_add_u32 s{S_J}, s27, s42")
        a(f"s_mov_b32 s{S_ONES}, 0x3f803f80")
        if self.stamps:
            for i in range(16): a(f"s_mov_b32 s{64+i}, 0")
        if 'oldorder' in self.dbg:
            a(f"s_cmp_ge_u32 s{S_W}, 8")
            a("s_cbranch_scc1 L_role_ffn")
            a(f"s_cmp_ge_u32 s{S_W}, 4")
            a("s_cbranch_scc1 L_role_x")
            a(f"s_cmp_eq_u32 s{S_W}, 3")
            a("s_cbranch_scc1 L_role_w3")
        else:
            a(f"s_cmp_lt_u32 s{S_W}, 3")
            a("s_cbranch_scc1 L_role_qkv")
            a(f"s_cmp_ge_u32 s{S_W}, 8")
            a("s_cbranch_scc1 L_role_ffn")
            a(f"s_cmp_eq_u32 s{S_W}, 3")
            a("s_cbranch_scc1 L_role_w3")

    ACC = 64
    XA, XB = 16, 32
    WA, WB = 48, 52
    CS = 56
    VXA = 4
    VWR = 8
    VWG = 9
    S_WOFF, S_WSTR, S_RING, S_RINGD, S_CNT = 42, 43, 44, 45, 46

    def gemm_setup_addrs(self):
        a = self.a
        a("v_and_b32 v10, 31, v0")
        a("v_lshrrev_b32 v11, 5, v0")
        a("v_bfe_u32 v12, v0, 1, 3")
        a("v_xor_b32 v12, v11, v12")
        a("v_lshlrev_b32 v12, 4, v12")
        a(f"v_lshl_or_b32 v{self.VXA}, v10, 7, v12")
        for m in range(1, 4):
            a(f"v_xor_b32 v{self.VXA+m}, {32*m}, v{self.VXA}")
        a("v_bfe_u32 v12, v0, 2, 2")
        a("v_lshl_add_u32 v12, v11, 3, v12")
        a("v_lshlrev_b32 v12, 6, v12")
        a("v_bfe_u32 v13, v0, 4, 1")
        a("v_lshl_add_u32 v12, v13, 5, v12")
        a("v_and_b32 v13, 3, v0")
        a(f"v_lshl_add_u32 v{self.VWR}, v13, 3, v12")
        a(f"v_add_u32 v{self.VWR}, s{self.S_RING}, v{self.VWR}")

    def gemm_wg_voffset(self, pitch):
        a = self.a
        a("v_lshrrev_b32 v12, 2, v0")
        a(f"s_mov_b32 s47, {pitch}")
        a("v_mul_lo_u32 v12, v12, s47")
        a("v_and_b32 v13, 3, v0")
        a(f"v_lshl_add_u32 v{self.VWG}, v13, 4, v12")

    def w_dma(self, slot, ring_reg):
        a = self.a
        a(f"s_add_u32 m0, s{ring_reg}, {slot*1024}")
        a(f"s_add_u32 s{self.S_WOFF}, s{self.S_WOFF}, s{self.S_WSTR}")
        a(f"buffer_load_dwordx4 v{self.VWG}, s[{SRD_A}:{SRD_A+3}], s{self.S_WOFF} offen lds")

    def frag_reads(self, ksn, X, W, base_ks):
        a = self.a
        rel = ksn - base_ks
        slot = ksn & 7
        m = ksn & 3
        kc = rel >> 2 if base_ks % 8 == 0 else None
        return rel, slot, m, kc

    VF = 144
    S_NEED = 56

    def xflag_check(self, L):
        a = self.a
        a(f"v_readfirstlane_b32 s57, v149")
        return L

    S1D = 10

    def gemm_s1(self, swapped):
        a = self.a
        D = self.S1D
        for ks in range(32):
            X, W = (self.XA, self.WA) if ks % 2 == 0 else (self.XB, self.WB)
            Xn, Wn = (self.XB, self.WB) if ks % 2 == 0 else (self.XA, self.WA)
            def mf(tb):
                acc = self.ACC + 16 * tb
                if swapped:
                    a(f"v_mfma_f32_32x32x16_bf16 {vr(acc,16)}, {vr(X+4*tb,4)}, {vr(W,4)}, {vr(acc,16)}")
                else:
                    a(f"v_mfma_f32_32x32x16_bf16 {vr(acc,16)}, {vr(W,4)}, {vr(X+4*tb,4)}, {vr(acc,16)}")
            n = ks + 1
            chk = (ks & 3) == 3 and n < 32
            a("s_waitcnt lgkmcnt(0)")
            mf(0)
            if chk:
                a(f"v_min3_u32 v149, v{self.VF}, v{self.VF+1}, v{self.VF+2}")
                a(f"v_min_u32 v149, v149, v{self.VF+3}")
            if ks + D < 32:
                self.w_dma(ks % D, self.S_RING)
            elif chk: a("s_nop 0")
            if chk: a("v_readfirstlane_b32 s57, v149")
            if n < 32:
                a(f"s_waitcnt vmcnt({min(D - 1, 31 - n) if ks + D < 32 else 31 - n})")
                a(f"ds_read_b64_tr_b16 {vr(Wn,2)}, v{self.VWR} offset:{(n % D)*1024}")
                a(f"ds_read_b64_tr_b16 {vr(Wn+2,2)}, v{self.VWR} offset:{(n % D)*1024+256}")
            if chk:
                need = (n >> 2) + 1
                Lok, Lsp = self.lab("xok"), self.lab("xsp")
                a(f"s_cmp_ge_u32 s57, {need}")
                a(f"s_cbranch_scc1 {Lok}")
                a("s_mov_b32 s58, 0")
                a.label(Lsp)
                a(f"ds_read_b128 {vr(self.VF,4)}, v148")
                a("s_add_u32 s58, s58, 1")
                a("s_waitcnt lgkmcnt(0)")
                a(f"v_min3_u32 v149, v{self.VF}, v{self.VF+1}, v{self.VF+2}")
                a(f"v_min_u32 v149, v149, v{self.VF+3}")
                a("s_nop 0")
                a("v_readfirstlane_b32 s57, v149")
                a("s_cmp_ge_u32 s58, 0x100000")
                a(f"s_cbranch_scc1 {Lok}")
                a(f"s_cmp_lt_u32 s57, {need}")
                a(f"s_cbranch_scc1 {Lsp}")
                a.label(Lok)
            mf(1)
            if n < 32:
                if n == 16:
                    for m in range(4): a(f"v_add_u32 v{self.VXA+m}, 0x10000, v{self.VXA+m}")
                for tb in range(4):
                    a(f"ds_read_b128 {vr(Xn+4*tb,4)}, v{self.VXA+(n&3)} offset:{((n>>2)&3)*16384 + tb*4096}")
                if (ks & 3) == 2 and n + 1 < 32:
                    a(f"ds_read_b128 {vr(self.VF,4)}, v148")
            mf(2)
            a(f"v_mfma_f32_16x16x32_bf16 {vr(self.CS4,4)}, {vr(W,4)}, {vr(self.PAR,4)}, {vr(self.CS4,4)}")
            mf(3)

    def gemm_loop(self, swapped, s1, tag):
        a = self.a
        L = self.lab("gl_" + tag)
        a(f"s_mov_b32 s{self.S_CNT}, 0")
        a(f"s_mov_b32 s{self.S_RINGD}, s{self.S_RING}")
        if s1: a(f"s_mov_b32 s{self.S_NEED}, 1")
        a.label(L)
        if 'loopdet' in self.dbg:
            a("s_memtime s[90:91]")
            a("s_waitcnt lgkmcnt(0)")
            for t in range(4):
                a(f"s_cmp_eq_u32 s{self.S_CNT}, {t}")
                sl = (0 if not s1 else 4) + t
                a(f"s_cselect_b32 s{64+sl}, s90, s{64+sl}")
        a(f"s_cmp_eq_u32 s{self.S_CNT}, 3")
        a(f"s_cselect_b32 s{self.S_RINGD}, {LDS_DROP}, s{self.S_RINGD}")
        if not s1 and self.stop != "s2":
            L0 = self.lab("x0")
            a(f"s_cbranch_scc0 {L0}")
            a("s_barrier")
            a.label(L0)
        for i in range(8):
            X, W = (self.XA, self.WA) if i % 2 == 0 else (self.XB, self.WB)
            Xn, Wn = (self.XB, self.WB) if i % 2 == 0 else (self.XA, self.WA)
            def mf(tb):
                acc = self.ACC + 16 * tb
                if swapped:
                    a(f"v_mfma_f32_32x32x16_bf16 {vr(acc,16)}, {vr(X+4*tb,4)}, {vr(W,4)}, {vr(acc,16)}")
                else:
                    a(f"v_mfma_f32_32x32x16_bf16 {vr(acc,16)}, {vr(W,4)}, {vr(X+4*tb,4)}, {vr(acc,16)}")
            chk = s1 and (i & 3) == 3
            a("s_waitcnt lgkmcnt(0)")
            mf(0)
            if chk:
                a(f"v_min3_u32 v149, v{self.VF}, v{self.VF+1}, v{self.VF+2}")
                a(f"s_add_u32 s{self.S_NEED}, s{self.S_NEED}, 1")
                a(f"v_min_u32 v149, v149, v{self.VF+3}")
                a(f"s_min_u32 s{self.S_NEED}, s{self.S_NEED}, 8")
            self.w_dma(i, self.S_RINGD)
            if chk: a("v_readfirstlane_b32 s57, v149")
            a("s_waitcnt vmcnt(7)")
            nslot = (i + 1) & 7
            a(f"ds_read_b64_tr_b16 {vr(Wn,2)}, v{self.VWR} offset:{nslot*1024}")
            a(f"ds_read_b64_tr_b16 {vr(Wn+2,2)}, v{self.VWR} offset:{nslot*1024+256}")
            if chk:
                Lok, Lsp = self.lab("xok"), self.lab("xsp")
                a(f"s_cmp_ge_u32 s57, s{self.S_NEED}")
                a(f"s_cbranch_scc1 {Lok}")
                a("s_mov_b32 s58, 0")
                a.label(Lsp)
                a(f"ds_read_b128 {vr(self.VF,4)}, v148")
                a("s_add_u32 s58, s58, 1")
                a("s_waitcnt lgkmcnt(0)")
                a(f"v_min3_u32 v149, v{self.VF}, v{self.VF+1}, v{self.VF+2}")
                a(f"v_min_u32 v149, v149, v{self.VF+3}")
                a("s_nop 0")
                a("v_readfirstlane_b32 s57, v149")
                a("s_cmp_ge_u32 s58, 0x100000")
                a(f"s_cbranch_scc1 {Lok}")
                a(f"s_cmp_lt_u32 s57, s{self.S_NEED}")
                a(f"s_cbranch_scc1 {Lsp}")
                a.label(Lok)
            mf(1)
            n = i + 1
            for tb in range(4):
                a(f"ds_read_b128 {vr(Xn+4*tb,4)}, v{self.VXA+(n&3)} offset:{(n>>2)*16384 + tb*4096}")
            if s1 and (i & 3) == 2:
                a(f"ds_read_b128 {vr(self.VF,4)}, v148")
            mf(2)
            if 'nocs' not in self.dbg:
                a(f"v_mfma_f32_16x16x32_bf16 {vr(self.CS4,4)}, {vr(W,4)}, {vr(self.PAR,4)}, {vr(self.CS4,4)}")
            mf(3)
        for m in range(4):
            a(f"v_add_u32 v{self.VXA+m}, 0x8000, v{self.VXA+m}")
        a(f"s_add_u32 s{self.S_CNT}, s{self.S_CNT}, 1")
        a(f"s_cmp_lt_u32 s{self.S_CNT}, 4")
        a(f"s_cbranch_scc1 {L}")

    def wait_xflags(self, regs, need, vaddr, vt):
        a = self.a
        Lsp, Lok = self.lab("wsp"), self.lab("wok")
        a("s_mov_b32 s58, 0")
        a.label(Lsp)
        n = len(regs)
        a(f"ds_read_b{32*n} {vr(regs[0], n)}, v{vaddr}")
        a("s_add_u32 s58, s58, 1")
        a("s_waitcnt lgkmcnt(0)")
        if n == 4:
            a(f"v_min3_u32 v{vt}, v{regs[0]}, v{regs[1]}, v{regs[2]}")
            a(f"v_min_u32 v{vt}, v{vt}, v{regs[3]}")
        else:
            a(f"v_min_u32 v{vt}, v{regs[0]}, v{regs[1]}")
        a("s_nop 0")
        a(f"v_readfirstlane_b32 s57, v{vt}")
        a("s_cmp_ge_u32 s58, 0x100000")
        a(f"s_cbranch_scc1 {Lok}")
        a(f"s_cmp_lt_u32 s57, {need}")
        a(f"s_cbranch_scc1 {Lsp}")
        a.label(Lok)

    CS4 = 56
    PAR = 60

    def cs_acc(self, W, q0, q1):
        a = self.a
        for q in range(q0, q1):
            t = 58 + 2 * (q & 1)
            a(f"v_lshlrev_b32 v{t}, 16, v{W+q}")
            a(f"v_and_b32 v{t+1}, 0xffff0000, v{W+q}")
            a(f"v_add_f32 v{self.CS}, v{t}, v{self.CS}")
            a(f"v_add_f32 v{self.CS+1}, v{t+1}, v{self.CS+1}")

    def gemm_first_frags(self):
        a = self.a
        a(f"ds_read_b64_tr_b16 {vr(self.WA,2)}, v{self.VWR} offset:0")
        a(f"ds_read_b64_tr_b16 {vr(self.WA+2,2)}, v{self.VWR} offset:256")
        for tb in range(4):
            a(f"ds_read_b128 {vr(self.XA+4*tb,4)}, v{self.VXA} offset:{tb*4096}")

    def zero_acc(self):
        a = self.a
        for i in range(64):
            a(f"v_mov_b32 v{self.ACC+i}, 0")

    def cs16_from_cs4(self):
        a = self.a
        a("v_lshrrev_b32 v11, 5, v0")
        a("v_lshlrev_b32 v11, 6, v11")
        a("s_waitcnt lgkmcnt(0)")
        for r in range(16):
            b, jj = r >> 2, r & 3
            a(f"ds_bpermute_b32 v{16+r}, v11, v{self.CS4+jj} offset:{128*(b&1)+4*(b>>1)}")

    def cs_total(self):
        a = self.a
        a(f"v_add_f32 v{self.CS}, v{self.CS}, v{self.CS+1}")
        a("s_nop 0")
        a(f"v_mov_b32 v{self.CS+1}, v{self.CS}")
        a("s_nop 1")
        a(f"v_permlane32_swap_b32 v{self.CS}, v{self.CS+1}")
        a("s_nop 1")
        a(f"v_add_f32 v{self.CS}, v{self.CS}, v{self.CS+1}")

    def read_nonce(self, vtmp):
        a = self.a
        a(f"v_mov_b32 v{vtmp}, {LDS_NONCE}")
        a(f"ds_read_b32 v{vtmp}, v{vtmp}")

    def publish_flag(self, s_off, vtmp):
        a = self.a
        a("s_waitcnt vmcnt(0)")
        a(f"v_mov_b32 v{vtmp}, s{S_NONCE}")
        a(f"v_mov_b32 v{vtmp+1}, 0")
        a("s_mov_b64 exec, 1")
        a(f"buffer_store_dword v{vtmp}, v{vtmp+1}, s[{SRD_WS}:{SRD_WS+3}], s{s_off} offen sc1")
        a("s_mov_b64 exec, -1")

    def tok_stats_read(self):
        a = self.a
        a("v_and_b32 v10, 31, v0")
        a(f"v_lshlrev_b32 v10, 2, v10")
        a(f"v_add_u32 v10, {LDS_SCR}, v10")
        for tb in range(4):
            a(f"ds_read_b32 v{32+2*tb}, v10 offset:{tb*128}")
            a(f"ds_read_b32 v{33+2*tb}, v10 offset:{512+tb*128}")
        self.read_nonce(40)
        a("v_lshrrev_b32 v11, 5, v0")
        a("v_lshlrev_b32 v11, 4, v11")
        for r in range(16):
            a(f"ds_bpermute_b32 v{16+r}, v11, v{self.CS} offset:{(8*(r>>2)+(r&3))*4}")

    def role_qkv(self):
        a = self.a
        a.label("L_role_qkv")
        if 's1unr' not in self.dbg: a(f"s_lshl_b32 s{self.S_RING}, s{S_W}, 13")
        else: a(f"s_mul_i32 s{self.S_RING}, s{S_W}, {self.S1D*1024}")
        a(f"s_add_u32 s{self.S_RING}, s{self.S_RING}, {LDS_RING}")
        a(f"s_mul_i32 s53, s{S_J}, 3")
        a(f"s_add_u32 s53, s53, s{S_W}")
        self.gemm_wg_voffset(3072)
        a(f"s_lshl_b32 s{self.S_WOFF}, s53, 6")
        a(f"s_mov_b32 s{self.S_WSTR}, {16*3072 if 'wq0' not in self.dbg else 0}")
        a(f"s_sub_u32 s{self.S_WOFF}, s{self.S_WOFF}, s{self.S_WSTR}")
        a("s_waitcnt lgkmcnt(0)")
        self.srd(SRD_A, S_WQKV, 512 * 3072)
        n0 = 8 if 'w8first' in self.dbg else 2
        for sl in range(n0):
            self.w_dma(sl, self.S_RING)
        a("s_lshr_b32 s54, s53, 4")
        a("s_and_b32 s55, s53, 15")
        self.srd(SRD_WS, S_WS, WS_SIZE)
        self.gemm_setup_addrs()
        self.zero_acc()
        nd = 8 if 's1unr' not in self.dbg else self.S1D
        for sl in range(n0, nd):
            self.w_dma(sl, self.S_RING)
        self.cs4_init()
        a(f"v_mov_b32 v148, {LDS_XF}")
        self.stamp(0)
        a("s_barrier")
        self.wait_xflags([144, 145, 146, 147], 1, 148, 149)
        a(f"s_waitcnt vmcnt({nd - 1})")
        self.stamp(1)
        self.gemm_first_frags()
        a("s_cmp_eq_u32 s54, 2")
        a("s_cbranch_scc1 L_role_v")
        if 's1unr' not in self.dbg: self.gemm_loop(False, True, "qk")
        else: self.gemm_s1(False)
        self.stamp(2)
        a("s_barrier")
        a("v_and_b32 v10, 31, v0")
        a(f"v_lshlrev_b32 v10, 2, v10")
        a(f"v_add_u32 v10, {LDS_SCR}, v10")
        for tb in range(4):
            a(f"ds_read_b32 v{32+2*tb}, v10 offset:{tb*128}")
            a(f"ds_read_b32 v{33+2*tb}, v10 offset:{512+tb*128}")
        self.read_nonce(40)
        a("s_nop 3")
        self.cs16_from_cs4()
        a("s_waitcnt lgkmcnt(0)")
        a(f"v_readfirstlane_b32 s{S_NONCE}, v40")
        a("s_cmp_eq_u32 s54, 0")
        a(f"s_cselect_b32 s47, {f2u(QSCALE)}, 1.0")
        for tb in range(4):
            a(f"v_mul_f32 v{32+2*tb}, s47, v{32+2*tb}")
            a(f"v_mul_f32 v{33+2*tb}, s47, v{33+2*tb}")
        a("s_lshl_b32 s48, s54, 21")
        a("s_lshl_b32 s49, s55, 17")
        a("s_add_u32 s48, s48, s49")
        a(f"s_lshl_b32 s49, s{S_TG}, 12")
        a("s_add_u32 s48, s48, s49")
        a("v_lshlrev_b32 v10, 4, v0")
        self.tok_epilogue_store(ffn=False)
        a("s_barrier")
        a("s_lshl_b32 s48, s55, 8")
        a("s_lshl_b32 s49, s54, 6")
        a("s_add_u32 s48, s48, s49")
        a(f"s_lshl_b32 s49, s{S_TG}, 2")
        a("s_add_u32 s48, s48, s49")
        a(f"s_add_u32 s48, s48, {FL1}")
        self.publish_flag(48, 12)
        self.stamp(3)
        a("s_branch L_s2_idle")

    def tok_epilogue_store(self, ffn):
        a = self.a
        hb_stride = 1024 if ffn else 65536
        tb_stride = 112 * 1024 if ffn else 1024
        T = 44
        for tb in range(4):
            st = 32 + 2 * tb
            for hb in range(2):
                P = 48 + 4 * hb
                for p in range(4):
                    r = 8 * hb + 2 * p
                    acc = self.ACC + 16 * tb + r
                    w = T + 2 * (p & 1)
                    for e in range(2):
                        if ffn: a(f"v_fma_f32 v{w+e}, v{16+r+e}, v{st+1}, v{128+r+e}")
                        else:   a(f"v_mul_f32 v{w+e}, v{16+r+e}, v{st+1}")
                    for e in range(2):
                        a(f"v_fma_f32 v{acc+e}, v{acc+e}, v{st}, v{w+e}")
                    if ffn:
                        for e in range(2):
                            a(f"v_max_f32 v{w+e}, 0, v{acc+e}")
                        for e in range(2):
                            a(f"v_mul_f32 v{acc+e}, v{w+e}, v{w+e}")
                    a(f"v_cvt_pk_bf16_f32 v{P+p}, v{acc}, v{acc+1}")
                off = hb * hb_stride + tb * tb_stride
                a(f"s_add_u32 s49, s48, {off}")
                a(f"buffer_store_dwordx4 {vr(P,4)}, v10, s[{SRD_WS}:{SRD_WS+3}], s49 offen sc1")

    def role_v(self):
        a = self.a
        a.label("L_role_v")
        if 's1unr' not in self.dbg: self.gemm_loop(True, True, "v")
        else: self.gemm_s1(True)
        self.stamp(2)
        a("s_barrier")
        self.read_nonce(40)
        a("v_bfe_u32 v12, v0, 2, 2")
        a("v_bfe_u32 v13, v0, 4, 1")
        a("v_lshl_add_u32 v12, v12, 4, v13")
        a("v_lshlrev_b32 v12, 2, v12")
        a("s_nop 3")
        a("s_waitcnt lgkmcnt(0)")
        for jj in range(4):
            a(f"ds_bpermute_b32 v{16+jj}, v12, v{self.CS4+jj}")
        a("v_and_b32 v13, 3, v0")
        a("s_waitcnt lgkmcnt(0)")
        for jj in range(1, 4):
            a(f"v_cmp_eq_u32 vcc, {jj}, v13")
            a("s_nop 1")
            a(f"v_cndmask_b32 v16, v16, v{16+jj}, vcc")
        a(f"v_mov_b32 v{self.CS}, v16")
        a("v_lshrrev_b32 v11, 5, v0")
        a("v_lshlrev_b32 v11, 4, v11")
        a(f"v_add_u32 v11, {LDS_SCR}, v11")
        a("v_bfe_u32 v12, v0, 4, 1")
        a("v_lshlrev_b32 v12, 16, v12")
        a("v_lshrrev_b32 v13, 5, v0")
        a("v_lshl_add_u32 v12, v13, 8, v12")
        a("v_and_b32 v13, 15, v0")
        a("v_lshl_add_u32 v10, v13, 4, v12")
        a("s_lshl_b32 s48, s55, 17")
        a(f"s_lshl_b32 s49, s{S_TG}, 12")
        a("s_add_u32 s48, s48, s49")
        a(f"s_add_u32 s48, s48, {WS_V}")
        a("s_waitcnt lgkmcnt(0)")
        a(f"v_readfirstlane_b32 s{S_NONCE}, v40")
        for tb in range(4):
            for b in range(4):
                a(f"ds_read_b128 {vr(16+4*b,4)}, v11 offset:{(32*tb+8*b)*4}")
                a(f"ds_read_b128 {vr(32+4*b,4)}, v11 offset:{512+(32*tb+8*b)*4}")
            a("s_waitcnt lgkmcnt(0)")
            for t in range(2):
                P = 48 + 4 * t
                for p in range(4):
                    r = 8 * t + 2 * p
                    acc = self.ACC + 16 * tb + r
                    w = 58 + 2 * (p & 1)
                    for e in range(2):
                        a(f"v_mul_f32 v{w+e}, v{32+r+e}, v{self.CS}")
                    for e in range(2):
                        a(f"v_fma_f32 v{acc+e}, v{acc+e}, v{16+r+e}, v{w+e}")
                    a(f"v_cvt_pk_bf16_f32 v{P+p}, v{acc}, v{acc+1}")
                a(f"s_add_u32 s49, s48, {tb*1024 + t*512}")
                a(f"buffer_store_dwordx4 {vr(P,4)}, v10, s[{SRD_WS}:{SRD_WS+3}], s49 offen sc1")
        a("s_barrier")
        a("s_lshl_b32 s48, s55, 8")
        a(f"s_lshl_b32 s49, s{S_TG}, 2")
        a("s_add_u32 s48, s48, s49")
        a(f"s_add_u32 s48, s48, {FL1 + 128}")
        self.publish_flag(48, 12)
        self.stamp(3)
        a("s_branch L_s2_idle")

    def role_x(self):
        a = self.a
        a.label("L_role_x")
        a("v_lshrrev_b32 v1, 3, v0")
        a("v_lshrrev_b32 v2, 4, v0")
        a("v_and_b32 v3, 7, v0")
        a("v_xor_b32 v3, v2, v3")
        a("v_lshlrev_b32 v3, 4, v3")
        a("v_lshl_or_b32 v2, v1, 10, v3")
        a("v_xor_b32 v3, 64, v2")
        a(f"s_sub_u32 s42, s{S_W}, 4")
        a(f"s_lshl_b32 s43, s{S_TG}, 17")
        a("s_lshl_b32 s44, s42, 15")
        a("s_add_u32 s43, s43, s44")
        a("s_lshl_b32 s44, s42, 12")
        a("s_waitcnt lgkmcnt(0)")
        self.srd(SRD_A, S_X, 2048 * 1024)
        D = self.XLOOK
        def chunk(kc):
            for rg in range(4):
                a(f"s_add_u32 m0, s44, {kc*16384 + rg*1024}")
                a(f"s_add_u32 s45, s43, {rg*8192 + kc*128}")
                a(f"buffer_load_dwordx4 v{2+(rg&1)}, s[{SRD_A}:{SRD_A+3}], s45 offen lds")
        ramp = 'noramp' not in self.dbg and 'nox' not in self.dbg
        R = [d for d in self.dbg if d.startswith('rp')]
        sched = {'rpA': ([0, 1], [[2, 3], [4, 5], [6], [7], [], [], [], []]),
                 'rpB': ([0, 1], [[2, 3, 4], [5, 6], [7], [], [], [], [], []]),
                 'rpC': ([0, 1, 2], [[3, 4], [5, 6], [7], [], [], [], [], []])}[R[0] if R else 'rpA'] if ramp else None
        for kc in (sched[0] if ramp else range(D)): chunk(kc)
        self.srd(SRD_WS, S_WS, WS_SIZE)
        a("s_lshl_b32 s46, s42, 2")
        a(f"s_add_u32 s46, s46, {LDS_XF}")
        a("v_mov_b32 v4, s46")
        a("v_mov_b32 v5, 0")
        a("ds_write_b32 v4, v5")
        a("s_waitcnt lgkmcnt(0)")
        self.stamp(0)
        a("s_barrier")
        for kc in range(8):
            a(f"v_mov_b32 v5, {kc+1}")
            if ramp:
                issued = max(sched[0] + [c for k2 in range(kc) for c in sched[1][k2]])
                a(f"s_waitcnt vmcnt({4*(issued - kc)})")
            elif 'nox' not in self.dbg or kc == 0: a(f"s_waitcnt vmcnt({4*min(D-1, 7-kc)})")
            a("ds_write_b32 v4, v5")
            if kc == 0: self.stamp(1)
            if 's1det' in self.dbg: self.stamp(kc + 4)
            if ramp:
                for c in sched[1][kc]: chunk(c)
            elif kc + D < 8 and 'nox' not in self.dbg: chunk(kc + D)
        a("s_waitcnt lgkmcnt(0)")
        a("s_barrier")
        self.read_nonce(40)
        a("s_waitcnt lgkmcnt(0)")
        a(f"v_readfirstlane_b32 s{S_NONCE}, v40")
        a("s_barrier")
        self.stamp(3)
        a("s_branch L_s2_idle")

    @property
    def XLOOK(self):
        for d in self.dbg:
            if d.startswith('xl'): return int(d[2:])
        return 3
    WLOOK = 4

    def stats_setup(self, tb0):
        a = self.a
        a("v_and_b32 v10, 31, v0")
        a("v_lshrrev_b32 v11, 5, v0")
        a("v_bfe_u32 v12, v0, 1, 3")
        a("v_xor_b32 v12, v11, v12")
        a("v_lshlrev_b32 v12, 4, v12")
        a("v_lshl_or_b32 v152, v10, 7, v12")
        a(f"v_add_u32 v152, {tb0*4096}, v152")
        for m in range(1, 4):
            a(f"v_xor_b32 v{152+m}, {32*m}, v152")
        for i in range(8):
            a(f"v_mov_b32 v{156+i}, 0")

    def stats_chunk(self, kc, tb0):
        a = self.a
        a(f"v_mov_b32 v12, {LDS_XF + 4*tb0}")
        self.wait_xflags([10, 11], kc + 1, 12, 13)
        if kc == 4:
            for m in range(4): a(f"v_add_u32 v{152+m}, 0x10000, v{152+m}")
        for m in range(4):
            for t in range(2):
                a(f"ds_read_b128 {vr(16+8*m+4*t,4)}, v{152+m} offset:{(kc&3)*16384 + t*4096}")
        for m in range(4):
            for t in range(2):
                a(f"s_waitcnt lgkmcnt({7-2*m-t})")
                F = 16 + 8*m + 4*t
                for q in range(4 if 'nostats' not in self.dbg else 0):
                    a(f"v_dot2c_f32_bf16 v{156+4*t+(q&1)}, s{S_ONES}, v{F+q}")
                    a(f"v_dot2c_f32_bf16 v{158+4*t+(q&1)}, v{F+q}, v{F+q}")

    def stats_final(self, tb0):
        a = self.a
        a("s_nop 2")
        for t in range(2):
            a(f"v_add_f32 v{156+4*t}, v{156+4*t}, v{157+4*t}")
            a(f"v_add_f32 v{158+4*t}, v{158+4*t}, v{159+4*t}")
        a("s_nop 0")
        for t in range(2):
            a(f"v_mov_b32 v{157+4*t}, v{156+4*t}")
            a(f"v_mov_b32 v{159+4*t}, v{158+4*t}")
        a("s_nop 1")
        for t in range(2):
            a(f"v_permlane32_swap_b32 v{156+4*t}, v{157+4*t}")
            a(f"v_permlane32_swap_b32 v{158+4*t}, v{159+4*t}")
        a("s_nop 1")
        a("v_and_b32 v12, 31, v0")
        a("v_lshlrev_b32 v12, 2, v12")
        a(f"v_add_u32 v12, {LDS_SCR + tb0*128}, v12")
        for t in range(2):
            S, Q = 156+4*t, 158+4*t
            a(f"v_add_f32 v{S}, v{S}, v{S+1}")
            a(f"v_add_f32 v{Q}, v{Q}, v{Q+1}")
            a(f"v_mul_f32 v{S}, {f2u(1.0/512)}, v{S}")
            a(f"v_mul_f32 v{Q}, {f2u(1.0/512)}, v{Q}")
            a(f"v_fma_f32 v{Q}, -v{S}, v{S}, v{Q}")
            a(f"v_max_f32 v{Q}, 0, v{Q}")
            a(f"v_add_f32 v{Q}, {f2u(1e-5)}, v{Q}")
            a(f"v_rsq_f32 v{Q}, v{Q}")
            a("s_nop 0")
            a(f"v_mul_f32 v{S}, v{S}, v{Q}")
            a(f"v_sub_f32 v{S}, 0, v{S}")
            a(f"ds_write_b32 v12, v{Q} offset:{t*128}")
            a(f"ds_write_b32 v12, v{S} offset:{512+t*128}")
        a("s_waitcnt lgkmcnt(0)")

    def role_w3(self):
        a = self.a
        a.label("L_role_w3")
        self.stats_setup(0)
        a("s_waitcnt lgkmcnt(0)")
        self.srd(SRD_WS, S_WS, WS_SIZE)
        self.srd(SRD_A, S_DBG, 256)
        a("v_mov_b32 v2, 0")
        a("s_cmp_lg_u32 s2, 0")
        a("s_cbranch_scc1 L_nc_np")
        a("s_memrealtime s[60:61]")
        a("s_waitcnt lgkmcnt(0)")
        a("s_or_b32 s60, s60, 1")
        a("v_mov_b32 v1, s60")
        a("s_mov_b64 exec, 1")
        a(f"buffer_store_dword v1, v2, s[{SRD_A}:{SRD_A+3}], 0 offen sc1")
        a("s_mov_b64 exec, -1")
        a.label("L_nc_np")
        a("s_barrier")
        for kc in range(8):
            if kc == 3:
                a(f"buffer_load_dword v1, v2, s[{SRD_A}:{SRD_A+3}], 0 offen sc1")
            if kc == 7:
                a("s_mov_b32 s62, 0")
                a.label("L_nc_chk")
                a("s_waitcnt vmcnt(0)")
                a(f"v_readfirstlane_b32 s{S_NONCE}, v1")
                a(f"s_cmp_lg_u32 s{S_NONCE}, 0")
                a("s_cbranch_scc1 L_nc_got")
                a("s_add_u32 s62, s62, 1")
                a("s_cmp_ge_u32 s62, 8192")
                a("s_cbranch_scc1 L_nc_got")
                a(f"buffer_load_dword v1, v2, s[{SRD_A}:{SRD_A+3}], 0 offen sc1")
                a("s_branch L_nc_chk")
                a.label("L_nc_got")
                a(f"v_mov_b32 v1, s{S_NONCE}")
                a(f"v_mov_b32 v2, {LDS_NONCE}")
                a("ds_write_b32 v2, v1")
            self.stats_chunk(kc, 0)
            if 's1det' in self.dbg: self.stamp(kc + 4)
        self.stats_final(0)
        self.stamp(2)
        a("s_barrier")
        a("s_barrier")
        a("s_branch L_s2_idle")

    def ffn_setup(self):
        a = self.a
        a(f"s_sub_u32 s50, s{S_W}, 8")
        a(f"s_lshl_b32 s{self.S_RING}, s50, 13")
        a(f"s_add_u32 s{self.S_RING}, s{self.S_RING}, {LDS_RING}")
        self.gemm_wg_voffset(3584)
        a(f"s_lshl_b32 s51, s{S_J}, 2")
        a("s_add_u32 s51, s51, s50")
        a(f"s_lshl_b32 s{self.S_WOFF}, s51, 6")
        a(f"s_mov_b32 s{self.S_WSTR}, {16*3584 if 'wstr0' not in self.dbg else 0}")
        a(f"s_sub_u32 s{self.S_WOFF}, s{self.S_WOFF}, s{self.S_WSTR}")
        self.srd(SRD_A, S_W1, 512 * 3584)
        self.srd(SRD_B, S_B1, 1792 * 2)
        a("v_lshrrev_b32 v12, 5, v0")
        a("v_lshlrev_b32 v12, 3, v12")
        a("s_lshl_b32 s52, s51, 6")
        for b in range(4):
            a(f"buffer_load_dwordx2 {vr(144+2*b,2)}, v12, s[{SRD_B}:{SRD_B+3}], s52 offen offset:{16*b}")
        self.gemm_setup_addrs()
        self.zero_acc()
        self.cs4_init()

    def cs4_init(self):
        a = self.a
        a("v_lshrrev_b32 v12, 4, v0")
        a("v_xor_b32 v12, v12, v0")
        a("v_and_b32 v12, 1, v12")
        a("v_cmp_eq_u32 vcc, 0, v12")
        a(f"v_mov_b32 v13, s{S_ONES}")
        for i in range(4):
            a(f"v_mov_b32 v{self.CS4+i}, 0")
        for i in range(4):
            a(f"v_cndmask_b32 v{self.PAR+i}, 0, v13, vcc")

    def role_ffn(self):
        a = self.a
        a.label("L_role_ffn")
        if 'nopf' not in self.dbg:
            a(f"s_cmp_lg_u32 s{S_W}, 9")
            a("s_cbranch_scc1 L_nopf")
            a("s_getpc_b64 s[46:47]")
            a.label("L_pc")
            a(f"s_sub_u32 s46, s46, L_pc-{KN}")
            a("s_subb_u32 s47, s47, 0")
            a("s_lshr_b32 s48, s2, 3")
            a("v_lshlrev_b32 v12, 4, v0")
            for k in range(2):
                a(f"s_cmp_ge_u32 s48, (L_code_end-{KN}+1023)/1024")
                a("s_cbranch_scc1 L_nopf")
                a("s_lshl_b32 s49, s48, 10")
                a("v_add_u32 v13, s49, v12")
                a(f"global_load_dwordx4 {vr(160+4*k,4)}, v13, s[46:47]")
                a("s_add_u32 s48, s48, 32")
            a.label("L_nopf")
        a("s_waitcnt lgkmcnt(0)")
        if 'tq' in self.dbg:
            a(f"s_cmp_eq_u32 s{S_W}, 10")
            a("s_cbranch_scc0 L_tch2")
            self.srd(SRD_B, S_WQKV, 512 * 3072)
            a("s_bfe_u32 s46, s2, 0x30003")
            a(f"s_mul_i32 s46, s46, {64*3072}")
            a(f"s_mul_i32 s47, s{S_J}, 192")
            a("s_and_b32 s47, s47, 0xffffff80")
            a("s_add_u32 s46, s46, s47")
            a("v_lshrrev_b32 v12, 1, v0")
            a("v_mul_u32_u24 v12, 3072, v12")
            a("v_and_b32 v13, 1, v0")
            a("v_lshl_add_u32 v12, v13, 7, v12")
            for i in range(2):
                a(f"buffer_load_dword v{160+i}, v12, s[{SRD_B}:{SRD_B+3}], s46 offen")
                a(f"s_add_u32 s46, s46, {32*3072}")
            a.label("L_tch2")
        self.srd(SRD_WS, S_WS, WS_SIZE)
        self.ffn_setup()
        a("s_barrier")
        tw = [d for d in self.dbg if d.startswith('tw')] or ['tw6']
        if tw[0] != 'tw0':
            a(f"s_cmp_eq_u32 s{S_W}, 10")
            a("s_cbranch_scc0 L_tw_skip")
            a(f"v_mov_b32 v166, {LDS_XF}")
            self.wait_xflags([160, 161, 162, 163], int(tw[0][2:]), 166, 167)
            self.srd(SRD_B, S_W1, 512 * 3584)
            a("s_bfe_u32 s46, s2, 0x30003")
            a(f"s_mul_i32 s46, s46, {64*3584}")
            a(f"s_lshl_b32 s47, s{S_J}, 8")
            a("s_add_u32 s46, s46, s47")
            a("v_lshrrev_b32 v12, 1, v0")
            a("v_mul_u32_u24 v12, 3584, v12")
            a("v_and_b32 v13, 1, v0")
            a("v_lshl_add_u32 v12, v13, 7, v12")
            for i in range(2):
                a(f"buffer_load_dword v{164+i}, v12, s[{SRD_B}:{SRD_B+3}], s46 offen")
                a(f"s_add_u32 s46, s46, {32*3584}")
            a.label("L_tw_skip")
        a(f"s_cmp_lg_u32 s{S_W}, 11")
        a("s_cbranch_scc1 L_ffn_b8")
        self.stats_setup(2)
        for kc in range(8):
            self.stats_chunk(kc, 2)
        self.stats_final(2)
        a.label("L_ffn_b8")
        a("s_barrier")
        a(f"s_cmp_ge_u32 s{S_J}, 14")
        a("s_cbranch_scc1 L_ffn_skip")
        for sl in range(6):
            self.w_dma(sl, self.S_RING)
        a("v_and_b32 v10, 31, v0")
        a(f"v_lshlrev_b32 v10, 2, v10")
        a(f"v_add_u32 v10, {LDS_SCR}, v10")
        for tb in range(4):
            a(f"ds_read_b32 v{152+2*tb}, v10 offset:{tb*128}")
            a(f"ds_read_b32 v{153+2*tb}, v10 offset:{512+tb*128}")
        self.read_nonce(40)
        a("s_waitcnt vmcnt(6) lgkmcnt(0)")
        a(f"v_readfirstlane_b32 s{S_NONCE}, v40")
        for b in range(4):
            a(f"v_lshlrev_b32 v{128+4*b}, 16, v{144+2*b}")
            a(f"v_and_b32 v{129+4*b}, 0xffff0000, v{144+2*b}")
            a(f"v_lshlrev_b32 v{130+4*b}, 16, v{145+2*b}")
            a(f"v_and_b32 v{131+4*b}, 0xffff0000, v{145+2*b}")
        a("s_barrier")
        if 'nos2prio' not in self.dbg: a("s_setprio 3")
        for sl in range(6, 8):
            self.w_dma(sl, self.S_RING)
        self.stamp(4)
        a("s_waitcnt vmcnt(7)")
        self.gemm_first_frags()
        self.gemm_loop(False, False, "ffn")
        self.stamp(5)
        a("s_barrier")
        if 'nogprio' not in self.dbg: a("s_setprio 3")
        a("s_nop 7")
        self.cs16_from_cs4()
        for tb in range(4):
            a(f"v_mov_b32 v{32+2*tb}, v{152+2*tb}")
            a(f"v_mov_b32 v{33+2*tb}, v{153+2*tb}")
        a(f"s_mul_i32 s48, s{S_TG}, {4*112*1024}")
        a("s_lshl_b32 s49, s51, 11")
        a("s_add_u32 s48, s48, s49")
        a(f"s_add_u32 s48, s48, {WS_H}")
        a("v_lshlrev_b32 v10, 4, v0")
        a("s_waitcnt lgkmcnt(0)")
        if 'dumpf' in self.dbg:
            a("s_lshl_b32 s92, s2, 2")
            a(f"s_add_u32 s92, s92, s50")
            a("s_mul_i32 s92, s92, 16384")
            a(f"s_add_u32 s92, s92, {20<<20}")
            a("v_lshlrev_b32 v12, 2, v0")
            regs = list(range(16,32)) + list(range(32,40)) + list(range(128,144)) + list(range(64,80))
            for n, r in enumerate(regs):
                a(f"buffer_store_dword v{r}, v12, s[{SRD_WS}:{SRD_WS+3}], s92 offen offset:{(n%16)*256}")
                if n % 16 == 15: a("s_add_u32 s92, s92, 4096")
        self.tok_epilogue_store(ffn=True)
        if self.stop != "s2": a("s_barrier")
        a(f"s_lshl_b32 s48, s{S_TG}, 8")
        a("s_lshl_b32 s49, s51, 2")
        a("s_add_u32 s48, s48, s49")
        a(f"s_add_u32 s48, s48, {FL2}")
        self.publish_flag(48, 12)
        self.stamp(6)
        a("s_branch L_s3_gemm")
        a.label("L_ffn_skip")
        self.read_nonce(40)
        a("s_waitcnt vmcnt(0) lgkmcnt(0)")
        a(f"v_readfirstlane_b32 s{S_NONCE}, v40")
        a("s_barrier")
        if self.stop != "s2":
            for _ in range(3): a("s_sleep 16")
            a("s_barrier")
        a("s_barrier")
        if self.stop != "s2":
            a("s_barrier")
        a("s_branch L_s3_gemm")

    def attn_ids(self):
        a = self.a
        a(f"s_and_b32 s{S_HEAD}, s2, 7")
        a("s_lshr_b32 s47, s2, 6")
        a("s_lshl_b32 s47, s47, 3")
        a(f"s_or_b32 s{S_HEAD}, s{S_HEAD}, s47")
        a(f"s_bfe_u32 s{S_QB}, s2, 0x30003")
        a(f"s_and_b32 s{S_T}, s2, 7")
        a(f"s_lshl_b32 s{S_T}, s{S_T}, 2")
        a("s_bfe_u32 s47, s2, 0x20003")
        a(f"s_add_u32 s{S_T}, s{S_T}, s47")
        a(f"s_lshr_b32 s{S_C}, s2, 5")

    def poll_flags(self, s_off, n, vt=2, sleep=2):
        a = self.a
        Lp, Ld = self.lab("pf"), self.lab("pfd")
        a(f"v_lshlrev_b32 v{vt}, 2, v0")
        a(f"v_cmp_gt_u32 vcc, {n}, v0")
        a("s_mov_b32 s58, 0")
        a("s_mov_b64 s[62:63], vcc")
        a.label(Lp)
        a(f"buffer_load_dword v{vt+1}, v{vt}, s[{SRD_WS}:{SRD_WS+3}], s{s_off} offen sc1")
        a("s_add_u32 s58, s58, 1")
        a("s_waitcnt vmcnt(0)")
        a(f"v_cmp_eq_u32 vcc, s{S_NONCE}, v{vt+1}")
        a("s_nop 1")
        a("s_and_b64 vcc, vcc, s[62:63]")
        a("s_cmp_eq_u64 vcc, s[62:63]")
        a(f"s_cbranch_scc1 {Ld}")
        a("s_cmp_ge_u32 s58, 0x4000")
        a(f"s_cbranch_scc1 {Ld}")
        a(f"s_sleep {sleep}")
        a(f"s_branch {Lp}")
        a.label(Ld)

    def clear_o(self):
        a = self.a
        L = self.lab("co")
        a(f"s_cmp_lg_u32 s{S_W}, 9")
        a(f"s_cbranch_scc1 {L}")
        a(f"s_lshl_b32 s46, s{S_QB}, 8")
        a(f"s_add_u32 s46, s46, s{S_HEAD}")
        a("s_lshl_b32 s46, s46, 10")
        a(f"s_add_u32 s46, s46, {WS_O}")
        for r in range(4): a(f"v_mov_b32 v{152+r}, -1")
        a("v_lshlrev_b32 v156, 4, v0")
        for i in range(8):
            a(f"buffer_store_dwordx4 v[152:155], v156, s[{SRD_WS}:{SRD_WS+3}], s46 offen sc1")
            a(f"s_add_u32 s46, s46, {32*1024}")
        a(f"s_lshl_b32 s48, s{S_QB}, 8")
        a(f"s_lshl_b32 s49, s{S_HEAD}, 2")
        a("s_add_u32 s48, s48, s49")
        a(f"s_add_u32 s48, s48, {FL3}")
        self.publish_flag(48, 157)
        a.label(L)

    def s2_idle(self):
        a = self.a
        a.label("L_s2_idle")
        if self.stop == "s2":
            a("s_barrier")
            a("s_branch L_fin")

    QA, QB, KA, KB, VA, VB = 4, 8, 12, 16, 20, 28
    SA, SB, PA, PB, OA, OB = 40, 56, 72, 80, 88, 104
    VK, VKN, VV0, VV1, VV0N, VV1N, VWA = 120, 121, 122, 123, 124, 125, 126
    TP = 2064
    LDS_W2 = 64 * 2064
    LDS_SYNC = 64 * 2064 + 4 * 6144
    S_NXT = 42

    def stg(self, i):
        return 128 + 8 * (i % 5)

    def mf32(self, d, x, y, c):
        self.a(f"v_mfma_f32_32x32x16_bf16 {vr(d,16)}, {vr(x,4)}, {vr(y,4)}, {c if c == 0 else vr(c,16)}")

    def attn_phase(self, S, P, m1, m2, m3, x1=None, x3=None):
        a = self.a
        E = lambda k: a(f"v_exp_f32 v{S+k}, v{S+k}")
        C = lambda k: a(f"v_cvt_pk_bf16_f32 v{P+k}, v{S+2*k}, v{S+2*k+1}")
        if 'noqk' not in self.dbg: self.mf32(*m1)
        if x1: x1()
        if 'noexp' in self.dbg: E = lambda k: a(f"v_mov_b32 v{S+k}, v{S+k}")
        E(0); E(1); E(2); E(3); C(0); E(4); E(5); C(1)
        if 'nopv' not in self.dbg: self.mf32(*m2)
        E(6); E(7); C(2); E(8); E(9); C(3); E(10); E(11)
        if 'nopv' not in self.dbg: self.mf32(*m3)
        if x3: x3()
        C(4); E(12); E(13); C(5); E(14); E(15); C(6); C(7)

    def attn_tile(self, i, first_group):
        a = self.a
        ev = (i & 1) == 0
        Kc, Kn = (self.KA, self.KB) if ev else (self.KB, self.KA)
        Vc, Vp = (self.VA, self.VB) if ev else (self.VB, self.VA)
        nxt = i == 7
        off = 0 if nxt else (i + 1) * self.TP
        rk, r0, r1 = (self.VKN, self.VV0N, self.VV1N) if nxt else (self.VK, self.VV0, self.VV1)
        def x1():
            if first_group and i <= 6:
                st = self.stg(i + 1)
                a(f"s_waitcnt vmcnt({[4, 4, 4, 4, 4, 2, 0][i]})")
                if 'kvdma' not in self.dbg:
                    a(f"ds_write_b128 v{self.VWA}, {vr(st,4)} offset:{(i+1)*self.TP}")
                    a(f"ds_write_b128 v{self.VWA}, {vr(st+4,4)} offset:{(i+1)*self.TP+1024}")
                if i + 4 <= 7: self.kv_load(i + 4, self.stg(i + 4))
            a(f"ds_read_b128 {vr(Kn,4)}, v{rk} offset:{off}")
        def x3():
            a(f"ds_read_b128 {vr(Vp,4)}, v{r0} offset:{off}")
            a(f"ds_read_b128 {vr(Vp+4,4)}, v{r1} offset:{off}")
        if first_group:
            a("s_waitcnt lgkmcnt(0)")
            if i == 7: a("s_barrier")
        else:
            a("s_waitcnt lgkmcnt(0)")
        self.attn_phase(self.SA, self.PA, (self.SB, Kc, self.QB, 0), (self.OB, Vp, self.PB, self.OB),
                        (self.OB, Vp + 4, self.PB + 4, self.OB), x1, x3)
        a("s_waitcnt lgkmcnt(2)")
        self.attn_phase(self.SB, self.PB, (self.SA, Kn, self.QA, 0), (self.OA, Vc, self.PA, self.OA),
                        (self.OA, Vc + 4, self.PA + 4, self.OA))

    def kv_load(self, i, st):
        a = self.a
        if 'kvdma' not in self.dbg:
            a(f"buffer_load_dwordx4 {vr(st,4)}, v1, s[{SRD_WS}:{SRD_WS+3}], s44 offen offset:{(i&3)*1024} sc1")
            a(f"buffer_load_dwordx4 {vr(st+4,4)}, v1, s[{SRD_WS}:{SRD_WS+3}], s45 offen offset:{(i&3)*1024} sc1")
            return
        a(f"s_add_u32 m0, s56, {i*self.TP}")
        a(f"s_add_u32 s48, s44, {(i&3)*1024}")
        a(f"buffer_load_dwordx4 v1, s[{SRD_WS}:{SRD_WS+3}], s48 offen sc1 lds")
        a(f"s_add_u32 m0, s56, {i*self.TP+1024}")
        a(f"s_add_u32 s48, s45, {(i&3)*1024}")
        a(f"buffer_load_dwordx4 v1, s[{SRD_WS}:{SRD_WS+3}], s48 offen sc1 lds")

    def group_advance(self):
        a = self.a
        G = 8 * self.TP
        a(f"v_mov_b32 v{self.VK}, v{self.VKN}")
        a(f"v_mov_b32 v{self.VV0}, v{self.VV0N}")
        a(f"v_mov_b32 v{self.VV1}, v{self.VV1N}")
        a(f"s_add_u32 s{self.S_NXT}, s{self.S_NXT}, {G}")
        a(f"s_cmp_eq_u32 s{self.S_NXT}, s59")
        a(f"s_cselect_b32 s46, {4*G}, 0")
        a(f"s_sub_u32 s{self.S_NXT}, s{self.S_NXT}, s46")
        a(f"v_add_u32 v{self.VKN}, s{self.S_NXT}, v1")
        a(f"v_add_u32 v{self.VV0N}, s{self.S_NXT}, v2")
        a(f"v_add_u32 v{self.VV1N}, s{self.S_NXT}, v3")

    def lds_spin(self, vaddr, n, vdst, want):
        a = self.a
        Lp, Ld = self.lab("sp"), self.lab("spd")
        a("s_mov_b32 s58, 0")
        a.label(Lp)
        a(f"ds_read_b{32*n} {vr(vdst,n)}, v{vaddr}")
        a("s_add_u32 s58, s58, 1")
        a("s_waitcnt lgkmcnt(0)")
        if n == 4:
            a(f"v_min3_u32 v{vdst}, v{vdst}, v{vdst+1}, v{vdst+2}")
            a(f"v_min_u32 v{vdst}, v{vdst}, v{vdst+3}")
        a("s_nop 0")
        a(f"v_readfirstlane_b32 s57, v{vdst}")
        a("s_cmp_ge_u32 s58, 0x100000")
        a(f"s_cbranch_scc1 {Ld}")
        a(f"s_cmp_lt_u32 s57, {want}")
        a(f"s_cbranch_scc1 {Lp}")
        a.label(Ld)

    def role_attn(self):
        a = self.a
        G = 8 * self.TP
        a.label("L_s3_attn")
        self.attn_ids()
        a("v_lshlrev_b32 v1, 4, v0")
        a(f"s_lshl_b32 s43, s{S_HEAD}, 16")
        a(f"s_lshl_b32 s47, s{S_W}, 13")
        a("s_add_u32 s44, s43, s47")
        a(f"s_add_u32 s45, s44, {WS_V}")
        a(f"s_add_u32 s44, s44, {WS_K}")
        a(f"s_lshl_b32 s46, s{S_QB}, 13")
        a("s_add_u32 s43, s43, s46")
        a(f"s_and_b32 s47, s{S_W}, 3")
        a("s_lshl_b32 s47, s47, 11")
        a("s_add_u32 s43, s43, s47")
        a(f"s_mul_i32 s46, s{S_W}, {G}")
        a("s_mov_b32 s56, s46")
        a(f"v_add_u32 v{self.VWA}, s46, v1")
        a(f"v_mov_b32 v{self.VK}, v{self.VWA}")
        a("v_lshrrev_b32 v2, 5, v0")
        a("v_lshlrev_b32 v2, 8, v2")
        a("v_and_b32 v3, 15, v0")
        a("v_lshl_add_u32 v2, v3, 4, v2")
        a("v_add_u32 v3, 1536, v2")
        a("v_add_u32 v2, 1024, v2")
        a("v_and_b32 v36, 31, v0")
        a("v_cmp_lt_u32 vcc, 15, v36")
        a("v_cmp_eq_u32 s[50:51], 16, v36")
        a(f"v_mov_b32 v37, {LDS_DROP if 'allones' not in self.dbg else 2048}")
        a("v_mov_b32 v38, 2048")
        a("s_nop 0")
        a("v_cndmask_b32 v37, v37, v38, s[50:51]")
        a("s_nop 0")
        a("v_cndmask_b32 v2, v2, v37, vcc")
        a("v_cndmask_b32 v3, v3, v37, vcc")
        a(f"v_add_u32 v{self.VV0}, s46, v2")
        a(f"v_add_u32 v{self.VV1}, s46, v3")
        a(f"s_lshr_b32 s47, s{S_W}, 2")
        a(f"s_mul_i32 s47, s47, {4*G}")
        a(f"s_add_u32 s59, s47, {4*G}")
        a(f"s_add_u32 s{self.S_NXT}, s46, {G}")
        a(f"s_cmp_eq_u32 s{self.S_NXT}, s59")
        a(f"s_cselect_b32 s47, {4*G}, 0")
        a(f"s_sub_u32 s{self.S_NXT}, s{self.S_NXT}, s47")
        a(f"v_add_u32 v{self.VKN}, s{self.S_NXT}, v1")
        a(f"v_add_u32 v{self.VV0N}, s{self.S_NXT}, v2")
        a(f"v_add_u32 v{self.VV1N}, s{self.S_NXT}, v3")
        a(f"v_mul_u32_u24 v36, {self.TP}, v0")
        a("v_add_u32 v36, s46, v36")
        for r in range(4): a(f"v_mov_b32 v{40+r}, s{S_ONES}")
        a("v_lshlrev_b32 v37, 2, v0")
        a(f"v_add_u32 v37, {self.LDS_SYNC}, v37")
        a("v_mov_b32 v38, 0")
        for r in range(32):
            a(f"v_mov_b32 v{self.OA+r}, 0")
        for r in range(8):
            a(f"v_mov_b32 v{self.PB+r}, 0")
            a(f"v_mov_b32 v{self.VB+r}, 0")
        a("v_lshrrev_b32 v127, 3, v0")
        a(f"s_lshl_b32 s48, s{S_W}, 3")
        a("v_add_u32 v127, s48, v127")
        a("v_lshlrev_b32 v127, 10, v127")
        a("v_and_b32 v39, 7, v0")
        a("v_lshl_add_u32 v127, v39, 4, v127")
        a(f"s_lshl_b32 s61, s{S_T}, 16")
        a(f"s_lshl_b32 s48, s{S_C}, 7")
        a("s_add_u32 s61, s61, s48")
        a(f"s_lshl_b32 s60, s{S_QB}, 3")
        a(f"s_and_b32 s48, s{S_W}, 3")
        a("s_lshl_b32 s48, s48, 1")
        a("s_add_u32 s60, s60, s48")
        a(f"s_lshr_b32 s48, s{S_W}, 2")
        a("s_add_u32 s60, s60, s48")
        a("s_lshl_b32 s60, s60, 5")
        a(f"s_add_u32 s60, s60, s{S_HEAD}")
        a("s_lshl_b32 s60, s60, 10")
        a(f"s_add_u32 s60, s60, {WS_O}")
        a("s_barrier")
        a(f"s_cmp_lg_u32 s{S_W}, 3")
        a("s_cbranch_scc1 L_at_np")
        a(f"s_lshr_b32 s47, s{S_HEAD}, 1")
        a("s_lshl_b32 s47, s47, 8")
        a(f"s_add_u32 s47, s47, {FL1}")
        ps = [d for d in self.dbg if d.startswith('ps')]
        pd = [d for d in self.dbg if d.startswith('pd')]
        if pd:
            for _ in range(int(pd[0][2:])): a("s_sleep 16")
        self.poll_flags(47, 48, vt=44, sleep=int(ps[0][2:]) if ps else 2)
        self.stamp(4)
        a.label("L_at_np")
        a("s_barrier")
        a(f"buffer_load_dwordx4 {vr(self.QA,4)}, v1, s[{SRD_WS}:{SRD_WS+3}], s43 offen sc1")
        a(f"buffer_load_dwordx4 {vr(self.QB,4)}, v1, s[{SRD_WS}:{SRD_WS+3}], s43 offen offset:1024 sc1")
        self.kv_load(0, self.stg(0))
        self.stamp(7)
        self.cstamp(0)
        if 'dlyB' in self.dbg: a("s_sleep 127")
        a("s_setprio 2")
        a("s_mov_b64 exec, 0xff")
        a(f"ds_write_b128 v36, v[40:43] offset:2048")
        a("s_mov_b64 exec, -1")
        a(f"s_cmp_lg_u32 s{S_W}, 0")
        a("s_cbranch_scc1 L_at_nz")
        a("s_mov_b64 exec, 0xffff")
        a("ds_write_b32 v37, v38")
        a("s_mov_b64 exec, -1")
        a.label("L_at_nz")
        for i in range(1, 3):
            self.kv_load(i, self.stg(i))
        a("s_waitcnt vmcnt(4)")
        self.stamp(8)
        st = self.stg(0)
        if 'kvdma' not in self.dbg:
            a(f"ds_write_b128 v{self.VWA}, {vr(st,4)}")
            a(f"ds_write_b128 v{self.VWA}, {vr(st+4,4)} offset:1024")
        self.kv_load(3, self.stg(3))
        a("s_add_u32 s44, s44, 4096")
        a("s_add_u32 s45, s45, 4096")
        a(f"ds_read_b128 {vr(self.KA,4)}, v{self.VK}")
        a(f"ds_read_b128 {vr(self.VA,4)}, v{self.VV0}")
        a(f"ds_read_b128 {vr(self.VA+4,4)}, v{self.VV1}")
        a("s_waitcnt lgkmcnt(0)")
        self.mf32(self.SA, self.KA, self.QA, 0)
        a("s_nop 7")
        a("s_nop 3")
        for i in range(8):
            if 'g0det' in self.dbg: self.stamp(i)
            self.attn_tile(i, True)
        self.group_advance()
        self.stamp(9)
        self.srd(SRD_A, S_X, 2048 * 1024)
        a(f"buffer_load_dwordx4 v[160:163], v127, s[{SRD_A}:{SRD_A+3}], s61 offen")
        self.srd(SRD_B, S_B2, 1024)
        a("v_and_b32 v36, 7, v0")
        a("v_lshlrev_b32 v36, 4, v36")
        a(f"s_lshl_b32 s48, s{S_C}, 7")
        a(f"buffer_load_dwordx4 v[164:167], v36, s[{SRD_B}:{SRD_B+3}], s48 offen")
        a("s_mov_b32 s43, 0")
        a.label("L_attn_loop")
        if 'noaprio' not in self.dbg:
            a("s_cmp_eq_u32 s43, 1")
            a("s_cbranch_scc0 L_ap1")
            a("s_setprio 1")
            a.label("L_ap1")
            a("s_cmp_eq_u32 s43, 2")
            a("s_cbranch_scc0 L_ap2")
            a("s_setprio 0")
            a.label("L_ap2")
        for i in range(8):
            self.attn_tile(i, False)
        self.group_advance()
        a("s_add_u32 s43, s43, 1")
        a("s_cmp_lt_u32 s43, 3")
        a("s_cbranch_scc1 L_attn_loop")
        self.mf32(self.OB, self.VB, self.PB, self.OB)
        self.mf32(self.OB, self.VB + 4, self.PB + 4, self.OB)
        self.stamp(10)
        self.cstamp(1)
        a(f"s_lshr_b32 s47, s{S_W}, 2")
        a(f"v_mov_b32 v36, {self.LDS_SYNC}")
        self.lds_spin(36, 4, 40, 1)
        a("s_nop 7")
        a("s_cmp_eq_u32 s47, 0")
        a("s_cbranch_scc1 L_at_ns")
        for r in range(9): a(f"v_swap_b32 v{self.OA+r}, v{self.OB+r}")
        for r in range(4): a(f"v_swap_b32 v{self.QA+r}, v{self.QB+r}")
        a.label("L_at_ns")
        XP = 9 * 256
        a(f"s_mul_i32 s46, s{S_W}, {XP}")
        a(f"s_add_u32 s46, s46, {self.LDS_W2}")
        a("v_add_u32 v36, s46, v1")
        a("v_lshlrev_b32 v37, 2, v0")
        a("v_add_u32 v37, s46, v37")
        a(f"ds_write_b128 v36, {vr(self.OB,4)}")
        a(f"ds_write_b128 v36, {vr(self.OB+4,4)} offset:1024")
        a(f"ds_write_b32 v37, v{self.OB+8} offset:2048")
        a(f"s_lshl_b32 s48, s{S_W}, 2")
        a(f"s_add_u32 s48, s48, {self.LDS_SYNC+16}")
        a("v_mov_b32 v38, s48")
        a("v_mov_b32 v39, 1")
        a("s_waitcnt lgkmcnt(0)")
        a("ds_write_b32 v38, v39")
        a(f"s_xor_b32 s48, s{S_W}, 4")
        a("s_lshl_b32 s46, s48, 2")
        a(f"s_add_u32 s46, s46, {self.LDS_SYNC+16}")
        a("v_mov_b32 v38, s46")
        self.lds_spin(38, 1, 40, 1)
        a(f"s_mul_i32 s46, s48, {XP}")
        a(f"s_add_u32 s46, s46, {self.LDS_W2}")
        a("v_add_u32 v36, s46, v1")
        a("v_lshlrev_b32 v37, 2, v0")
        a("v_add_u32 v37, s46, v37")
        a("ds_read_b128 v[40:43], v36")
        a("ds_read_b128 v[44:47], v36 offset:1024")
        a("ds_read_b32 v48, v37 offset:2048")
        a("s_waitcnt lgkmcnt(0)")
        O = self.OA
        for r in range(9):
            a(f"v_add_f32 v{O+r}, v{O+r}, v{40+r}")
        self.bcast_l()
        a(f"v_mul_f32 v36, 0, v{O}")
        for r in range(1, 8):
            a(f"v_fma_f32 v36, v{O+r}, 0, v36")
        a(f"s_mov_b32 s46, {f2u(2.0**-64):#x}")
        a(f"s_mov_b32 s48, {f2u(2.0**64):#x}")
        a(f"v_cmp_le_f32 s[50:51], s46, v{O+8}")
        a(f"v_cmp_ge_f32 s[52:53], s48, v{O+8}")
        a("v_cmp_eq_f32 vcc, 0, v36")
        a("s_nop 1")
        a("s_and_b64 s[50:51], s[50:51], s[52:53]")
        a("s_and_b64 vcc, vcc, s[50:51]")
        if 'slow' in self.dbg:
            a("s_mov_b64 vcc, 0")
        a("s_cmp_eq_u64 vcc, -1")
        a("s_cbranch_scc0 L_attn_slow")
        a.label("L_attn_norm")
        self.bcast_l()
        a(f"v_rcp_f32 v36, v{O+8}")
        a("s_nop 0")
        for r in range(8):
            a(f"v_mul_f32 v{O+r}, v{O+r}, v36")
        for p in range(4):
            a(f"v_cvt_pk_bf16_f32 v{self.PA+p}, v{O+2*p}, v{O+2*p+1}")
        a(f"v_cmp_eq_u32 vcc, -1, v{self.PA}")
        a("v_mov_b32 v36, 0x7fc07fc0")
        a("s_nop 0")
        a(f"v_cndmask_b32 v{self.PA}, v{self.PA}, v36, vcc")
        a(f"buffer_store_dwordx4 {vr(self.PA,4)}, v1, s[{SRD_WS}:{SRD_WS+3}], s60 offen sc1")
        a("s_branch L_tail_attn")

    def bcast_l(self):
        a = self.a
        a("s_nop 1")
        a(f"v_mov_b32 v37, v{self.OA+8}")
        a("s_nop 1")
        a(f"v_permlane32_swap_b32 v{self.OA+8}, v37")
        a("s_nop 1")

    def attn_slow(self):
        a = self.a
        O, S, P = self.OA, self.SA, self.PA
        a.label("L_attn_slow")
        for r in range(16):
            a(f"v_mov_b32 v{O+r}, 0")
        a(f"v_mov_b32 v136, {f2u(-3.0e38):#x}")
        a("v_mov_b32 v137, v1")
        a("v_mov_b32 v138, v2")
        a("v_mov_b32 v141, v3")
        a("s_mov_b32 s43, 0")
        a.label("L_slow_loop")
        a(f"ds_read_b128 {vr(self.KA,4)}, v137")
        a(f"ds_read_b128 {vr(self.VA,4)}, v138")
        a(f"ds_read_b128 {vr(self.VA+4,4)}, v141")
        a("s_waitcnt lgkmcnt(0)")
        self.mf32(S, self.KA, self.QA, 0)
        a(f"v_add_u32 v137, {self.TP}, v137")
        a(f"v_add_u32 v138, {self.TP}, v138")
        a(f"v_add_u32 v141, {self.TP}, v141")
        a("s_nop 7")
        a("s_nop 7")
        a(f"v_max3_f32 v139, v{S}, v{S+1}, v{S+2}")
        for r in range(3, 15, 2):
            a(f"v_max3_f32 v139, v139, v{S+r}, v{S+r+1}")
        a(f"v_max_f32 v139, v139, v{S+15}")
        a("s_nop 0")
        a("v_mov_b32 v140, v139")
        a("s_nop 1")
        a("v_permlane32_swap_b32 v139, v140")
        a("s_nop 1")
        a("v_max3_f32 v139, v139, v140, v136")
        a("v_sub_f32 v140, v136, v139")
        a("v_exp_f32 v140, v140")
        a("v_mov_b32 v136, v139")
        for r in range(16):
            a(f"v_sub_f32 v{S+r}, v{S+r}, v139")
        for r in range(16):
            a(f"v_exp_f32 v{S+r}, v{S+r}")
        for r in range(9):
            a(f"v_mul_f32 v{O+r}, v{O+r}, v140")
        for p in range(8):
            a(f"v_cvt_pk_bf16_f32 v{P+p}, v{S+2*p}, v{S+2*p+1}")
        a("s_nop 1")
        self.mf32(O, self.VA, P, O)
        self.mf32(O, self.VA + 4, P + 4, O)
        a("s_add_u32 s43, s43, 1")
        a("s_nop 7")
        a("s_nop 7")
        a("s_cmp_lt_u32 s43, 64")
        a("s_cbranch_scc1 L_slow_loop")
        a("s_branch L_attn_norm")

    def role_down(self):
        a = self.a
        a.label("L_s3_gemm")
        if self.stop == "s2":
            a("s_branch L_fin")
        if 'nogprio' not in self.dbg: a("s_setprio 3")
        self.attn_ids()
        a(f"s_sub_u32 s50, s{S_W}, 8")
        self.clear_o()
        self.srd(SRD_A, S_W2, 1792 * 1024)
        ACC, HST, WF = 64, 16, 48
        a("v_lshrrev_b32 v4, 2, v0")
        a("v_lshlrev_b32 v4, 10, v4")
        a("v_and_b32 v5, 3, v0")
        a("v_lshl_add_u32 v4, v5, 4, v4")
        a("s_mul_i32 s44, s50, 6144")
        a(f"s_add_u32 s44, s44, {self.LDS_W2}")
        a("v_lshrrev_b32 v6, 5, v0")
        a("v_bfe_u32 v7, v0, 2, 2")
        a("v_lshl_add_u32 v7, v6, 2, v7")
        a("v_lshlrev_b32 v7, 6, v7")
        a("v_bfe_u32 v8, v0, 4, 1")
        a("v_lshl_add_u32 v7, v8, 5, v7")
        a("v_and_b32 v8, 3, v0")
        a("v_lshl_add_u32 v7, v8, 3, v7")
        a("v_add_u32 v7, s44, v7")
        a("v_lshlrev_b32 v1, 4, v0")
        a("s_mul_i32 s45, s50, 28")
        a("s_lshl_b32 s46, s45, 14")
        a(f"s_lshl_b32 s47, s{S_C}, 7")
        a("s_add_u32 s46, s46, s47")
        a(f"s_mul_i32 s47, s{S_T}, {2*112*1024}")
        a("s_lshl_b32 s48, s45, 10")
        a("s_add_u32 s47, s47, s48")
        a(f"s_add_u32 s47, s47, {WS_H}")
        a(f"s_add_u32 s48, s47, {112*1024}")
        for r in range(64):
            a(f"v_mov_b32 v{ACC+r}, 0")
        def w2dma(slot):
            for cb in range(2):
                a(f"s_add_u32 m0, s44, {slot*2048 + cb*1024}")
                a(f"s_add_u32 s49, s46, {cb*64}")
                a(f"buffer_load_dwordx4 v4, s[{SRD_A}:{SRD_A+3}], s49 offen lds")
            a("s_add_u32 s46, s46, 16384")
        def hload(slot):
            a(f"buffer_load_dwordx4 {vr(HST+8*slot,4)}, v1, s[{SRD_WS}:{SRD_WS+3}], s47 offen sc1")
            a(f"buffer_load_dwordx4 {vr(HST+8*slot+4,4)}, v1, s[{SRD_WS}:{SRD_WS+3}], s48 offen sc1")
            a("s_add_u32 s47, s47, 1024")
            a("s_add_u32 s48, s48, 1024")
        a(f"s_lshr_b32 s51, s{S_T}, 1")
        a("s_lshl_b32 s51, s51, 8")
        a("s_mul_i32 s52, s50, 56")
        a("s_add_u32 s51, s51, s52")
        a(f"s_add_u32 s51, s51, {FL2}")
        if 'nodown' in self.dbg:
            a(f"s_lshl_b32 s48, s50, 2")
            a(f"s_add_u32 s48, s48, {self.LDS_SYNC}")
            a("v_mov_b32 v2, s48")
            a("v_mov_b32 v3, 1")
            a("ds_write_b32 v2, v3")
            a("s_branch L_tail_gemm")
        self.poll_flags(51, 14)
        self.stamp(7)

        for sl in range(3):
            w2dma(sl); hload(sl)
        if 'glow' in self.dbg: a("s_setprio 0")
        def kstep(sl, vm, pre):
            a(f"s_waitcnt vmcnt({vm})")
            for cb in range(2):
                a(f"ds_read_b64_tr_b16 {vr(WF+4*cb,2)}, v7 offset:{sl*2048+cb*1024}")
                a(f"ds_read_b64_tr_b16 {vr(WF+4*cb+2,2)}, v7 offset:{sl*2048+cb*1024+512}")
            a("s_waitcnt lgkmcnt(0)")
            for tb in range(2):
                for cb in range(2):
                    acc = ACC + 16 * (2 * tb + cb)
                    a(f"v_mfma_f32_32x32x16_bf16 {vr(acc,16)}, {vr(WF+4*cb,4)}, {vr(HST+8*sl+4*tb,4)}, {vr(acc,16)}")
                    if 'nogspace' not in self.dbg:
                        a("s_sleep 2" if ('gmix' in self.dbg and cb == 1 and tb == 0) else "s_sleep 1")
            if pre:
                w2dma(sl); hload(sl)
        a("s_mov_b32 s43, 0")
        a.label("L_down_loop")
        for sl in range(3): kstep(sl, 8, True)
        a("s_add_u32 s43, s43, 1")
        a("s_cmp_lt_u32 s43, 8")
        a("s_cbranch_scc1 L_down_loop")
        kstep(0, 8, True)
        kstep(1, 8, False)
        kstep(2, 4, False)
        kstep(0, 0, False)
        self.srd(SRD_A, S_WO, 512 * 1024)
        a("v_lshrrev_b32 v4, 3, v0")
        a("v_lshlrev_b32 v4, 10, v4")
        a("v_and_b32 v5, 7, v0")
        a("v_lshl_add_u32 v4, v5, 4, v4")
        a("s_lshl_b32 s46, s50, 17")
        a(f"s_lshl_b32 s47, s{S_C}, 7")
        a("s_add_u32 s46, s46, s47")
        for i in range(16):
            a(f"buffer_load_dwordx4 {vr(self.wo_reg(i),4)}, v4, s[{SRD_A}:{SRD_A+3}], s46 offen")
            a("s_add_u32 s46, s46, 8192")
        a(f"s_lshl_b32 s48, s50, 2")
        a(f"s_add_u32 s48, s48, {self.LDS_SYNC}")
        a("v_mov_b32 v2, s48")
        a("v_mov_b32 v3, 1")
        a("ds_write_b32 v2, v3")
        self.stamp(8)
        a("s_branch L_tail_gemm")

    PPITCH, PPART, PBASE = 272, 64 * 272, 4 * 64 * 272

    def wo_reg(self, i):
        return 16 + 4 * i if i < 8 else 128 + 4 * (i - 8)

    def part_write(self, acc_of, tbs, part_sreg):
        a = self.a
        for tb in tbs:
            for cb in range(2):
                acc = acc_of(tb, cb)
                for b in range(4):
                    a(f"ds_write_b128 v9, {vr(acc+4*b,4)} offset:{tb*32*self.PPITCH + (32*cb+8*b)*4}")

    def tail(self):
        a = self.a
        a.label("L_tail_gemm")
        a(f"s_cmp_lg_u32 s{S_W}, 8")
        a("s_cbranch_scc1 L_tail_g1")
        a(f"s_lshr_b32 s51, s{S_T}, 2")
        a("s_lshl_b32 s51, s51, 8")
        a(f"s_add_u32 s51, s51, {FL3}")
        self.poll_flags(51, 32, vt=2)
        self.stamp(9)
        a.label("L_tail_g1")
        a("v_bfe_u32 v6, v0, 2, 1")
        a("v_lshlrev_b32 v6, 10, v6")
        a("v_lshrrev_b32 v7, 3, v0")
        a("v_lshl_add_u32 v6, v7, 6, v6")
        a("v_and_b32 v7, 3, v0")
        a("v_lshl_add_u32 v6, v7, 4, v6")
        a("s_lshl_b32 s44, s50, 14")
        a("v_add_u32 v6, s44, v6")
        a("v_and_b32 v9, 31, v0")
        a(f"v_mul_u32_u24 v9, {self.PPITCH}, v9")
        a("v_lshrrev_b32 v10, 5, v0")
        a("v_lshl_add_u32 v9, v10, 4, v9")
        a(f"s_mul_i32 s44, s50, {self.PPART}")
        a(f"s_add_u32 s44, s44, {self.PBASE}")
        a("v_add_u32 v9, s44, v9")
        a("s_waitcnt vmcnt(0)")
        a("s_barrier")
        for i in range(16):
            a(f"ds_write_b128 v6, {vr(self.wo_reg(i),4)} offset:{(i>>1)*2048 + (i&1)*512}")
        a("s_lshl_b32 s46, s50, 2")
        a(f"s_add_u32 s46, s46, {self.LDS_SYNC + 48}")
        a("v_mov_b32 v2, s46")
        a("v_mov_b32 v3, 1")
        a("s_waitcnt lgkmcnt(0)")
        a("ds_write_b32 v2, v3")
        self.part_write(lambda tb, cb: 64 + 16 * (2 * tb + cb), (0, 1), None)
        a("s_waitcnt lgkmcnt(0)")
        a("s_barrier")
        a("s_barrier")
        a("s_branch L_fin")
        a.label("L_tail_attn")
        a(f"s_and_b32 s44, s{S_W}, 1")
        a(f"s_lshr_b32 s45, s{S_W}, 1")
        a(f"s_lshl_b32 s52, s{S_T}, 1")
        a("s_add_u32 s52, s52, s44")
        a("s_lshl_b32 s52, s52, 15")
        a("s_lshl_b32 s48, s45, 13")
        a("s_add_u32 s52, s52, s48")
        a(f"s_add_u32 s52, s52, {WS_O}")
        a("s_add_u32 s53, s52, 4096")
        OF, ACC = 96, 64
        a("v_mov_b32 v8, v127")
        def oload(k):
            a(f"buffer_load_dwordx4 {vr(OF+4*k,4)}, v1, s[{SRD_WS}:{SRD_WS+3}], s{52+(k>>2)} offen offset:{(k&3)*1024} sc1")
        a("s_barrier")
        self.stamp(11)
        for k in range(8): oload(k)
        a("v_lshrrev_b32 v5, 3, v0")
        a(f"s_lshl_b32 s46, s{S_W}, 3")
        a("v_add_u32 v5, s46, v5")
        a("v_and_b32 v6, 7, v0")
        a(f"v_mul_u32_u24 v10, {self.PPITCH}, v5")
        a("v_lshl_add_u32 v10, v6, 5, v10")
        a(f"v_add_u32 v11, {self.PBASE}, v10")
        a("v_lshrrev_b32 v6, 5, v0")
        a("v_bfe_u32 v7, v0, 2, 2")
        a("v_lshl_add_u32 v7, v6, 2, v7")
        a("v_lshlrev_b32 v7, 6, v7")
        a("v_bfe_u32 v9, v0, 4, 1")
        a("v_lshl_add_u32 v7, v9, 5, v7")
        a("v_and_b32 v9, 3, v0")
        a("v_lshl_add_u32 v7, v9, 3, v7")
        a("s_lshl_b32 s48, s45, 14")
        a("v_add_u32 v7, s48, v7")
        a("v_and_b32 v9, 31, v0")
        a(f"v_mul_u32_u24 v9, {self.PPITCH}, v9")
        a("v_lshl_add_u32 v9, v6, 4, v9")
        a(f"s_mul_i32 s48, s45, {self.PPART}")
        a(f"s_mul_i32 s49, s44, {32*self.PPITCH}")
        a("s_add_u32 s48, s48, s49")
        a("v_add_u32 v9, s48, v9")
        for r in range(32):
            a(f"v_mov_b32 v{ACC+r}, 0")
        a(f"v_mov_b32 v12, {self.LDS_SYNC + 48}")
        self.lds_spin(12, 4, 16, 1)
        if 'taildet' in self.dbg: self.stamp(1)
        wreg = lambda k: (128 + 8 * k) if k < 4 else (32 + 8 * (k - 4))
        for k0 in (0, 3, 6):
            for k in range(k0, min(k0 + 3, 8)):
                for cb in range(2):
                    a(f"ds_read_b64_tr_b16 {vr(wreg(k)+4*cb,2)}, v7 offset:{k*2048+cb*1024}")
                    a(f"ds_read_b64_tr_b16 {vr(wreg(k)+4*cb+2,2)}, v7 offset:{k*2048+cb*1024+512}")
            a("s_waitcnt lgkmcnt(0)")
        Lchk, Lok, Lrnd = self.lab("ochk"), self.lab("ook"), self.lab("ornd")
        def check_pass(brk):
            for k in range(8):
                Ln, Lr = self.lab("on"), self.lab("or")
                a(f"s_bitcmp1_b32 s55, {k}")
                a(f"s_cbranch_scc0 {Ln}")
                a(f"v_cmp_eq_u32 vcc, -1, v{OF+4*k}")
                a("s_nop 1")
                a("s_cmp_eq_u64 vcc, 0")
                a(f"s_cbranch_scc0 {Lr}")
                for cb in range(2):
                    a(f"v_mfma_f32_32x32x16_bf16 {vr(ACC+16*cb,16)}, {vr(wreg(k)+4*cb,4)}, {vr(OF+4*k,4)}, {vr(ACC+16*cb,16)}")
                a(f"s_bitset0_b32 s55, {k}")
                a(f"s_branch {Ln}")
                a.label(Lr)
                oload(k)
                if 'inorder' in self.dbg: a(f"s_branch {brk}")
                a.label(Ln)
        if 'taildet' in self.dbg: self.stamp(2)
        a("s_mov_b32 s58, 0")
        a("s_mov_b32 s55, 0xff")
        a("s_waitcnt vmcnt(0)")
        Lp1 = self.lab("p1")
        check_pass(Lp1)
        a.label(Lp1)
        if 'taildet' in self.dbg: self.stamp(3)
        a("s_barrier")
        for half in range(2):
            for pp in range(2):
                a(f"ds_read_b128 v[12:15], v11 offset:{(2*pp)*self.PPART + 16*half}")
                a(f"ds_read_b128 v[16:19], v11 offset:{(2*pp+1)*self.PPART + 16*half}")
                a("s_waitcnt lgkmcnt(0)")
                for e in range(4):
                    if pp == 0: a(f"v_add_f32 v{20+4*half+e}, v{12+e}, v{16+e}")
                    else:
                        a(f"v_add_f32 v{12+e}, v{12+e}, v{16+e}")
                        a(f"v_add_f32 v{20+4*half+e}, v{20+4*half+e}, v{12+e}")
        for e in range(4):
            a(f"v_lshlrev_b32 v28, 16, v{164+e}")
            a(f"v_and_b32 v29, 0xffff0000, v{164+e}")
            a(f"v_add_f32 v{20+2*e}, v{20+2*e}, v28")
            a(f"v_add_f32 v{21+2*e}, v{21+2*e}, v29")
        if 'taildet' in self.dbg: self.stamp(4)
        a.label(Lchk)
        a("s_cmp_eq_u32 s55, 0")
        a(f"s_cbranch_scc1 {Lok}")
        a("s_add_u32 s58, s58, 1")
        a("s_cmp_ge_u32 s58, 0x4000")
        a(f"s_cbranch_scc1 {Lok}")
        a("s_waitcnt vmcnt(0)")
        check_pass(Lchk)
        a(f"s_branch {Lchk}")
        a.label(Lok)
        if 'loopdet' not in self.dbg: self.stamp(5)
        if self.stamps: a("s_mov_b32 s64, s58")
        for e in range(8):
            a(f"v_mul_f32 v{12+e}, {f2u(-math.log2(math.e)):#x}, v{20+e}")
        for e in range(8):
            a(f"v_exp_f32 v{12+e}, v{12+e}")
        self.part_write(lambda tb, cb: ACC + 16 * cb, (0,), None)
        for e in range(8):
            a(f"v_add_f32 v{12+e}, 1.0, v{12+e}")
        for e in range(8):
            a(f"v_rcp_f32 v{12+e}, v{12+e}")
        self.srd(SRD_B, S_OUT, 2048 * 1024)
        for e in range(8):
            a(f"v_mul_f32 v{20+e}, v{20+e}, v{12+e}")
        a("s_waitcnt lgkmcnt(0)")
        a("s_barrier")
        if 'loopdet' not in self.dbg: self.stamp(6)
        for p in range(4):
            a(f"ds_read_b128 {vr(32+8*p,4)}, v10 offset:{p*self.PPART}")
            a(f"ds_read_b128 {vr(36+8*p,4)}, v10 offset:{p*self.PPART+16}")
        a("s_waitcnt lgkmcnt(0)")
        for e in range(8):
            a(f"v_add_f32 v{32+e}, v{32+e}, v{40+e}")
            a(f"v_add_f32 v{48+e}, v{48+e}, v{56+e}")
        for e in range(8):
            a(f"v_add_f32 v{96+e}, v{32+e}, v{48+e}")
        for e in range(4):
            a(f"v_lshlrev_b32 v28, 16, v{160+e}")
            a(f"v_and_b32 v29, 0xffff0000, v{160+e}")
            a(f"v_fma_f32 v{96+2*e}, v{96+2*e}, v{20+2*e}, v28")
            a(f"v_fma_f32 v{97+2*e}, v{97+2*e}, v{21+2*e}, v29")
        for e in range(4):
            a(f"v_cvt_pk_bf16_f32 v{104+e}, v{96+2*e}, v{97+2*e}")
        if 'dlyC' in self.dbg: a("s_sleep 127")
        sc = "" if 'outplain' in self.dbg else " sc1"
        a(f"buffer_store_dwordx4 v[104:107], v8, s[{SRD_B}:{SRD_B+3}], s61 offen{sc}")

    def build(self):
        a = self.a
        self.entry()
        if 'oldorder' in self.dbg:
            self.role_qkv()
            self.role_v()
            self.role_x()
        else:
            self.role_x()
            self.role_qkv()
            self.role_v()
        self.role_w3()
        self.role_ffn()
        self.role_down()
        self.attn_slow()
        self.s2_idle()
        self.role_attn()
        self.tail()
        a.label("L_fin")
        if 'hdbg' in self.dbg:
            a("s_memrealtime s[90:91]")
            a("s_memtime s[84:85]")
            a("s_waitcnt lgkmcnt(0)")
            a(f"s_cmp_lg_u32 s{S_W}, 0")
            a("s_cbranch_scc1 L_hd_skip")
            self.srd(SRD_B, S_DBG, 256)
            a("s_not_b32 s92, s88")
            a("v_mov_b32 v2, s92")
            a("v_mov_b32 v3, s90")
            a("s_sub_u32 s92, s90, s88")
            a("v_mov_b32 v4, s92")
            a("s_sub_u32 s93, s84, s86")
            a("v_mov_b32 v5, s93")
            a("v_mov_b32 v6, 0")
            a("s_mov_b64 exec, 1")
            a(f"buffer_atomic_umax v2, v6, s[{SRD_B}:{SRD_B+3}], 0 offen offset:8")
            a(f"buffer_atomic_umax v3, v6, s[{SRD_B}:{SRD_B+3}], 0 offen offset:12")
            a(f"buffer_atomic_umax v4, v6, s[{SRD_B}:{SRD_B+3}], 0 offen offset:16")
            a(f"buffer_atomic_umax v5, v6, s[{SRD_B}:{SRD_B+3}], 0 offen offset:20")
            a("s_mov_b64 exec, -1")
            a.label("L_hd_skip")
        self.dump_stamps()
        a.label("L_end")
        a("s_endpgm")
        a.label("L_code_end")
        a(".fill 256, 4, 0xbf800000")
        return a

HEADER = """; Kernarg layout (88 bytes): A_x, A_wqkv, A_wo, B_x, B_w1, B_b1, B_w2, B_b2, d_out, d_debug, d_ws
; @launch grid=(256,1,1) block=(768,1,1) lds=163840
.amdgcn_target "amdgcn-amd-amdhsa--gfx950"
.text
.globl {kn}
.p2align 8
.type {kn},@function
{kn}:
"""
FOOTER = """.section .rodata,"a"
.p2align 6
.amdhsa_kernel {kn}
  .amdhsa_next_free_vgpr 168
  .amdhsa_next_free_sgpr 102
  .amdhsa_accum_offset 168
  .amdhsa_group_segment_fixed_size 0
  .amdhsa_kernarg_size 88
  .amdhsa_user_sgpr_count 2
  .amdhsa_user_sgpr_kernarg_segment_ptr 1
  .amdhsa_system_sgpr_workgroup_id_x 1
.end_amdhsa_kernel
"""
def emit(path, **kw):
    g = Gen(**kw)
    a = g.build()
    check_hazards(a.lines)
    open(path, "w").write(HEADER.format(kn=KN) + a.text() + FOOTER.format(kn=KN))

if __name__ == "__main__":
    out = sys.argv[1] if len(sys.argv) > 1 else "k.s"
    dbg = [x[6:] for x in sys.argv if x.startswith("--dbg=")]
    stop = [x[7:] for x in sys.argv if x.startswith("--stop=")]
    emit(out, stamps=("--stamps" in sys.argv), dbg=dbg[0] if dbg else "", stop_after=stop[0] if stop else "all")
```

```python
import sys, math
from asmlib import Asm, vr, sr, check_hazards

NAME = "recurrent_scan__mha_block__dense_activation_squared_relu__prompt"
KN = NAME + "_kernel"

WS_Q, WS_K, WS_V = 0, 2 << 20, 4 << 20
WS_H = 6 << 20
WS_O = 14 << 20
WS_F = 16 << 20
WS_DBG = WS_F + (64 << 10)
WS_SIZE = WS_DBG + (256 << 10)
if 'dumpf' in ' '.join(sys.argv): WS_SIZE = 32 << 20
FL1, FL2, FL3 = WS_F, WS_F + 4096, WS_F + 8192

LDS_RING = 131072
LDS_SCR = LDS_RING + 3 * 8192 + 7 * 1024
LDS_NONCE = LDS_RING + 3 * 8192 + 6 * 1024
LDS_XF = LDS_NONCE + 16
LDS_DROP = 0x30000

QSCALE = 0.25 * math.log2(math.e)

def f2u(x):
    import struct
    return struct.unpack("<I", struct.pack("<f", x))[0]

S_W = 3
S_X, S_WQKV, S_WO, S_W1, S_B1, S_W2, S_B2, S_OUT, S_DBG, S_WS = 4, 6, 8, 12, 14, 16, 18, 20, 22, 24
S_TG, S_J = 26, 27
SRD_WS, SRD_A, SRD_B = 28, 32, 36
S_NONCE = 40
S_ONES = 41
S_HEAD, S_QB, S_T, S_C = 96, 97, 98, 99

class Gen:
    def __init__(self, stop_after="all", stamps=False, dbg=""):
        self.dbg = dbg.split(",")
        self.a = Asm()
        self.stop = stop_after
        self.stamps = stamps
        self.uid = 0
    def lab(self, p):
        self.uid += 1
        return f"L_{p}_{self.uid}"

    def srd(self, dst, ptr, size):
        a = self.a
        a(f"s_mov_b32 s{dst}, s{ptr}")
        a(f"s_and_b32 s{dst+1}, s{ptr+1}, 0xffff")
        a(f"s_mov_b32 s{dst+2}, {size}")
        a(f"s_mov_b32 s{dst+3}, 0x20000")

    def stamp(self, slot):
        if not self.stamps: return
        a = self.a
        a("s_memtime s[90:91]" if 'cyc' in self.dbg and slot not in (14,) else "s_memrealtime s[90:91]")
        a("s_waitcnt lgkmcnt(0)")
        a(f"s_mov_b32 s{64+slot}, s90")

    def cstamp(self, slot):
        if not self.stamps or 'phclk' not in self.dbg: return
        a = self.a
        a("s_memtime s[90:91]")
        a("s_waitcnt lgkmcnt(0)")
        a(f"s_mov_b32 s{64+slot}, s90")

    def dump_stamps(self):
        if not self.stamps: return
        a = self.a
        a("s_lshl_b32 s92, s2, 4")
        a(f"s_add_u32 s92, s92, s{S_W}")
        a("s_lshl_b32 s92, s92, 6")
        a(f"s_add_u32 s92, s92, {WS_DBG}")
        a("v_mov_b32 v1, 0")
        a("s_memtime s[84:85]")
        self.stamp(14)
        a("s_mov_b32 s79, s88")
        a("s_getreg_b32 s76, hwreg(HW_REG_HW_ID)")
        a("s_sub_u32 s77, s84, s86")
        for i in range(16):
            a(f"v_mov_b32 v2, s{64+i}")
            a(f"buffer_store_dword v2, v1, s[{SRD_WS}:{SRD_WS+3}], s92 offen offset:{4*i}")
            a("s_nop 1")

    def entry(self):
        a = self.a
        if self.stamps or 'hdbg' in self.dbg:
            a("s_memrealtime s[88:89]")
            a("s_memtime s[86:87]")
        a(f"s_cmp_ge_u32 s2, 256")
        a(f"s_cbranch_scc1 L_end")
        if 'dlyA' in self.dbg: a("s_sleep 127")
        a("s_load_dwordx16 s[4:19], s[0:1], 0")
        a("s_load_dwordx4 s[20:23], s[0:1], 64")
        a("s_load_dwordx2 s[24:25], s[0:1], 80")
        a("v_lshrrev_b32 v1, 6, v0")
        a("v_and_b32 v0, 63, v0")
        if 'map48' in self.dbg:
            a("s_and_b32 s26, s2, 3")
            a(f"v_readfirstlane_b32 s{S_W}, v1")
            a("s_lshl_b32 s26, s26, 2")
            a("s_bfe_u32 s42, s2, 0x20003")
            a(f"s_add_u32 s{S_TG}, s26, s42")
            a("s_bfe_u32 s27, s2, 0x10002")
            a("s_lshl_b32 s27, s27, 3")
            a("s_lshr_b32 s42, s2, 5")
            a(f"s_add_u32 s{S_J}, s27, s42")
        else:
            a("s_and_b32 s26, s2, 1")
            a(f"v_readfirstlane_b32 s{S_W}, v1")
            a("s_lshl_b32 s26, s26, 3")
            a("s_bfe_u32 s42, s2, 0x30003")
            a(f"s_add_u32 s{S_TG}, s26, s42")
            a("s_bfe_u32 s27, s2, 0x20001")
            if 'swap' in self.dbg:
                a("s_lshr_b32 s42, s27, 1")
                a("s_xor_b32 s27, s27, s42")
            a("s_lshl_b32 s27, s27, 2")
            a("s_lshr_b32 s42, s2, 6")
            a(f"s_add_u32 s{S_J}, s27, s42")
        a(f"s_mov_b32 s{S_ONES}, 0x3f803f80")
        if self.stamps:
            for i in range(16): a(f"s_mov_b32 s{64+i}, 0")
        if 'oldorder' in self.dbg:
            a(f"s_cmp_ge_u32 s{S_W}, 8")
            a("s_cbranch_scc1 L_role_ffn")
            a(f"s_cmp_ge_u32 s{S_W}, 4")
            a("s_cbranch_scc1 L_role_x")
            a(f"s_cmp_eq_u32 s{S_W}, 3")
            a("s_cbranch_scc1 L_role_w3")
        else:
            a(f"s_cmp_lt_u32 s{S_W}, 3")
            a("s_cbranch_scc1 L_role_qkv")
            a(f"s_cmp_ge_u32 s{S_W}, 8")
            a("s_cbranch_scc1 L_role_ffn")
            a(f"s_cmp_eq_u32 s{S_W}, 3")
            a("s_cbranch_scc1 L_role_w3")

    ACC = 64
    XA, XB = 16, 32
    WA, WB = 48, 52
    CS = 56
    VXA = 4
    VWR = 8
    VWG = 9
    S_WOFF, S_WSTR, S_RING, S_RINGD, S_CNT = 42, 43, 44, 45, 46

    def gemm_setup_addrs(self):
        a = self.a
        a("v_and_b32 v10, 31, v0")
        a("v_lshrrev_b32 v11, 5, v0")
        a("v_bfe_u32 v12, v0, 1, 3")
        a("v_xor_b32 v12, v11, v12")
        a("v_lshlrev_b32 v12, 4, v12")
        a(f"v_lshl_or_b32 v{self.VXA}, v10, 7, v12")
        for m in range(1, 4):
            a(f"v_xor_b32 v{self.VXA+m}, {32*m}, v{self.VXA}")
        a("v_bfe_u32 v12, v0, 2, 2")
        a("v_lshl_add_u32 v12, v11, 3, v12")
        a("v_lshlrev_b32 v12, 6, v12")
        a("v_bfe_u32 v13, v0, 4, 1")
        a("v_lshl_add_u32 v12, v13, 5, v12")
        a("v_and_b32 v13, 3, v0")
        a(f"v_lshl_add_u32 v{self.VWR}, v13, 3, v12")
        a(f"v_add_u32 v{self.VWR}, s{self.S_RING}, v{self.VWR}")

    def gemm_wg_voffset(self, pitch):
        a = self.a
        a("v_lshrrev_b32 v12, 2, v0")
        a(f"s_mov_b32 s47, {pitch}")
        a("v_mul_lo_u32 v12, v12, s47")
        a("v_and_b32 v13, 3, v0")
        a(f"v_lshl_add_u32 v{self.VWG}, v13, 4, v12")

    def w_dma(self, slot, ring_reg):
        a = self.a
        a(f"s_add_u32 m0, s{ring_reg}, {slot*1024}")
        a(f"s_add_u32 s{self.S_WOFF}, s{self.S_WOFF}, s{self.S_WSTR}")
        a(f"buffer_load_dwordx4 v{self.VWG}, s[{SRD_A}:{SRD_A+3}], s{self.S_WOFF} offen lds")

    def frag_reads(self, ksn, X, W, base_ks):
        a = self.a
        rel = ksn - base_ks
        slot = ksn & 7
        m = ksn & 3
        kc = rel >> 2 if base_ks % 8 == 0 else None
        return rel, slot, m, kc

    VF = 144
    S_NEED = 56

    def xflag_check(self, L):
        a = self.a
        a(f"v_readfirstlane_b32 s57, v149")
        return L

    S1D = 10

    def gemm_s1(self, swapped):
        a = self.a
        D = self.S1D
        for ks in range(32):
            X, W = (self.XA, self.WA) if ks % 2 == 0 else (self.XB, self.WB)
            Xn, Wn = (self.XB, self.WB) if ks % 2 == 0 else (self.XA, self.WA)
            def mf(tb):
                acc = self.ACC + 16 * tb
                if swapped:
                    a(f"v_mfma_f32_32x32x16_bf16 {vr(acc,16)}, {vr(X+4*tb,4)}, {vr(W,4)}, {vr(acc,16)}")
                else:
                    a(f"v_mfma_f32_32x32x16_bf16 {vr(acc,16)}, {vr(W,4)}, {vr(X+4*tb,4)}, {vr(acc,16)}")
            n = ks + 1
            chk = (ks & 3) == 3 and n < 32
            a("s_waitcnt lgkmcnt(0)")
            mf(0)
            if chk:
                a(f"v_min3_u32 v149, v{self.VF}, v{self.VF+1}, v{self.VF+2}")
                a(f"v_min_u32 v149, v149, v{self.VF+3}")
            if ks + D < 32:
                self.w_dma(ks % D, self.S_RING)
            elif chk: a("s_nop 0")
            if chk: a("v_readfirstlane_b32 s57, v149")
            if n < 32:
                a(f"s_waitcnt vmcnt({min(D - 1, 31 - n) if ks + D < 32 else 31 - n})")
                a(f"ds_read_b64_tr_b16 {vr(Wn,2)}, v{self.VWR} offset:{(n % D)*1024}")
                a(f"ds_read_b64_tr_b16 {vr(Wn+2,2)}, v{self.VWR} offset:{(n % D)*1024+256}")
            if chk:
                need = (n >> 2) + 1
                Lok, Lsp = self.lab("xok"), self.lab("xsp")
                a(f"s_cmp_ge_u32 s57, {need}")
                a(f"s_cbranch_scc1 {Lok}")
                a("s_mov_b32 s58, 0")
                a.label(Lsp)
                a(f"ds_read_b128 {vr(self.VF,4)}, v148")
                a("s_add_u32 s58, s58, 1")
                a("s_waitcnt lgkmcnt(0)")
                a(f"v_min3_u32 v149, v{self.VF}, v{self.VF+1}, v{self.VF+2}")
                a(f"v_min_u32 v149, v149, v{self.VF+3}")
                a("s_nop 0")
                a("v_readfirstlane_b32 s57, v149")
                a("s_cmp_ge_u32 s58, 0x100000")
                a(f"s_cbranch_scc1 {Lok}")
                a(f"s_cmp_lt_u32 s57, {need}")
                a(f"s_cbranch_scc1 {Lsp}")
                a.label(Lok)
            mf(1)
            if n < 32:
                if n == 16:
                    for m in range(4): a(f"v_add_u32 v{self.VXA+m}, 0x10000, v{self.VXA+m}")
                for tb in range(4):
                    a(f"ds_read_b128 {vr(Xn+4*tb,4)}, v{self.VXA+(n&3)} offset:{((n>>2)&3)*16384 + tb*4096}")
                if (ks & 3) == 2 and n + 1 < 32:
                    a(f"ds_read_b128 {vr(self.VF,4)}, v148")
            mf(2)
            a(f"v_mfma_f32_16x16x32_bf16 {vr(self.CS4,4)}, {vr(W,4)}, {vr(self.PAR,4)}, {vr(self.CS4,4)}")
            mf(3)

    def gemm_loop(self, swapped, s1, tag):
        a = self.a
        L = self.lab("gl_" + tag)
        a(f"s_mov_b32 s{self.S_CNT}, 0")
        a(f"s_mov_b32 s{self.S_RINGD}, s{self.S_RING}")
        if s1: a(f"s_mov_b32 s{self.S_NEED}, 1")
        a.label(L)
        if 'loopdet' in self.dbg:
            a("s_memtime s[90:91]")
            a("s_waitcnt lgkmcnt(0)")
            for t in range(4):
                a(f"s_cmp_eq_u32 s{self.S_CNT}, {t}")
                sl = (0 if not s1 else 4) + t
                a(f"s_cselect_b32 s{64+sl}, s90, s{64+sl}")
        a(f"s_cmp_eq_u32 s{self.S_CNT}, 3")
        a(f"s_cselect_b32 s{self.S_RINGD}, {LDS_DROP}, s{self.S_RINGD}")
        if not s1 and self.stop != "s2":
            L0 = self.lab("x0")
            a(f"s_cbranch_scc0 {L0}")
            a("s_barrier")
            a.label(L0)
        for i in range(8):
            X, W = (self.XA, self.WA) if i % 2 == 0 else (self.XB, self.WB)
            Xn, Wn = (self.XB, self.WB) if i % 2 == 0 else (self.XA, self.WA)
            def mf(tb):
                acc = self.ACC + 16 * tb
                if swapped:
                    a(f"v_mfma_f32_32x32x16_bf16 {vr(acc,16)}, {vr(X+4*tb,4)}, {vr(W,4)}, {vr(acc,16)}")
                else:
                    a(f"v_mfma_f32_32x32x16_bf16 {vr(acc,16)}, {vr(W,4)}, {vr(X+4*tb,4)}, {vr(acc,16)}")
            chk = s1 and (i & 3) == 3
            a("s_waitcnt lgkmcnt(0)")
            mf(0)
            if chk:
                a(f"v_min3_u32 v149, v{self.VF}, v{self.VF+1}, v{self.VF+2}")
                a(f"s_add_u32 s{self.S_NEED}, s{self.S_NEED}, 1")
                a(f"v_min_u32 v149, v149, v{self.VF+3}")
                a(f"s_min_u32 s{self.S_NEED}, s{self.S_NEED}, 8")
            self.w_dma(i, self.S_RINGD)
            if chk: a("v_readfirstlane_b32 s57, v149")
            a("s_waitcnt vmcnt(7)")
            nslot = (i + 1) & 7
            a(f"ds_read_b64_tr_b16 {vr(Wn,2)}, v{self.VWR} offset:{nslot*1024}")
            a(f"ds_read_b64_tr_b16 {vr(Wn+2,2)}, v{self.VWR} offset:{nslot*1024+256}")
            if chk:
                Lok, Lsp = self.lab("xok"), self.lab("xsp")
                a(f"s_cmp_ge_u32 s57, s{self.S_NEED}")
                a(f"s_cbranch_scc1 {Lok}")
                a("s_mov_b32 s58, 0")
                a.label(Lsp)
                a(f"ds_read_b128 {vr(self.VF,4)}, v148")
                a("s_add_u32 s58, s58, 1")
                a("s_waitcnt lgkmcnt(0)")
                a(f"v_min3_u32 v149, v{self.VF}, v{self.VF+1}, v{self.VF+2}")
                a(f"v_min_u32 v149, v149, v{self.VF+3}")
                a("s_nop 0")
                a("v_readfirstlane_b32 s57, v149")
                a("s_cmp_ge_u32 s58, 0x100000")
                a(f"s_cbranch_scc1 {Lok}")
                a(f"s_cmp_lt_u32 s57, s{self.S_NEED}")
                a(f"s_cbranch_scc1 {Lsp}")
                a.label(Lok)
            mf(1)
            n = i + 1
            for tb in range(4):
                a(f"ds_read_b128 {vr(Xn+4*tb,4)}, v{self.VXA+(n&3)} offset:{(n>>2)*16384 + tb*4096}")
            if s1 and (i & 3) == 2:
                a(f"ds_read_b128 {vr(self.VF,4)}, v148")
            mf(2)
            if 'nocs' not in self.dbg:
                a(f"v_mfma_f32_16x16x32_bf16 {vr(self.CS4,4)}, {vr(W,4)}, {vr(self.PAR,4)}, {vr(self.CS4,4)}")
            mf(3)
        for m in range(4):
            a(f"v_add_u32 v{self.VXA+m}, 0x8000, v{self.VXA+m}")
        a(f"s_add_u32 s{self.S_CNT}, s{self.S_CNT}, 1")
        a(f"s_cmp_lt_u32 s{self.S_CNT}, 4")
        a(f"s_cbranch_scc1 {L}")

    def wait_xflags(self, regs, need, vaddr, vt):
        a = self.a
        Lsp, Lok = self.lab("wsp"), self.lab("wok")
        a("s_mov_b32 s58, 0")
        a.label(Lsp)
        n = len(regs)
        a(f"ds_read_b{32*n} {vr(regs[0], n)}, v{vaddr}")
        a("s_add_u32 s58, s58, 1")
        a("s_waitcnt lgkmcnt(0)")
        if n == 4:
            a(f"v_min3_u32 v{vt}, v{regs[0]}, v{regs[1]}, v{regs[2]}")
            a(f"v_min_u32 v{vt}, v{vt}, v{regs[3]}")
        else:
            a(f"v_min_u32 v{vt}, v{regs[0]}, v{regs[1]}")
        a("s_nop 0")
        a(f"v_readfirstlane_b32 s57, v{vt}")
        a("s_cmp_ge_u32 s58, 0x100000")
        a(f"s_cbranch_scc1 {Lok}")
        a(f"s_cmp_lt_u32 s57, {need}")
        a(f"s_cbranch_scc1 {Lsp}")
        a.label(Lok)

    CS4 = 56
    PAR = 60

    def cs_acc(self, W, q0, q1):
        a = self.a
        for q in range(q0, q1):
            t = 58 + 2 * (q & 1)
            a(f"v_lshlrev_b32 v{t}, 16, v{W+q}")
            a(f"v_and_b32 v{t+1}, 0xffff0000, v{W+q}")
            a(f"v_add_f32 v{self.CS}, v{t}, v{self.CS}")
            a(f"v_add_f32 v{self.CS+1}, v{t+1}, v{self.CS+1}")

    def gemm_first_frags(self):
        a = self.a
        a(f"ds_read_b64_tr_b16 {vr(self.WA,2)}, v{self.VWR} offset:0")
        a(f"ds_read_b64_tr_b16 {vr(self.WA+2,2)}, v{self.VWR} offset:256")
        for tb in range(4):
            a(f"ds_read_b128 {vr(self.XA+4*tb,4)}, v{self.VXA} offset:{tb*4096}")

    def zero_acc(self):
        a = self.a
        for i in range(64):
            a(f"v_mov_b32 v{self.ACC+i}, 0")

    def cs16_from_cs4(self):
        a = self.a
        a("v_lshrrev_b32 v11, 5, v0")
        a("v_lshlrev_b32 v11, 6, v11")
        a("s_waitcnt lgkmcnt(0)")
        for r in range(16):
            b, jj = r >> 2, r & 3
            a(f"ds_bpermute_b32 v{16+r}, v11, v{self.CS4+jj} offset:{128*(b&1)+4*(b>>1)}")

    def cs_total(self):
        a = self.a
        a(f"v_add_f32 v{self.CS}, v{self.CS}, v{self.CS+1}")
        a("s_nop 0")
        a(f"v_mov_b32 v{self.CS+1}, v{self.CS}")
        a("s_nop 1")
        a(f"v_permlane32_swap_b32 v{self.CS}, v{self.CS+1}")
        a("s_nop 1")
        a(f"v_add_f32 v{self.CS}, v{self.CS}, v{self.CS+1}")

    def read_nonce(self, vtmp):
        a = self.a
        a(f"v_mov_b32 v{vtmp}, {LDS_NONCE}")
        a(f"ds_read_b32 v{vtmp}, v{vtmp}")

    def publish_flag(self, s_off, vtmp):
        a = self.a
        a("s_waitcnt vmcnt(0)")
        a(f"v_mov_b32 v{vtmp}, s{S_NONCE}")
        a(f"v_mov_b32 v{vtmp+1}, 0")
        a("s_mov_b64 exec, 1")
        a(f"buffer_store_dword v{vtmp}, v{vtmp+1}, s[{SRD_WS}:{SRD_WS+3}], s{s_off} offen sc1")
        a("s_mov_b64 exec, -1")

    def tok_stats_read(self):
        a = self.a
        a("v_and_b32 v10, 31, v0")
        a(f"v_lshlrev_b32 v10, 2, v10")
        a(f"v_add_u32 v10, {LDS_SCR}, v10")
        for tb in range(4):
            a(f"ds_read_b32 v{32+2*tb}, v10 offset:{tb*128}")
            a(f"ds_read_b32 v{33+2*tb}, v10 offset:{512+tb*128}")
        self.read_nonce(40)
        a("v_lshrrev_b32 v11, 5, v0")
        a("v_lshlrev_b32 v11, 4, v11")
        for r in range(16):
            a(f"ds_bpermute_b32 v{16+r}, v11, v{self.CS} offset:{(8*(r>>2)+(r&3))*4}")

    def role_qkv(self):
        a = self.a
        a.label("L_role_qkv")
        if 's1unr' not in self.dbg: a(f"s_lshl_b32 s{self.S_RING}, s{S_W}, 13")
        else: a(f"s_mul_i32 s{self.S_RING}, s{S_W}, {self.S1D*1024}")
        a(f"s_add_u32 s{self.S_RING}, s{self.S_RING}, {LDS_RING}")
        a(f"s_mul_i32 s53, s{S_J}, 3")
        a(f"s_add_u32 s53, s53, s{S_W}")
        self.gemm_wg_voffset(3072)
        a(f"s_lshl_b32 s{self.S_WOFF}, s53, 6")
        a(f"s_mov_b32 s{self.S_WSTR}, {16*3072 if 'wq0' not in self.dbg else 0}")
        a(f"s_sub_u32 s{self.S_WOFF}, s{self.S_WOFF}, s{self.S_WSTR}")
        a("s_waitcnt lgkmcnt(0)")
        self.srd(SRD_A, S_WQKV, 512 * 3072)
        n0 = 8 if 'w8first' in self.dbg else 2
        for sl in range(n0):
            self.w_dma(sl, self.S_RING)
        a("s_lshr_b32 s54, s53, 4")
        a("s_and_b32 s55, s53, 15")
        self.srd(SRD_WS, S_WS, WS_SIZE)
        self.gemm_setup_addrs()
        self.zero_acc()
        nd = 8 if 's1unr' not in self.dbg else self.S1D
        for sl in range(n0, nd):
            self.w_dma(sl, self.S_RING)
        self.cs4_init()
        a(f"v_mov_b32 v148, {LDS_XF}")
        self.stamp(0)
        a("s_barrier")
        self.wait_xflags([144, 145, 146, 147], 1, 148, 149)
        a(f"s_waitcnt vmcnt({nd - 1})")
        self.stamp(1)
        self.gemm_first_frags()
        a("s_cmp_eq_u32 s54, 2")
        a("s_cbranch_scc1 L_role_v")
        if 's1unr' not in self.dbg: self.gemm_loop(False, True, "qk")
        else: self.gemm_s1(False)
        self.stamp(2)
        a("s_barrier")
        a("v_and_b32 v10, 31, v0")
        a(f"v_lshlrev_b32 v10, 2, v10")
        a(f"v_add_u32 v10, {LDS_SCR}, v10")
        for tb in range(4):
            a(f"ds_read_b32 v{32+2*tb}, v10 offset:{tb*128}")
            a(f"ds_read_b32 v{33+2*tb}, v10 offset:{512+tb*128}")
        self.read_nonce(40)
        a("s_nop 3")
        self.cs16_from_cs4()
        a("s_waitcnt lgkmcnt(0)")
        a(f"v_readfirstlane_b32 s{S_NONCE}, v40")
        a("s_cmp_eq_u32 s54, 0")
        a(f"s_cselect_b32 s47, {f2u(QSCALE)}, 1.0")
        for tb in range(4):
            a(f"v_mul_f32 v{32+2*tb}, s47, v{32+2*tb}")
            a(f"v_mul_f32 v{33+2*tb}, s47, v{33+2*tb}")
        a("s_lshl_b32 s48, s54, 21")
        a("s_lshl_b32 s49, s55, 17")
        a("s_add_u32 s48, s48, s49")
        a(f"s_lshl_b32 s49, s{S_TG}, 12")
        a("s_add_u32 s48, s48, s49")
        a("v_lshlrev_b32 v10, 4, v0")
        self.tok_epilogue_store(ffn=False)
        a("s_barrier")
        a("s_lshl_b32 s48, s55, 8")
        a("s_lshl_b32 s49, s54, 6")
        a("s_add_u32 s48, s48, s49")
        a(f"s_lshl_b32 s49, s{S_TG}, 2")
        a("s_add_u32 s48, s48, s49")
        a(f"s_add_u32 s48, s48, {FL1}")
        self.publish_flag(48, 12)
        self.stamp(3)
        a("s_branch L_s2_idle")

    def tok_epilogue_store(self, ffn):
        a = self.a
        hb_stride = 1024 if ffn else 65536
        tb_stride = 112 * 1024 if ffn else 1024
        T = 44
        for tb in range(4):
            st = 32 + 2 * tb
            for hb in range(2):
                P = 48 + 4 * hb
                for p in range(4):
                    r = 8 * hb + 2 * p
                    acc = self.ACC + 16 * tb + r
                    w = T + 2 * (p & 1)
                    for e in range(2):
                        if ffn: a(f"v_fma_f32 v{w+e}, v{16+r+e}, v{st+1}, v{128+r+e}")
                        else:   a(f"v_mul_f32 v{w+e}, v{16+r+e}, v{st+1}")
                    for e in range(2):
                        a(f"v_fma_f32 v{acc+e}, v{acc+e}, v{st}, v{w+e}")
                    if ffn:
                        for e in range(2):
                            a(f"v_max_f32 v{w+e}, 0, v{acc+e}")
                        for e in range(2):
                            a(f"v_mul_f32 v{acc+e}, v{w+e}, v{w+e}")
                    a(f"v_cvt_pk_bf16_f32 v{P+p}, v{acc}, v{acc+1}")
                off = hb * hb_stride + tb * tb_stride
                a(f"s_add_u32 s49, s48, {off}")
                a(f"buffer_store_dwordx4 {vr(P,4)}, v10, s[{SRD_WS}:{SRD_WS+3}], s49 offen sc1")

    def role_v(self):
        a = self.a
        a.label("L_role_v")
        if 's1unr' not in self.dbg: self.gemm_loop(True, True, "v")
        else: self.gemm_s1(True)
        self.stamp(2)
        a("s_barrier")
        self.read_nonce(40)
        a("v_bfe_u32 v12, v0, 2, 2")
        a("v_bfe_u32 v13, v0, 4, 1")
        a("v_lshl_add_u32 v12, v12, 4, v13")
        a("v_lshlrev_b32 v12, 2, v12")
        a("s_nop 3")
        a("s_waitcnt lgkmcnt(0)")
        for jj in range(4):
            a(f"ds_bpermute_b32 v{16+jj}, v12, v{self.CS4+jj}")
        a("v_and_b32 v13, 3, v0")
        a("s_waitcnt lgkmcnt(0)")
        for jj in range(1, 4):
            a(f"v_cmp_eq_u32 vcc, {jj}, v13")
            a("s_nop 1")
            a(f"v_cndmask_b32 v16, v16, v{16+jj}, vcc")
        a(f"v_mov_b32 v{self.CS}, v16")
        a("v_lshrrev_b32 v11, 5, v0")
        a("v_lshlrev_b32 v11, 4, v11")
        a(f"v_add_u32 v11, {LDS_SCR}, v11")
        a("v_bfe_u32 v12, v0, 4, 1")
        a("v_lshlrev_b32 v12, 16, v12")
        a("v_lshrrev_b32 v13, 5, v0")
        a("v_lshl_add_u32 v12, v13, 8, v12")
        a("v_and_b32 v13, 15, v0")
        a("v_lshl_add_u32 v10, v13, 4, v12")
        a("s_lshl_b32 s48, s55, 17")
        a(f"s_lshl_b32 s49, s{S_TG}, 12")
        a("s_add_u32 s48, s48, s49")
        a(f"s_add_u32 s48, s48, {WS_V}")
        a("s_waitcnt lgkmcnt(0)")
        a(f"v_readfirstlane_b32 s{S_NONCE}, v40")
        for tb in range(4):
            for b in range(4):
                a(f"ds_read_b128 {vr(16+4*b,4)}, v11 offset:{(32*tb+8*b)*4}")
                a(f"ds_read_b128 {vr(32+4*b,4)}, v11 offset:{512+(32*tb+8*b)*4}")
            a("s_waitcnt lgkmcnt(0)")
            for t in range(2):
                P = 48 + 4 * t
                for p in range(4):
                    r = 8 * t + 2 * p
                    acc = self.ACC + 16 * tb + r
                    w = 58 + 2 * (p & 1)
                    for e in range(2):
                        a(f"v_mul_f32 v{w+e}, v{32+r+e}, v{self.CS}")
                    for e in range(2):
                        a(f"v_fma_f32 v{acc+e}, v{acc+e}, v{16+r+e}, v{w+e}")
                    a(f"v_cvt_pk_bf16_f32 v{P+p}, v{acc}, v{acc+1}")
                a(f"s_add_u32 s49, s48, {tb*1024 + t*512}")
                a(f"buffer_store_dwordx4 {vr(P,4)}, v10, s[{SRD_WS}:{SRD_WS+3}], s49 offen sc1")
        a("s_barrier")
        a("s_lshl_b32 s48, s55, 8")
        a(f"s_lshl_b32 s49, s{S_TG}, 2")
        a("s_add_u32 s48, s48, s49")
        a(f"s_add_u32 s48, s48, {FL1 + 128}")
        self.publish_flag(48, 12)
        self.stamp(3)
        a("s_branch L_s2_idle")

    def role_x(self):
        a = self.a
        a.label("L_role_x")
        a("v_lshrrev_b32 v1, 3, v0")
        a("v_lshrrev_b32 v2, 4, v0")
        a("v_and_b32 v3, 7, v0")
        a("v_xor_b32 v3, v2, v3")
        a("v_lshlrev_b32 v3, 4, v3")
        a("v_lshl_or_b32 v2, v1, 10, v3")
        a("v_xor_b32 v3, 64, v2")
        a(f"s_sub_u32 s42, s{S_W}, 4")
        a(f"s_lshl_b32 s43, s{S_TG}, 17")
        a("s_lshl_b32 s44, s42, 15")
        a("s_add_u32 s43, s43, s44")
        a("s_lshl_b32 s44, s42, 12")
        a("s_waitcnt lgkmcnt(0)")
        self.srd(SRD_A, S_X, 2048 * 1024)
        D = self.XLOOK
        def chunk(kc):
            for rg in range(4):
                a(f"s_add_u32 m0, s44, {kc*16384 + rg*1024}")
                a(f"s_add_u32 s45, s43, {rg*8192 + kc*128}")
                a(f"buffer_load_dwordx4 v{2+(rg&1)}, s[{SRD_A}:{SRD_A+3}], s45 offen lds")
        ramp = 'noramp' not in self.dbg and 'nox' not in self.dbg
        R = [d for d in self.dbg if d.startswith('rp')]
        sched = {'rpA': ([0, 1], [[2, 3], [4, 5], [6], [7], [], [], [], []]),
                 'rpB': ([0, 1], [[2, 3, 4], [5, 6], [7], [], [], [], [], []]),
                 'rpC': ([0, 1, 2], [[3, 4], [5, 6], [7], [], [], [], [], []])}[R[0] if R else 'rpA'] if ramp else None
        for kc in (sched[0] if ramp else range(D)): chunk(kc)
        self.srd(SRD_WS, S_WS, WS_SIZE)
        a("s_lshl_b32 s46, s42, 2")
        a(f"s_add_u32 s46, s46, {LDS_XF}")
        a("v_mov_b32 v4, s46")
        a("v_mov_b32 v5, 0")
        a("ds_write_b32 v4, v5")
        a("s_waitcnt lgkmcnt(0)")
        self.stamp(0)
        a("s_barrier")
        for kc in range(8):
            a(f"v_mov_b32 v5, {kc+1}")
            if ramp:
                issued = max(sched[0] + [c for k2 in range(kc) for c in sched[1][k2]])
                a(f"s_waitcnt vmcnt({4*(issued - kc)})")
            elif 'nox' not in self.dbg or kc == 0: a(f"s_waitcnt vmcnt({4*min(D-1, 7-kc)})")
            a("ds_write_b32 v4, v5")
            if kc == 0: self.stamp(1)
            if 's1det' in self.dbg: self.stamp(kc + 4)
            if ramp:
                for c in sched[1][kc]: chunk(c)
            elif kc + D < 8 and 'nox' not in self.dbg: chunk(kc + D)
        a("s_waitcnt lgkmcnt(0)")
        a("s_barrier")
        self.read_nonce(40)
        a("s_waitcnt lgkmcnt(0)")
        a(f"v_readfirstlane_b32 s{S_NONCE}, v40")
        a("s_barrier")
        self.stamp(3)
        a("s_branch L_s2_idle")

    @property
    def XLOOK(self):
        for d in self.dbg:
            if d.startswith('xl'): return int(d[2:])
        return 3
    WLOOK = 4

    def stats_setup(self, tb0):
        a = self.a
        a("v_and_b32 v10, 31, v0")
        a("v_lshrrev_b32 v11, 5, v0")
        a("v_bfe_u32 v12, v0, 1, 3")
        a("v_xor_b32 v12, v11, v12")
        a("v_lshlrev_b32 v12, 4, v12")
        a("v_lshl_or_b32 v152, v10, 7, v12")
        a(f"v_add_u32 v152, {tb0*4096}, v152")
        for m in range(1, 4):
            a(f"v_xor_b32 v{152+m}, {32*m}, v152")
        for i in range(8):
            a(f"v_mov_b32 v{156+i}, 0")

    def stats_chunk(self, kc, tb0):
        a = self.a
        a(f"v_mov_b32 v12, {LDS_XF + 4*tb0}")
        self.wait_xflags([10, 11], kc + 1, 12, 13)
        if kc == 4:
            for m in range(4): a(f"v_add_u32 v{152+m}, 0x10000, v{152+m}")
        for m in range(4):
            for t in range(2):
                a(f"ds_read_b128 {vr(16+8*m+4*t,4)}, v{152+m} offset:{(kc&3)*16384 + t*4096}")
        for m in range(4):
            for t in range(2):
                a(f"s_waitcnt lgkmcnt({7-2*m-t})")
                F = 16 + 8*m + 4*t
                for q in range(4 if 'nostats' not in self.dbg else 0):
                    a(f"v_dot2c_f32_bf16 v{156+4*t+(q&1)}, s{S_ONES}, v{F+q}")
                    a(f"v_dot2c_f32_bf16 v{158+4*t+(q&1)}, v{F+q}, v{F+q}")

    def stats_final(self, tb0):
        a = self.a
        a("s_nop 2")
        for t in range(2):
            a(f"v_add_f32 v{156+4*t}, v{156+4*t}, v{157+4*t}")
            a(f"v_add_f32 v{158+4*t}, v{158+4*t}, v{159+4*t}")
        a("s_nop 0")
        for t in range(2):
            a(f"v_mov_b32 v{157+4*t}, v{156+4*t}")
            a(f"v_mov_b32 v{159+4*t}, v{158+4*t}")
        a("s_nop 1")
        for t in range(2):
            a(f"v_permlane32_swap_b32 v{156+4*t}, v{157+4*t}")
            a(f"v_permlane32_swap_b32 v{158+4*t}, v{159+4*t}")
        a("s_nop 1")
        a("v_and_b32 v12, 31, v0")
        a("v_lshlrev_b32 v12, 2, v12")
        a(f"v_add_u32 v12, {LDS_SCR + tb0*128}, v12")
        for t in range(2):
            S, Q = 156+4*t, 158+4*t
            a(f"v_add_f32 v{S}, v{S}, v{S+1}")
            a(f"v_add_f32 v{Q}, v{Q}, v{Q+1}")
            a(f"v_mul_f32 v{S}, {f2u(1.0/512)}, v{S}")
            a(f"v_mul_f32 v{Q}, {f2u(1.0/512)}, v{Q}")
            a(f"v_fma_f32 v{Q}, -v{S}, v{S}, v{Q}")
            a(f"v_max_f32 v{Q}, 0, v{Q}")
            a(f"v_add_f32 v{Q}, {f2u(1e-5)}, v{Q}")
            a(f"v_rsq_f32 v{Q}, v{Q}")
            a("s_nop 0")
            a(f"v_mul_f32 v{S}, v{S}, v{Q}")
            a(f"v_sub_f32 v{S}, 0, v{S}")
            a(f"ds_write_b32 v12, v{Q} offset:{t*128}")
            a(f"ds_write_b32 v12, v{S} offset:{512+t*128}")
        a("s_waitcnt lgkmcnt(0)")

    def role_w3(self):
        a = self.a
        a.label("L_role_w3")
        self.stats_setup(0)
        a("s_waitcnt lgkmcnt(0)")
        self.srd(SRD_WS, S_WS, WS_SIZE)
        self.srd(SRD_A, S_DBG, 256)
        a("v_mov_b32 v2, 0")
        a("s_cmp_lg_u32 s2, 0")
        a("s_cbranch_scc1 L_nc_np")
        a("s_memrealtime s[60:61]")
        a("s_waitcnt lgkmcnt(0)")
        a("s_or_b32 s60, s60, 1")
        a("v_mov_b32 v1, s60")
        a("s_mov_b64 exec, 1")
        a(f"buffer_store_dword v1, v2, s[{SRD_A}:{SRD_A+3}], 0 offen sc1")
        a("s_mov_b64 exec, -1")
        a.label("L_nc_np")
        a("s_barrier")
        for kc in range(8):
            if kc == 3:
                a(f"buffer_load_dword v1, v2, s[{SRD_A}:{SRD_A+3}], 0 offen sc1")
            if kc == 7:
                a("s_mov_b32 s62, 0")
                a.label("L_nc_chk")
                a("s_waitcnt vmcnt(0)")
                a(f"v_readfirstlane_b32 s{S_NONCE}, v1")
                a(f"s_cmp_lg_u32 s{S_NONCE}, 0")
                a("s_cbranch_scc1 L_nc_got")
                a("s_add_u32 s62, s62, 1")
                a("s_cmp_ge_u32 s62, 8192")
                a("s_cbranch_scc1 L_nc_got")
                a(f"buffer_load_dword v1, v2, s[{SRD_A}:{SRD_A+3}], 0 offen sc1")
                a("s_branch L_nc_chk")
                a.label("L_nc_got")
                a(f"v_mov_b32 v1, s{S_NONCE}")
                a(f"v_mov_b32 v2, {LDS_NONCE}")
                a("ds_write_b32 v2, v1")
            self.stats_chunk(kc, 0)
            if 's1det' in self.dbg: self.stamp(kc + 4)
        self.stats_final(0)
        self.stamp(2)
        a("s_barrier")
        a("s_barrier")
        a("s_branch L_s2_idle")

    def ffn_setup(self):
        a = self.a
        a(f"s_sub_u32 s50, s{S_W}, 8")
        a(f"s_lshl_b32 s{self.S_RING}, s50, 13")
        a(f"s_add_u32 s{self.S_RING}, s{self.S_RING}, {LDS_RING}")
        self.gemm_wg_voffset(3584)
        a(f"s_lshl_b32 s51, s{S_J}, 2")
        a("s_add_u32 s51, s51, s50")
        a(f"s_lshl_b32 s{self.S_WOFF}, s51, 6")
        a(f"s_mov_b32 s{self.S_WSTR}, {16*3584 if 'wstr0' not in self.dbg else 0}")
        a(f"s_sub_u32 s{self.S_WOFF}, s{self.S_WOFF}, s{self.S_WSTR}")
        self.srd(SRD_A, S_W1, 512 * 3584)
        self.srd(SRD_B, S_B1, 1792 * 2)
        a("v_lshrrev_b32 v12, 5, v0")
        a("v_lshlrev_b32 v12, 3, v12")
        a("s_lshl_b32 s52, s51, 6")
        for b in range(4):
            a(f"buffer_load_dwordx2 {vr(144+2*b,2)}, v12, s[{SRD_B}:{SRD_B+3}], s52 offen offset:{16*b}")
        self.gemm_setup_addrs()
        self.zero_acc()
        self.cs4_init()

    def cs4_init(self):
        a = self.a
        a("v_lshrrev_b32 v12, 4, v0")
        a("v_xor_b32 v12, v12, v0")
        a("v_and_b32 v12, 1, v12")
        a("v_cmp_eq_u32 vcc, 0, v12")
        a(f"v_mov_b32 v13, s{S_ONES}")
        for i in range(4):
            a(f"v_mov_b32 v{self.CS4+i}, 0")
        for i in range(4):
            a(f"v_cndmask_b32 v{self.PAR+i}, 0, v13, vcc")

    def role_ffn(self):
        a = self.a
        a.label("L_role_ffn")
        if 'nopf' not in self.dbg:
            a(f"s_cmp_lg_u32 s{S_W}, 9")
            a("s_cbranch_scc1 L_nopf")
            a("s_getpc_b64 s[46:47]")
            a.label("L_pc")
            a(f"s_sub_u32 s46, s46, L_pc-{KN}")
            a("s_subb_u32 s47, s47, 0")
            a("s_lshr_b32 s48, s2, 3")
            a("v_lshlrev_b32 v12, 4, v0")
            for k in range(2):
                a(f"s_cmp_ge_u32 s48, (L_code_end-{KN}+1023)/1024")
                a("s_cbranch_scc1 L_nopf")
                a("s_lshl_b32 s49, s48, 10")
                a("v_add_u32 v13, s49, v12")
                a(f"global_load_dwordx4 {vr(160+4*k,4)}, v13, s[46:47]")
                a("s_add_u32 s48, s48, 32")
            a.label("L_nopf")
        a("s_waitcnt lgkmcnt(0)")
        if 'tq' in self.dbg:
            a(f"s_cmp_eq_u32 s{S_W}, 10")
            a("s_cbranch_scc0 L_tch2")
            self.srd(SRD_B, S_WQKV, 512 * 3072)
            a("s_bfe_u32 s46, s2, 0x30003")
            a(f"s_mul_i32 s46, s46, {64*3072}")
            a(f"s_mul_i32 s47, s{S_J}, 192")
            a("s_and_b32 s47, s47, 0xffffff80")
            a("s_add_u32 s46, s46, s47")
            a("v_lshrrev_b32 v12, 1, v0")
            a("v_mul_u32_u24 v12, 3072, v12")
            a("v_and_b32 v13, 1, v0")
            a("v_lshl_add_u32 v12, v13, 7, v12")
            for i in range(2):
                a(f"buffer_load_dword v{160+i}, v12, s[{SRD_B}:{SRD_B+3}], s46 offen")
                a(f"s_add_u32 s46, s46, {32*3072}")
            a.label("L_tch2")
        self.srd(SRD_WS, S_WS, WS_SIZE)
        self.ffn_setup()
        a("s_barrier")
        tw = [d for d in self.dbg if d.startswith('tw')] or ['tw6']
        if tw[0] != 'tw0':
            a(f"s_cmp_eq_u32 s{S_W}, 10")
            a("s_cbranch_scc0 L_tw_skip")
            a(f"v_mov_b32 v166, {LDS_XF}")
            self.wait_xflags([160, 161, 162, 163], int(tw[0][2:]), 166, 167)
            self.srd(SRD_B, S_W1, 512 * 3584)
            a("s_bfe_u32 s46, s2, 0x30003")
            a(f"s_mul_i32 s46, s46, {64*3584}")
            a(f"s_lshl_b32 s47, s{S_J}, 8")
            a("s_add_u32 s46, s46, s47")
            a("v_lshrrev_b32 v12, 1, v0")
            a("v_mul_u32_u24 v12, 3584, v12")
            a("v_and_b32 v13, 1, v0")
            a("v_lshl_add_u32 v12, v13, 7, v12")
            for i in range(2):
                a(f"buffer_load_dword v{164+i}, v12, s[{SRD_B}:{SRD_B+3}], s46 offen")
                a(f"s_add_u32 s46, s46, {32*3584}")
            a.label("L_tw_skip")
        a(f"s_cmp_lg_u32 s{S_W}, 11")
        a("s_cbranch_scc1 L_ffn_b8")
        self.stats_setup(2)
        for kc in range(8):
            self.stats_chunk(kc, 2)
        self.stats_final(2)
        a.label("L_ffn_b8")
        a("s_barrier")
        a(f"s_cmp_ge_u32 s{S_J}, 14")
        a("s_cbranch_scc1 L_ffn_skip")
        for sl in range(6):
            self.w_dma(sl, self.S_RING)
        a("v_and_b32 v10, 31, v0")
        a(f"v_lshlrev_b32 v10, 2, v10")
        a(f"v_add_u32 v10, {LDS_SCR}, v10")
        for tb in range(4):
            a(f"ds_read_b32 v{152+2*tb}, v10 offset:{tb*128}")
            a(f"ds_read_b32 v{153+2*tb}, v10 offset:{512+tb*128}")
        self.read_nonce(40)
        a("s_waitcnt vmcnt(6) lgkmcnt(0)")
        a(f"v_readfirstlane_b32 s{S_NONCE}, v40")
        for b in range(4):
            a(f"v_lshlrev_b32 v{128+4*b}, 16, v{144+2*b}")
            a(f"v_and_b32 v{129+4*b}, 0xffff0000, v{144+2*b}")
            a(f"v_lshlrev_b32 v{130+4*b}, 16, v{145+2*b}")
            a(f"v_and_b32 v{131+4*b}, 0xffff0000, v{145+2*b}")
        a("s_barrier")
        if 'nos2prio' not in self.dbg: a("s_setprio 3")
        for sl in range(6, 8):
            self.w_dma(sl, self.S_RING)
        self.stamp(4)
        a("s_waitcnt vmcnt(7)")
        self.gemm_first_frags()
        self.gemm_loop(False, False, "ffn")
        self.stamp(5)
        a("s_barrier")
        ep = [d for d in self.dbg if d.startswith('ep')]
        if 'nogprio' not in self.dbg: a(f"s_setprio {int(ep[0][2:]) if ep else 2}")
        a("s_nop 7")
        self.cs16_from_cs4()
        for tb in range(4):
            a(f"v_mov_b32 v{32+2*tb}, v{152+2*tb}")
            a(f"v_mov_b32 v{33+2*tb}, v{153+2*tb}")
        a(f"s_mul_i32 s48, s{S_TG}, {4*112*1024}")
        a("s_lshl_b32 s49, s51, 11")
        a("s_add_u32 s48, s48, s49")
        a(f"s_add_u32 s48, s48, {WS_H}")
        a("v_lshlrev_b32 v10, 4, v0")
        a("s_waitcnt lgkmcnt(0)")
        if 'dumpf' in self.dbg:
            a("s_lshl_b32 s92, s2, 2")
            a(f"s_add_u32 s92, s92, s50")
            a("s_mul_i32 s92, s92, 16384")
            a(f"s_add_u32 s92, s92, {20<<20}")
            a("v_lshlrev_b32 v12, 2, v0")
            regs = list(range(16,32)) + list(range(32,40)) + list(range(128,144)) + list(range(64,80))
            for n, r in enumerate(regs):
                a(f"buffer_store_dword v{r}, v12, s[{SRD_WS}:{SRD_WS+3}], s92 offen offset:{(n%16)*256}")
                if n % 16 == 15: a("s_add_u32 s92, s92, 4096")
        self.tok_epilogue_store(ffn=True)
        if self.stop != "s2": a("s_barrier")
        a(f"s_lshl_b32 s48, s{S_TG}, 8")
        a("s_lshl_b32 s49, s51, 2")
        a("s_add_u32 s48, s48, s49")
        a(f"s_add_u32 s48, s48, {FL2}")
        self.publish_flag(48, 12)
        self.stamp(6)
        a("s_branch L_s3_gemm")
        a.label("L_ffn_skip")
        self.read_nonce(40)
        a("s_waitcnt vmcnt(0) lgkmcnt(0)")
        a(f"v_readfirstlane_b32 s{S_NONCE}, v40")
        a("s_barrier")
        if self.stop != "s2":
            for _ in range(3): a("s_sleep 16")
            a("s_barrier")
        a("s_barrier")
        if self.stop != "s2":
            a("s_barrier")
        a("s_branch L_s3_gemm")

    def attn_ids(self):
        a = self.a
        a(f"s_and_b32 s{S_HEAD}, s2, 7")
        a("s_lshr_b32 s47, s2, 6")
        a("s_lshl_b32 s47, s47, 3")
        a(f"s_or_b32 s{S_HEAD}, s{S_HEAD}, s47")
        a(f"s_bfe_u32 s{S_QB}, s2, 0x30003")
        a(f"s_and_b32 s{S_T}, s2, 7")
        a(f"s_lshl_b32 s{S_T}, s{S_T}, 2")
        a("s_bfe_u32 s47, s2, 0x20003")
        a(f"s_add_u32 s{S_T}, s{S_T}, s47")
        a(f"s_lshr_b32 s{S_C}, s2, 5")

    def poll_flags(self, s_off, n, vt=2, sleep=2):
        a = self.a
        Lp, Ld = self.lab("pf"), self.lab("pfd")
        a(f"v_lshlrev_b32 v{vt}, 2, v0")
        a(f"v_cmp_gt_u32 vcc, {n}, v0")
        a("s_mov_b32 s58, 0")
        a("s_mov_b64 s[62:63], vcc")
        a.label(Lp)
        a(f"buffer_load_dword v{vt+1}, v{vt}, s[{SRD_WS}:{SRD_WS+3}], s{s_off} offen sc1")
        a("s_add_u32 s58, s58, 1")
        a("s_waitcnt vmcnt(0)")
        a(f"v_cmp_eq_u32 vcc, s{S_NONCE}, v{vt+1}")
        a("s_nop 1")
        a("s_and_b64 vcc, vcc, s[62:63]")
        a("s_cmp_eq_u64 vcc, s[62:63]")
        a(f"s_cbranch_scc1 {Ld}")
        a("s_cmp_ge_u32 s58, 0x4000")
        a(f"s_cbranch_scc1 {Ld}")
        a(f"s_sleep {sleep}")
        a(f"s_branch {Lp}")
        a.label(Ld)

    def clear_o(self):
        a = self.a
        L = self.lab("co")
        a(f"s_cmp_lg_u32 s{S_W}, 9")
        a(f"s_cbranch_scc1 {L}")
        a(f"s_lshl_b32 s46, s{S_QB}, 8")
        a(f"s_add_u32 s46, s46, s{S_HEAD}")
        a("s_lshl_b32 s46, s46, 10")
        a(f"s_add_u32 s46, s46, {WS_O}")
        for r in range(4): a(f"v_mov_b32 v{152+r}, -1")
        a("v_lshlrev_b32 v156, 4, v0")
        for i in range(8):
            a(f"buffer_store_dwordx4 v[152:155], v156, s[{SRD_WS}:{SRD_WS+3}], s46 offen sc1")
            a(f"s_add_u32 s46, s46, {32*1024}")
        a(f"s_lshl_b32 s48, s{S_QB}, 8")
        a(f"s_lshl_b32 s49, s{S_HEAD}, 2")
        a("s_add_u32 s48, s48, s49")
        a(f"s_add_u32 s48, s48, {FL3}")
        self.publish_flag(48, 157)
        a.label(L)

    def s2_idle(self):
        a = self.a
        a.label("L_s2_idle")
        if self.stop == "s2":
            a("s_barrier")
            a("s_branch L_fin")

    QA, QB, KA, KB, VA, VB = 4, 8, 12, 16, 20, 28
    SA, SB, PA, PB, OA, OB = 40, 56, 72, 80, 88, 104
    VK, VKN, VV0, VV1, VV0N, VV1N, VWA = 120, 121, 122, 123, 124, 125, 126
    TP = 2064
    LDS_W2 = 64 * 2064
    LDS_SYNC = 64 * 2064 + 4 * 6144
    S_NXT = 42

    def stg(self, i):
        return 128 + 8 * (i % 5)

    def mf32(self, d, x, y, c):
        self.a(f"v_mfma_f32_32x32x16_bf16 {vr(d,16)}, {vr(x,4)}, {vr(y,4)}, {c if c == 0 else vr(c,16)}")

    def attn_phase(self, S, P, m1, m2, m3, x1=None, x3=None):
        a = self.a
        E = lambda k: a(f"v_exp_f32 v{S+k}, v{S+k}")
        C = lambda k: a(f"v_cvt_pk_bf16_f32 v{P+k}, v{S+2*k}, v{S+2*k+1}")
        if 'noqk' not in self.dbg: self.mf32(*m1)
        if x1: x1()
        if 'noexp' in self.dbg: E = lambda k: a(f"v_mov_b32 v{S+k}, v{S+k}")
        E(0); E(1); E(2); E(3); C(0); E(4); E(5); C(1)
        if 'nopv' not in self.dbg: self.mf32(*m2)
        E(6); E(7); C(2); E(8); E(9); C(3); E(10); E(11)
        if 'nopv' not in self.dbg: self.mf32(*m3)
        if x3: x3()
        C(4); E(12); E(13); C(5); E(14); E(15); C(6); C(7)

    def attn_tile(self, i, first_group):
        a = self.a
        ev = (i & 1) == 0
        Kc, Kn = (self.KA, self.KB) if ev else (self.KB, self.KA)
        Vc, Vp = (self.VA, self.VB) if ev else (self.VB, self.VA)
        nxt = i == 7
        off = 0 if nxt else (i + 1) * self.TP
        rk, r0, r1 = (self.VKN, self.VV0N, self.VV1N) if nxt else (self.VK, self.VV0, self.VV1)
        def x1():
            if first_group and i <= 6:
                st = self.stg(i + 1)
                a(f"s_waitcnt vmcnt({[4, 4, 4, 4, 4, 2, 0][i]})")
                if 'kvdma' not in self.dbg:
                    a(f"ds_write_b128 v{self.VWA}, {vr(st,4)} offset:{(i+1)*self.TP}")
                    a(f"ds_write_b128 v{self.VWA}, {vr(st+4,4)} offset:{(i+1)*self.TP+1024}")
                if i + 4 <= 7: self.kv_load(i + 4, self.stg(i + 4))
            a(f"ds_read_b128 {vr(Kn,4)}, v{rk} offset:{off}")
        def x3():
            a(f"ds_read_b128 {vr(Vp,4)}, v{r0} offset:{off}")
            a(f"ds_read_b128 {vr(Vp+4,4)}, v{r1} offset:{off}")
        if first_group:
            a("s_waitcnt lgkmcnt(0)")
            if i == 7: a("s_barrier")
        else:
            a("s_waitcnt lgkmcnt(0)")
        self.attn_phase(self.SA, self.PA, (self.SB, Kc, self.QB, 0), (self.OB, Vp, self.PB, self.OB),
                        (self.OB, Vp + 4, self.PB + 4, self.OB), x1, x3)
        a("s_waitcnt lgkmcnt(2)")
        self.attn_phase(self.SB, self.PB, (self.SA, Kn, self.QA, 0), (self.OA, Vc, self.PA, self.OA),
                        (self.OA, Vc + 4, self.PA + 4, self.OA))

    def kv_load(self, i, st):
        a = self.a
        if 'kvdma' not in self.dbg:
            a(f"buffer_load_dwordx4 {vr(st,4)}, v1, s[{SRD_WS}:{SRD_WS+3}], s44 offen offset:{(i&3)*1024} sc1")
            a(f"buffer_load_dwordx4 {vr(st+4,4)}, v1, s[{SRD_WS}:{SRD_WS+3}], s45 offen offset:{(i&3)*1024} sc1")
            return
        a(f"s_add_u32 m0, s56, {i*self.TP}")
        a(f"s_add_u32 s48, s44, {(i&3)*1024}")
        a(f"buffer_load_dwordx4 v1, s[{SRD_WS}:{SRD_WS+3}], s48 offen sc1 lds")
        a(f"s_add_u32 m0, s56, {i*self.TP+1024}")
        a(f"s_add_u32 s48, s45, {(i&3)*1024}")
        a(f"buffer_load_dwordx4 v1, s[{SRD_WS}:{SRD_WS+3}], s48 offen sc1 lds")

    def group_advance(self):
        a = self.a
        G = 8 * self.TP
        a(f"v_mov_b32 v{self.VK}, v{self.VKN}")
        a(f"v_mov_b32 v{self.VV0}, v{self.VV0N}")
        a(f"v_mov_b32 v{self.VV1}, v{self.VV1N}")
        a(f"s_add_u32 s{self.S_NXT}, s{self.S_NXT}, {G}")
        a(f"s_cmp_eq_u32 s{self.S_NXT}, s59")
        a(f"s_cselect_b32 s46, {4*G}, 0")
        a(f"s_sub_u32 s{self.S_NXT}, s{self.S_NXT}, s46")
        a(f"v_add_u32 v{self.VKN}, s{self.S_NXT}, v1")
        a(f"v_add_u32 v{self.VV0N}, s{self.S_NXT}, v2")
        a(f"v_add_u32 v{self.VV1N}, s{self.S_NXT}, v3")

    def lds_spin(self, vaddr, n, vdst, want):
        a = self.a
        Lp, Ld = self.lab("sp"), self.lab("spd")
        a("s_mov_b32 s58, 0")
        a.label(Lp)
        a(f"ds_read_b{32*n} {vr(vdst,n)}, v{vaddr}")
        a("s_add_u32 s58, s58, 1")
        a("s_waitcnt lgkmcnt(0)")
        if n == 4:
            a(f"v_min3_u32 v{vdst}, v{vdst}, v{vdst+1}, v{vdst+2}")
            a(f"v_min_u32 v{vdst}, v{vdst}, v{vdst+3}")
        a("s_nop 0")
        a(f"v_readfirstlane_b32 s57, v{vdst}")
        a("s_cmp_ge_u32 s58, 0x100000")
        a(f"s_cbranch_scc1 {Ld}")
        a(f"s_cmp_lt_u32 s57, {want}")
        a(f"s_cbranch_scc1 {Lp}")
        a.label(Ld)

    def role_attn(self):
        a = self.a
        G = 8 * self.TP
        a.label("L_s3_attn")
        self.attn_ids()
        a("v_lshlrev_b32 v1, 4, v0")
        a(f"s_lshl_b32 s43, s{S_HEAD}, 16")
        a(f"s_lshl_b32 s47, s{S_W}, 13")
        a("s_add_u32 s44, s43, s47")
        a(f"s_add_u32 s45, s44, {WS_V}")
        a(f"s_add_u32 s44, s44, {WS_K}")
        a(f"s_lshl_b32 s46, s{S_QB}, 13")
        a("s_add_u32 s43, s43, s46")
        a(f"s_and_b32 s47, s{S_W}, 3")
        a("s_lshl_b32 s47, s47, 11")
        a("s_add_u32 s43, s43, s47")
        a(f"s_mul_i32 s46, s{S_W}, {G}")
        a("s_mov_b32 s56, s46")
        a(f"v_add_u32 v{self.VWA}, s46, v1")
        a(f"v_mov_b32 v{self.VK}, v{self.VWA}")
        a("v_lshrrev_b32 v2, 5, v0")
        a("v_lshlrev_b32 v2, 8, v2")
        a("v_and_b32 v3, 15, v0")
        a("v_lshl_add_u32 v2, v3, 4, v2")
        a("v_add_u32 v3, 1536, v2")
        a("v_add_u32 v2, 1024, v2")
        a("v_and_b32 v36, 31, v0")
        a("v_cmp_lt_u32 vcc, 15, v36")
        a("v_cmp_eq_u32 s[50:51], 16, v36")
        a(f"v_mov_b32 v37, {LDS_DROP if 'allones' not in self.dbg else 2048}")
        a("v_mov_b32 v38, 2048")
        a("s_nop 0")
        a("v_cndmask_b32 v37, v37, v38, s[50:51]")
        a("s_nop 0")
        a("v_cndmask_b32 v2, v2, v37, vcc")
        a("v_cndmask_b32 v3, v3, v37, vcc")
        a(f"v_add_u32 v{self.VV0}, s46, v2")
        a(f"v_add_u32 v{self.VV1}, s46, v3")
        a(f"s_lshr_b32 s47, s{S_W}, 2")
        a(f"s_mul_i32 s47, s47, {4*G}")
        a(f"s_add_u32 s59, s47, {4*G}")
        a(f"s_add_u32 s{self.S_NXT}, s46, {G}")
        a(f"s_cmp_eq_u32 s{self.S_NXT}, s59")
        a(f"s_cselect_b32 s47, {4*G}, 0")
        a(f"s_sub_u32 s{self.S_NXT}, s{self.S_NXT}, s47")
        a(f"v_add_u32 v{self.VKN}, s{self.S_NXT}, v1")
        a(f"v_add_u32 v{self.VV0N}, s{self.S_NXT}, v2")
        a(f"v_add_u32 v{self.VV1N}, s{self.S_NXT}, v3")
        a(f"v_mul_u32_u24 v36, {self.TP}, v0")
        a("v_add_u32 v36, s46, v36")
        for r in range(4): a(f"v_mov_b32 v{40+r}, s{S_ONES}")
        a("v_lshlrev_b32 v37, 2, v0")
        a(f"v_add_u32 v37, {self.LDS_SYNC}, v37")
        a("v_mov_b32 v38, 0")
        for r in range(32):
            a(f"v_mov_b32 v{self.OA+r}, 0")
        for r in range(8):
            a(f"v_mov_b32 v{self.PB+r}, 0")
            a(f"v_mov_b32 v{self.VB+r}, 0")
        a("v_lshrrev_b32 v127, 3, v0")
        a(f"s_lshl_b32 s48, s{S_W}, 3")
        a("v_add_u32 v127, s48, v127")
        a("v_lshlrev_b32 v127, 10, v127")
        a("v_and_b32 v39, 7, v0")
        a("v_lshl_add_u32 v127, v39, 4, v127")
        a(f"s_lshl_b32 s61, s{S_T}, 16")
        a(f"s_lshl_b32 s48, s{S_C}, 7")
        a("s_add_u32 s61, s61, s48")
        a(f"s_lshl_b32 s60, s{S_QB}, 3")
        a(f"s_and_b32 s48, s{S_W}, 3")
        a("s_lshl_b32 s48, s48, 1")
        a("s_add_u32 s60, s60, s48")
        a(f"s_lshr_b32 s48, s{S_W}, 2")
        a("s_add_u32 s60, s60, s48")
        a("s_lshl_b32 s60, s60, 5")
        a(f"s_add_u32 s60, s60, s{S_HEAD}")
        a("s_lshl_b32 s60, s60, 10")
        a(f"s_add_u32 s60, s60, {WS_O}")
        a("s_barrier")
        a(f"s_cmp_lg_u32 s{S_W}, 3")
        a("s_cbranch_scc1 L_at_np")
        a(f"s_lshr_b32 s47, s{S_HEAD}, 1")
        a("s_lshl_b32 s47, s47, 8")
        a(f"s_add_u32 s47, s47, {FL1}")
        ps = [d for d in self.dbg if d.startswith('ps')]
        pd = [d for d in self.dbg if d.startswith('pd')]
        if pd:
            for _ in range(int(pd[0][2:])): a("s_sleep 16")
        self.poll_flags(47, 48, vt=44, sleep=int(ps[0][2:]) if ps else 2)
        self.stamp(4)
        a.label("L_at_np")
        a("s_barrier")
        a(f"buffer_load_dwordx4 {vr(self.QA,4)}, v1, s[{SRD_WS}:{SRD_WS+3}], s43 offen sc1")
        a(f"buffer_load_dwordx4 {vr(self.QB,4)}, v1, s[{SRD_WS}:{SRD_WS+3}], s43 offen offset:1024 sc1")
        self.kv_load(0, self.stg(0))
        self.stamp(7)
        self.cstamp(0)
        if 'dlyB' in self.dbg: a("s_sleep 127")
        a("s_setprio 2")
        a("s_mov_b64 exec, 0xff")
        a(f"ds_write_b128 v36, v[40:43] offset:2048")
        a("s_mov_b64 exec, -1")
        a(f"s_cmp_lg_u32 s{S_W}, 0")
        a("s_cbranch_scc1 L_at_nz")
        a("s_mov_b64 exec, 0xffff")
        a("ds_write_b32 v37, v38")
        a("s_mov_b64 exec, -1")
        a.label("L_at_nz")
        for i in range(1, 3):
            self.kv_load(i, self.stg(i))
        a("s_waitcnt vmcnt(4)")
        self.stamp(8)
        st = self.stg(0)
        if 'kvdma' not in self.dbg:
            a(f"ds_write_b128 v{self.VWA}, {vr(st,4)}")
            a(f"ds_write_b128 v{self.VWA}, {vr(st+4,4)} offset:1024")
        self.kv_load(3, self.stg(3))
        a("s_add_u32 s44, s44, 4096")
        a("s_add_u32 s45, s45, 4096")
        a(f"ds_read_b128 {vr(self.KA,4)}, v{self.VK}")
        a(f"ds_read_b128 {vr(self.VA,4)}, v{self.VV0}")
        a(f"ds_read_b128 {vr(self.VA+4,4)}, v{self.VV1}")
        a("s_waitcnt lgkmcnt(0)")
        self.mf32(self.SA, self.KA, self.QA, 0)
        a("s_nop 7")
        a("s_nop 3")
        for i in range(8):
            if 'g0det' in self.dbg: self.stamp(i)
            if 'nog0prio' not in self.dbg and i in (3, 5):
                a(f"s_setprio {1 if i == 3 else 0}")
            self.attn_tile(i, True)
        if 'nog0prio' not in self.dbg: a("s_setprio 2")
        self.group_advance()
        self.stamp(9)
        self.srd(SRD_A, S_X, 2048 * 1024)
        a(f"buffer_load_dwordx4 v[160:163], v127, s[{SRD_A}:{SRD_A+3}], s61 offen")
        self.srd(SRD_B, S_B2, 1024)
        a("v_and_b32 v36, 7, v0")
        a("v_lshlrev_b32 v36, 4, v36")
        a(f"s_lshl_b32 s48, s{S_C}, 7")
        a(f"buffer_load_dwordx4 v[164:167], v36, s[{SRD_B}:{SRD_B+3}], s48 offen")
        a("s_mov_b32 s43, 0")
        a.label("L_attn_loop")
        if 'noaprio' not in self.dbg:
            a("s_cmp_eq_u32 s43, 1")
            a("s_cbranch_scc0 L_ap1")
            a("s_setprio 1")
            a.label("L_ap1")
            a("s_cmp_eq_u32 s43, 2")
            a("s_cbranch_scc0 L_ap2")
            a("s_setprio 0")
            a.label("L_ap2")
        for i in range(8):
            self.attn_tile(i, False)
        self.group_advance()
        a("s_add_u32 s43, s43, 1")
        a("s_cmp_lt_u32 s43, 3")
        a("s_cbranch_scc1 L_attn_loop")
        self.mf32(self.OB, self.VB, self.PB, self.OB)
        self.mf32(self.OB, self.VB + 4, self.PB + 4, self.OB)
        self.stamp(10)
        self.cstamp(1)
        a(f"s_lshr_b32 s47, s{S_W}, 2")
        a(f"v_mov_b32 v36, {self.LDS_SYNC}")
        self.lds_spin(36, 4, 40, 1)
        a("s_nop 7")
        a("s_cmp_eq_u32 s47, 0")
        a("s_cbranch_scc1 L_at_ns")
        for r in range(9): a(f"v_swap_b32 v{self.OA+r}, v{self.OB+r}")
        for r in range(4): a(f"v_swap_b32 v{self.QA+r}, v{self.QB+r}")
        a.label("L_at_ns")
        XP = 9 * 256
        a(f"s_mul_i32 s46, s{S_W}, {XP}")
        a(f"s_add_u32 s46, s46, {self.LDS_W2}")
        a("v_add_u32 v36, s46, v1")
        a("v_lshlrev_b32 v37, 2, v0")
        a("v_add_u32 v37, s46, v37")
        a(f"ds_write_b128 v36, {vr(self.OB,4)}")
        a(f"ds_write_b128 v36, {vr(self.OB+4,4)} offset:1024")
        a(f"ds_write_b32 v37, v{self.OB+8} offset:2048")
        a(f"s_lshl_b32 s48, s{S_W}, 2")
        a(f"s_add_u32 s48, s48, {self.LDS_SYNC+16}")
        a("v_mov_b32 v38, s48")
        a("v_mov_b32 v39, 1")
        a("s_waitcnt lgkmcnt(0)")
        a("ds_write_b32 v38, v39")
        a(f"s_xor_b32 s48, s{S_W}, 4")
        a("s_lshl_b32 s46, s48, 2")
        a(f"s_add_u32 s46, s46, {self.LDS_SYNC+16}")
        a("v_mov_b32 v38, s46")
        self.lds_spin(38, 1, 40, 1)
        a(f"s_mul_i32 s46, s48, {XP}")
        a(f"s_add_u32 s46, s46, {self.LDS_W2}")
        a("v_add_u32 v36, s46, v1")
        a("v_lshlrev_b32 v37, 2, v0")
        a("v_add_u32 v37, s46, v37")
        a("ds_read_b128 v[40:43], v36")
        a("ds_read_b128 v[44:47], v36 offset:1024")
        a("ds_read_b32 v48, v37 offset:2048")
        a("s_waitcnt lgkmcnt(0)")
        O = self.OA
        for r in range(9):
            a(f"v_add_f32 v{O+r}, v{O+r}, v{40+r}")
        self.bcast_l()
        a(f"v_mul_f32 v36, 0, v{O}")
        for r in range(1, 8):
            a(f"v_fma_f32 v36, v{O+r}, 0, v36")
        a(f"s_mov_b32 s46, {f2u(2.0**-64):#x}")
        a(f"s_mov_b32 s48, {f2u(2.0**64):#x}")
        a(f"v_cmp_le_f32 s[50:51], s46, v{O+8}")
        a(f"v_cmp_ge_f32 s[52:53], s48, v{O+8}")
        a("v_cmp_eq_f32 vcc, 0, v36")
        a("s_nop 1")
        a("s_and_b64 s[50:51], s[50:51], s[52:53]")
        a("s_and_b64 vcc, vcc, s[50:51]")
        if 'slow' in self.dbg:
            a("s_mov_b64 vcc, 0")
        a("s_cmp_eq_u64 vcc, -1")
        a("s_cbranch_scc0 L_attn_slow")
        a.label("L_attn_norm")
        self.bcast_l()
        a(f"v_rcp_f32 v36, v{O+8}")
        a("s_nop 0")
        for r in range(8):
            a(f"v_mul_f32 v{O+r}, v{O+r}, v36")
        for p in range(4):
            a(f"v_cvt_pk_bf16_f32 v{self.PA+p}, v{O+2*p}, v{O+2*p+1}")
        a(f"v_cmp_eq_u32 vcc, -1, v{self.PA}")
        a("v_mov_b32 v36, 0x7fc07fc0")
        a("s_nop 0")
        a(f"v_cndmask_b32 v{self.PA}, v{self.PA}, v36, vcc")
        a(f"buffer_store_dwordx4 {vr(self.PA,4)}, v1, s[{SRD_WS}:{SRD_WS+3}], s60 offen sc1")
        a("s_branch L_tail_attn")

    def bcast_l(self):
        a = self.a
        a("s_nop 1")
        a(f"v_mov_b32 v37, v{self.OA+8}")
        a("s_nop 1")
        a(f"v_permlane32_swap_b32 v{self.OA+8}, v37")
        a("s_nop 1")

    def attn_slow(self):
        a = self.a
        O, S, P = self.OA, self.SA, self.PA
        a.label("L_attn_slow")
        for r in range(16):
            a(f"v_mov_b32 v{O+r}, 0")
        a(f"v_mov_b32 v136, {f2u(-3.0e38):#x}")
        a("v_mov_b32 v137, v1")
        a("v_mov_b32 v138, v2")
        a("v_mov_b32 v141, v3")
        a("s_mov_b32 s43, 0")
        a.label("L_slow_loop")
        a(f"ds_read_b128 {vr(self.KA,4)}, v137")
        a(f"ds_read_b128 {vr(self.VA,4)}, v138")
        a(f"ds_read_b128 {vr(self.VA+4,4)}, v141")
        a("s_waitcnt lgkmcnt(0)")
        self.mf32(S, self.KA, self.QA, 0)
        a(f"v_add_u32 v137, {self.TP}, v137")
        a(f"v_add_u32 v138, {self.TP}, v138")
        a(f"v_add_u32 v141, {self.TP}, v141")
        a("s_nop 7")
        a("s_nop 7")
        a(f"v_max3_f32 v139, v{S}, v{S+1}, v{S+2}")
        for r in range(3, 15, 2):
            a(f"v_max3_f32 v139, v139, v{S+r}, v{S+r+1}")
        a(f"v_max_f32 v139, v139, v{S+15}")
        a("s_nop 0")
        a("v_mov_b32 v140, v139")
        a("s_nop 1")
        a("v_permlane32_swap_b32 v139, v140")
        a("s_nop 1")
        a("v_max3_f32 v139, v139, v140, v136")
        a("v_sub_f32 v140, v136, v139")
        a("v_exp_f32 v140, v140")
        a("v_mov_b32 v136, v139")
        for r in range(16):
            a(f"v_sub_f32 v{S+r}, v{S+r}, v139")
        for r in range(16):
            a(f"v_exp_f32 v{S+r}, v{S+r}")
        for r in range(9):
            a(f"v_mul_f32 v{O+r}, v{O+r}, v140")
        for p in range(8):
            a(f"v_cvt_pk_bf16_f32 v{P+p}, v{S+2*p}, v{S+2*p+1}")
        a("s_nop 1")
        self.mf32(O, self.VA, P, O)
        self.mf32(O, self.VA + 4, P + 4, O)
        a("s_add_u32 s43, s43, 1")
        a("s_nop 7")
        a("s_nop 7")
        a("s_cmp_lt_u32 s43, 64")
        a("s_cbranch_scc1 L_slow_loop")
        a("s_branch L_attn_norm")

    def role_down(self):
        a = self.a
        a.label("L_s3_gemm")
        if self.stop == "s2":
            a("s_branch L_fin")
        if 'nogprio' not in self.dbg: a("s_setprio 3")
        self.attn_ids()
        a(f"s_sub_u32 s50, s{S_W}, 8")
        self.clear_o()
        self.srd(SRD_A, S_W2, 1792 * 1024)
        ACC, HST, WF = 64, 16, 48
        a("v_lshrrev_b32 v4, 2, v0")
        a("v_lshlrev_b32 v4, 10, v4")
        a("v_and_b32 v5, 3, v0")
        a("v_lshl_add_u32 v4, v5, 4, v4")
        a("s_mul_i32 s44, s50, 6144")
        a(f"s_add_u32 s44, s44, {self.LDS_W2}")
        a("v_lshrrev_b32 v6, 5, v0")
        a("v_bfe_u32 v7, v0, 2, 2")
        a("v_lshl_add_u32 v7, v6, 2, v7")
        a("v_lshlrev_b32 v7, 6, v7")
        a("v_bfe_u32 v8, v0, 4, 1")
        a("v_lshl_add_u32 v7, v8, 5, v7")
        a("v_and_b32 v8, 3, v0")
        a("v_lshl_add_u32 v7, v8, 3, v7")
        a("v_add_u32 v7, s44, v7")
        a("v_lshlrev_b32 v1, 4, v0")
        a("s_mul_i32 s45, s50, 28")
        a("s_lshl_b32 s46, s45, 14")
        a(f"s_lshl_b32 s47, s{S_C}, 7")
        a("s_add_u32 s46, s46, s47")
        a(f"s_mul_i32 s47, s{S_T}, {2*112*1024}")
        a("s_lshl_b32 s48, s45, 10")
        a("s_add_u32 s47, s47, s48")
        a(f"s_add_u32 s47, s47, {WS_H}")
        a(f"s_add_u32 s48, s47, {112*1024}")
        for r in range(64):
            a(f"v_mov_b32 v{ACC+r}, 0")
        def w2dma(slot):
            for cb in range(2):
                a(f"s_add_u32 m0, s44, {slot*2048 + cb*1024}")
                a(f"s_add_u32 s49, s46, {cb*64}")
                a(f"buffer_load_dwordx4 v4, s[{SRD_A}:{SRD_A+3}], s49 offen lds")
            a("s_add_u32 s46, s46, 16384")
        def hload(slot):
            a(f"buffer_load_dwordx4 {vr(HST+8*slot,4)}, v1, s[{SRD_WS}:{SRD_WS+3}], s47 offen sc1")
            a(f"buffer_load_dwordx4 {vr(HST+8*slot+4,4)}, v1, s[{SRD_WS}:{SRD_WS+3}], s48 offen sc1")
            a("s_add_u32 s47, s47, 1024")
            a("s_add_u32 s48, s48, 1024")
        a(f"s_lshr_b32 s51, s{S_T}, 1")
        a("s_lshl_b32 s51, s51, 8")
        a("s_mul_i32 s52, s50, 56")
        a("s_add_u32 s51, s51, s52")
        a(f"s_add_u32 s51, s51, {FL2}")
        if 'nodown' in self.dbg:
            a(f"s_lshl_b32 s48, s50, 2")
            a(f"s_add_u32 s48, s48, {self.LDS_SYNC}")
            a("v_mov_b32 v2, s48")
            a("v_mov_b32 v3, 1")
            a("ds_write_b32 v2, v3")
            a("s_branch L_tail_gemm")
        self.poll_flags(51, 14)
        self.stamp(7)

        for sl in range(3):
            w2dma(sl); hload(sl)
        if 'glow' in self.dbg: a("s_setprio 0")
        def kstep(sl, vm, pre):
            a(f"s_waitcnt vmcnt({vm})")
            for cb in range(2):
                a(f"ds_read_b64_tr_b16 {vr(WF+4*cb,2)}, v7 offset:{sl*2048+cb*1024}")
                a(f"ds_read_b64_tr_b16 {vr(WF+4*cb+2,2)}, v7 offset:{sl*2048+cb*1024+512}")
            a("s_waitcnt lgkmcnt(0)")
            for tb in range(2):
                for cb in range(2):
                    acc = ACC + 16 * (2 * tb + cb)
                    a(f"v_mfma_f32_32x32x16_bf16 {vr(acc,16)}, {vr(WF+4*cb,4)}, {vr(HST+8*sl+4*tb,4)}, {vr(acc,16)}")
                    if 'nogspace' not in self.dbg:
                        a("s_sleep 2" if ('gmix' in self.dbg and cb == 1 and tb == 0) else "s_sleep 1")
            if pre:
                w2dma(sl); hload(sl)
        a("s_mov_b32 s43, 0")
        a.label("L_down_loop")
        for sl in range(3): kstep(sl, 8, True)
        a("s_add_u32 s43, s43, 1")
        a("s_cmp_lt_u32 s43, 8")
        a("s_cbranch_scc1 L_down_loop")
        kstep(0, 8, True)
        kstep(1, 8, False)
        kstep(2, 4, False)
        kstep(0, 0, False)
        self.srd(SRD_A, S_WO, 512 * 1024)
        a("v_lshrrev_b32 v4, 3, v0")
        a("v_lshlrev_b32 v4, 10, v4")
        a("v_and_b32 v5, 7, v0")
        a("v_lshl_add_u32 v4, v5, 4, v4")
        a("s_lshl_b32 s46, s50, 17")
        a(f"s_lshl_b32 s47, s{S_C}, 7")
        a("s_add_u32 s46, s46, s47")
        for i in range(16):
            a(f"buffer_load_dwordx4 {vr(self.wo_reg(i),4)}, v4, s[{SRD_A}:{SRD_A+3}], s46 offen")
            a("s_add_u32 s46, s46, 8192")
        a(f"s_lshl_b32 s48, s50, 2")
        a(f"s_add_u32 s48, s48, {self.LDS_SYNC}")
        a("v_mov_b32 v2, s48")
        a("v_mov_b32 v3, 1")
        a("ds_write_b32 v2, v3")
        self.stamp(8)
        a("s_branch L_tail_gemm")

    PPITCH, PPART, PBASE = 272, 64 * 272, 4 * 64 * 272

    def wo_reg(self, i):
        return 16 + 4 * i if i < 8 else 128 + 4 * (i - 8)

    def part_write(self, acc_of, tbs, part_sreg):
        a = self.a
        for tb in tbs:
            for cb in range(2):
                acc = acc_of(tb, cb)
                for b in range(4):
                    a(f"ds_write_b128 v9, {vr(acc+4*b,4)} offset:{tb*32*self.PPITCH + (32*cb+8*b)*4}")

    def tail(self):
        a = self.a
        a.label("L_tail_gemm")
        a(f"s_cmp_lg_u32 s{S_W}, 8")
        a("s_cbranch_scc1 L_tail_g1")
        a(f"s_lshr_b32 s51, s{S_T}, 2")
        a("s_lshl_b32 s51, s51, 8")
        a(f"s_add_u32 s51, s51, {FL3}")
        self.poll_flags(51, 32, vt=2)
        self.stamp(9)
        a.label("L_tail_g1")
        a("v_bfe_u32 v6, v0, 2, 1")
        a("v_lshlrev_b32 v6, 10, v6")
        a("v_lshrrev_b32 v7, 3, v0")
        a("v_lshl_add_u32 v6, v7, 6, v6")
        a("v_and_b32 v7, 3, v0")
        a("v_lshl_add_u32 v6, v7, 4, v6")
        a("s_lshl_b32 s44, s50, 14")
        a("v_add_u32 v6, s44, v6")
        a("v_and_b32 v9, 31, v0")
        a(f"v_mul_u32_u24 v9, {self.PPITCH}, v9")
        a("v_lshrrev_b32 v10, 5, v0")
        a("v_lshl_add_u32 v9, v10, 4, v9")
        a(f"s_mul_i32 s44, s50, {self.PPART}")
        a(f"s_add_u32 s44, s44, {self.PBASE}")
        a("v_add_u32 v9, s44, v9")
        a("s_waitcnt vmcnt(0)")
        a("s_barrier")
        for i in range(16):
            a(f"ds_write_b128 v6, {vr(self.wo_reg(i),4)} offset:{(i>>1)*2048 + (i&1)*512}")
        a("s_lshl_b32 s46, s50, 2")
        a(f"s_add_u32 s46, s46, {self.LDS_SYNC + 48}")
        a("v_mov_b32 v2, s46")
        a("v_mov_b32 v3, 1")
        a("s_waitcnt lgkmcnt(0)")
        a("ds_write_b32 v2, v3")
        self.part_write(lambda tb, cb: 64 + 16 * (2 * tb + cb), (0, 1), None)
        a("s_waitcnt lgkmcnt(0)")
        a("s_barrier")
        a("s_barrier")
        a("s_branch L_fin")
        a.label("L_tail_attn")
        a(f"s_and_b32 s44, s{S_W}, 1")
        a(f"s_lshr_b32 s45, s{S_W}, 1")
        a(f"s_lshl_b32 s52, s{S_T}, 1")
        a("s_add_u32 s52, s52, s44")
        a("s_lshl_b32 s52, s52, 15")
        a("s_lshl_b32 s48, s45, 13")
        a("s_add_u32 s52, s52, s48")
        a(f"s_add_u32 s52, s52, {WS_O}")
        a("s_add_u32 s53, s52, 4096")
        OF, ACC = 96, 64
        a("v_mov_b32 v8, v127")
        def oload(k):
            a(f"buffer_load_dwordx4 {vr(OF+4*k,4)}, v1, s[{SRD_WS}:{SRD_WS+3}], s{52+(k>>2)} offen offset:{(k&3)*1024} sc1")
        a("s_barrier")
        self.stamp(11)
        for k in range(8): oload(k)
        a("v_lshrrev_b32 v5, 3, v0")
        a(f"s_lshl_b32 s46, s{S_W}, 3")
        a("v_add_u32 v5, s46, v5")
        a("v_and_b32 v6, 7, v0")
        a(f"v_mul_u32_u24 v10, {self.PPITCH}, v5")
        a("v_lshl_add_u32 v10, v6, 5, v10")
        a(f"v_add_u32 v11, {self.PBASE}, v10")
        a("v_lshrrev_b32 v6, 5, v0")
        a("v_bfe_u32 v7, v0, 2, 2")
        a("v_lshl_add_u32 v7, v6, 2, v7")
        a("v_lshlrev_b32 v7, 6, v7")
        a("v_bfe_u32 v9, v0, 4, 1")
        a("v_lshl_add_u32 v7, v9, 5, v7")
        a("v_and_b32 v9, 3, v0")
        a("v_lshl_add_u32 v7, v9, 3, v7")
        a("s_lshl_b32 s48, s45, 14")
        a("v_add_u32 v7, s48, v7")
        a("v_and_b32 v9, 31, v0")
        a(f"v_mul_u32_u24 v9, {self.PPITCH}, v9")
        a("v_lshl_add_u32 v9, v6, 4, v9")
        a(f"s_mul_i32 s48, s45, {self.PPART}")
        a(f"s_mul_i32 s49, s44, {32*self.PPITCH}")
        a("s_add_u32 s48, s48, s49")
        a("v_add_u32 v9, s48, v9")
        for r in range(32):
            a(f"v_mov_b32 v{ACC+r}, 0")
        a(f"v_mov_b32 v12, {self.LDS_SYNC + 48}")
        self.lds_spin(12, 4, 16, 1)
        if 'taildet' in self.dbg: self.stamp(1)
        wreg = lambda k: (128 + 8 * k) if k < 4 else (32 + 8 * (k - 4))
        for k0 in (0, 3, 6):
            for k in range(k0, min(k0 + 3, 8)):
                for cb in range(2):
                    a(f"ds_read_b64_tr_b16 {vr(wreg(k)+4*cb,2)}, v7 offset:{k*2048+cb*1024}")
                    a(f"ds_read_b64_tr_b16 {vr(wreg(k)+4*cb+2,2)}, v7 offset:{k*2048+cb*1024+512}")
            a("s_waitcnt lgkmcnt(0)")
        Lchk, Lok, Lrnd = self.lab("ochk"), self.lab("ook"), self.lab("ornd")
        def check_pass(brk):
            for k in range(8):
                Ln, Lr = self.lab("on"), self.lab("or")
                a(f"s_bitcmp1_b32 s55, {k}")
                a(f"s_cbranch_scc0 {Ln}")
                a(f"v_cmp_eq_u32 vcc, -1, v{OF+4*k}")
                a("s_nop 1")
                a("s_cmp_eq_u64 vcc, 0")
                a(f"s_cbranch_scc0 {Lr}")
                for cb in range(2):
                    a(f"v_mfma_f32_32x32x16_bf16 {vr(ACC+16*cb,16)}, {vr(wreg(k)+4*cb,4)}, {vr(OF+4*k,4)}, {vr(ACC+16*cb,16)}")
                a(f"s_bitset0_b32 s55, {k}")
                a(f"s_branch {Ln}")
                a.label(Lr)
                oload(k)
                if 'inorder' in self.dbg: a(f"s_branch {brk}")
                a.label(Ln)
        if 'taildet' in self.dbg: self.stamp(2)
        a("s_mov_b32 s58, 0")
        a("s_mov_b32 s55, 0xff")
        a("s_waitcnt vmcnt(0)")
        Lp1 = self.lab("p1")
        check_pass(Lp1)
        a.label(Lp1)
        if 'taildet' in self.dbg: self.stamp(3)
        a("s_barrier")
        for half in range(2):
            for pp in range(2):
                a(f"ds_read_b128 v[12:15], v11 offset:{(2*pp)*self.PPART + 16*half}")
                a(f"ds_read_b128 v[16:19], v11 offset:{(2*pp+1)*self.PPART + 16*half}")
                a("s_waitcnt lgkmcnt(0)")
                for e in range(4):
                    if pp == 0: a(f"v_add_f32 v{20+4*half+e}, v{12+e}, v{16+e}")
                    else:
                        a(f"v_add_f32 v{12+e}, v{12+e}, v{16+e}")
                        a(f"v_add_f32 v{20+4*half+e}, v{20+4*half+e}, v{12+e}")
        for e in range(4):
            a(f"v_lshlrev_b32 v28, 16, v{164+e}")
            a(f"v_and_b32 v29, 0xffff0000, v{164+e}")
            a(f"v_add_f32 v{20+2*e}, v{20+2*e}, v28")
            a(f"v_add_f32 v{21+2*e}, v{21+2*e}, v29")
        if 'taildet' in self.dbg: self.stamp(4)
        a.label(Lchk)
        a("s_cmp_eq_u32 s55, 0")
        a(f"s_cbranch_scc1 {Lok}")
        a("s_add_u32 s58, s58, 1")
        a("s_cmp_ge_u32 s58, 0x4000")
        a(f"s_cbranch_scc1 {Lok}")
        a("s_waitcnt vmcnt(0)")
        check_pass(Lchk)
        a(f"s_branch {Lchk}")
        a.label(Lok)
        if 'loopdet' not in self.dbg: self.stamp(5)
        if self.stamps: a("s_mov_b32 s64, s58")
        for e in range(8):
            a(f"v_mul_f32 v{12+e}, {f2u(-math.log2(math.e)):#x}, v{20+e}")
        for e in range(8):
            a(f"v_exp_f32 v{12+e}, v{12+e}")
        self.part_write(lambda tb, cb: ACC + 16 * cb, (0,), None)
        for e in range(8):
            a(f"v_add_f32 v{12+e}, 1.0, v{12+e}")
        for e in range(8):
            a(f"v_rcp_f32 v{12+e}, v{12+e}")
        self.srd(SRD_B, S_OUT, 2048 * 1024)
        for e in range(8):
            a(f"v_mul_f32 v{20+e}, v{20+e}, v{12+e}")
        a("s_waitcnt lgkmcnt(0)")
        a("s_barrier")
        if 'loopdet' not in self.dbg: self.stamp(6)
        for p in range(4):
            a(f"ds_read_b128 {vr(32+8*p,4)}, v10 offset:{p*self.PPART}")
            a(f"ds_read_b128 {vr(36+8*p,4)}, v10 offset:{p*self.PPART+16}")
        a("s_waitcnt lgkmcnt(0)")
        for e in range(8):
            a(f"v_add_f32 v{32+e}, v{32+e}, v{40+e}")
            a(f"v_add_f32 v{48+e}, v{48+e}, v{56+e}")
        for e in range(8):
            a(f"v_add_f32 v{96+e}, v{32+e}, v{48+e}")
        for e in range(4):
            a(f"v_lshlrev_b32 v28, 16, v{160+e}")
            a(f"v_and_b32 v29, 0xffff0000, v{160+e}")
            a(f"v_fma_f32 v{96+2*e}, v{96+2*e}, v{20+2*e}, v28")
            a(f"v_fma_f32 v{97+2*e}, v{97+2*e}, v{21+2*e}, v29")
        for e in range(4):
            a(f"v_cvt_pk_bf16_f32 v{104+e}, v{96+2*e}, v{97+2*e}")
        if 'dlyC' in self.dbg: a("s_sleep 127")
        sc = "" if 'outplain' in self.dbg else " sc1"
        a(f"buffer_store_dwordx4 v[104:107], v8, s[{SRD_B}:{SRD_B+3}], s61 offen{sc}")

    def build(self):
        a = self.a
        self.entry()
        if 'oldorder' in self.dbg:
            self.role_qkv()
            self.role_v()
            self.role_x()
        else:
            self.role_x()
            self.role_qkv()
            self.role_v()
        self.role_w3()
        self.role_ffn()
        self.role_down()
        self.attn_slow()
        self.s2_idle()
        self.role_attn()
        self.tail()
        a.label("L_fin")
        if 'hdbg' in self.dbg:
            a("s_memrealtime s[90:91]")
            a("s_memtime s[84:85]")
            a("s_waitcnt lgkmcnt(0)")
            a(f"s_cmp_lg_u32 s{S_W}, 0")
            a("s_cbranch_scc1 L_hd_skip")
            self.srd(SRD_B, S_DBG, 256)
            a("s_not_b32 s92, s88")
            a("v_mov_b32 v2, s92")
            a("v_mov_b32 v3, s90")
            a("s_sub_u32 s92, s90, s88")
            a("v_mov_b32 v4, s92")
            a("s_sub_u32 s93, s84, s86")
            a("v_mov_b32 v5, s93")
            a("v_mov_b32 v6, 0")
            a("s_mov_b64 exec, 1")
            a(f"buffer_atomic_umax v2, v6, s[{SRD_B}:{SRD_B+3}], 0 offen offset:8")
            a(f"buffer_atomic_umax v3, v6, s[{SRD_B}:{SRD_B+3}], 0 offen offset:12")
            a(f"buffer_atomic_umax v4, v6, s[{SRD_B}:{SRD_B+3}], 0 offen offset:16")
            a(f"buffer_atomic_umax v5, v6, s[{SRD_B}:{SRD_B+3}], 0 offen offset:20")
            a("s_mov_b64 exec, -1")
            a.label("L_hd_skip")
        self.dump_stamps()
        a.label("L_end")
        a("s_endpgm")
        a.label("L_code_end")
        a(".fill 256, 4, 0xbf800000")
        return a

HEADER = """; Kernarg layout (88 bytes): A_x, A_wqkv, A_wo, B_x, B_w1, B_b1, B_w2, B_b2, d_out, d_debug, d_ws
; @launch grid=(256,1,1) block=(768,1,1) lds=163840
.amdgcn_target "amdgcn-amd-amdhsa--gfx950"
.text
.globl {kn}
.p2align 8
.type {kn},@function
{kn}:
"""
FOOTER = """.section .rodata,"a"
.p2align 6
.amdhsa_kernel {kn}
  .amdhsa_next_free_vgpr 168
  .amdhsa_next_free_sgpr 102
  .amdhsa_accum_offset 168
  .amdhsa_group_segment_fixed_size 0
  .amdhsa_kernarg_size 88
  .amdhsa_user_sgpr_count 2
  .amdhsa_user_sgpr_kernarg_segment_ptr 1
  .amdhsa_system_sgpr_workgroup_id_x 1
.end_amdhsa_kernel
"""
def emit(path, **kw):
    g = Gen(**kw)
    a = g.build()
    check_hazards(a.lines)
    open(path, "w").write(HEADER.format(kn=KN) + a.text() + FOOTER.format(kn=KN))

if __name__ == "__main__":
    out = sys.argv[1] if len(sys.argv) > 1 else "k.s"
    dbg = [x[6:] for x in sys.argv if x.startswith("--dbg=")]
    stop = [x[7:] for x in sys.argv if x.startswith("--stop=")]
    emit(out, stamps=("--stamps" in sys.argv), dbg=dbg[0] if dbg else "", stop_after=stop[0] if stop else "all")
```

```python
import sys, math
from asmlib import Asm, vr, sr, check_hazards

NAME = "recurrent_scan__mha_block__dense_activation_squared_relu__prompt"
KN = NAME + "_kernel"

WS_Q, WS_K, WS_V = 0, 2 << 20, 4 << 20
WS_H = 6 << 20
WS_O = 14 << 20
WS_F = 16 << 20
WS_DBG = WS_F + (64 << 10)
WS_SIZE = WS_DBG + (256 << 10)
if 'dumpf' in ' '.join(sys.argv): WS_SIZE = 32 << 20
FL1, FL2, FL3 = WS_F, WS_F + 4096, WS_F + 8192

LDS_RING = 131072
LDS_SCR = LDS_RING + 3 * 8192 + 7 * 1024
LDS_NONCE = LDS_RING + 3 * 8192 + 6 * 1024
LDS_XF = LDS_NONCE + 16
LDS_DROP = 0x30000

QSCALE = 0.25 * math.log2(math.e)

def f2u(x):
    import struct
    return struct.unpack("<I", struct.pack("<f", x))[0]

S_W = 3
S_X, S_WQKV, S_WO, S_W1, S_B1, S_W2, S_B2, S_OUT, S_DBG, S_WS = 4, 6, 8, 12, 14, 16, 18, 20, 22, 24
S_TG, S_J = 26, 27
SRD_WS, SRD_A, SRD_B = 28, 32, 36
S_NONCE = 40
S_ONES = 41
S_HEAD, S_QB, S_T, S_C = 96, 97, 98, 99

class Gen:
    def __init__(self, stop_after="all", stamps=False, dbg=""):
        self.dbg = dbg.split(",")
        self.a = Asm()
        self.stop = stop_after
        self.stamps = stamps
        self.uid = 0
    def lab(self, p):
        self.uid += 1
        return f"L_{p}_{self.uid}"

    def srd(self, dst, ptr, size):
        a = self.a
        a(f"s_mov_b32 s{dst}, s{ptr}")
        a(f"s_and_b32 s{dst+1}, s{ptr+1}, 0xffff")
        a(f"s_mov_b32 s{dst+2}, {size}")
        a(f"s_mov_b32 s{dst+3}, 0x20000")

    def stamp(self, slot):
        if not self.stamps: return
        a = self.a
        a("s_memtime s[90:91]" if 'cyc' in self.dbg and slot not in (14,) else "s_memrealtime s[90:91]")
        a("s_waitcnt lgkmcnt(0)")
        a(f"s_mov_b32 s{64+slot}, s90")

    def cstamp(self, slot):
        if not self.stamps or 'phclk' not in self.dbg: return
        a = self.a
        a("s_memtime s[90:91]")
        a("s_waitcnt lgkmcnt(0)")
        a(f"s_mov_b32 s{64+slot}, s90")

    def dump_stamps(self):
        if not self.stamps: return
        a = self.a
        a("s_lshl_b32 s92, s2, 4")
        a(f"s_add_u32 s92, s92, s{S_W}")
        a("s_lshl_b32 s92, s92, 6")
        a(f"s_add_u32 s92, s92, {WS_DBG}")
        a("v_mov_b32 v1, 0")
        a("s_memtime s[84:85]")
        self.stamp(14)
        a("s_mov_b32 s79, s88")
        a("s_getreg_b32 s76, hwreg(HW_REG_HW_ID)")
        a("s_sub_u32 s77, s84, s86")
        for i in range(16):
            a(f"v_mov_b32 v2, s{64+i}")
            a(f"buffer_store_dword v2, v1, s[{SRD_WS}:{SRD_WS+3}], s92 offen offset:{4*i}")
            a("s_nop 1")

    def entry(self):
        a = self.a
        if self.stamps or 'hdbg' in self.dbg:
            a("s_memrealtime s[88:89]")
            a("s_memtime s[86:87]")
        a(f"s_cmp_ge_u32 s2, 256")
        a(f"s_cbranch_scc1 L_end")
        if 'dlyA' in self.dbg: a("s_sleep 127")
        a("s_load_dwordx16 s[4:19], s[0:1], 0")
        a("s_load_dwordx4 s[20:23], s[0:1], 64")
        a("s_load_dwordx2 s[24:25], s[0:1], 80")
        a("v_lshrrev_b32 v1, 6, v0")
        a("v_and_b32 v0, 63, v0")
        if 'map48' in self.dbg:
            a("s_and_b32 s26, s2, 3")
            a(f"v_readfirstlane_b32 s{S_W}, v1")
            a("s_lshl_b32 s26, s26, 2")
            a("s_bfe_u32 s42, s2, 0x20003")
            a(f"s_add_u32 s{S_TG}, s26, s42")
            a("s_bfe_u32 s27, s2, 0x10002")
            a("s_lshl_b32 s27, s27, 3")
            a("s_lshr_b32 s42, s2, 5")
            a(f"s_add_u32 s{S_J}, s27, s42")
        else:
            a("s_and_b32 s26, s2, 1")
            a(f"v_readfirstlane_b32 s{S_W}, v1")
            a("s_lshl_b32 s26, s26, 3")
            a("s_bfe_u32 s42, s2, 0x30003")
            a(f"s_add_u32 s{S_TG}, s26, s42")
            a("s_bfe_u32 s27, s2, 0x20001")
            if 'swap' in self.dbg:
                a("s_lshr_b32 s42, s27, 1")
                a("s_xor_b32 s27, s27, s42")
            a("s_lshl_b32 s27, s27, 2")
            a("s_lshr_b32 s42, s2, 6")
            a(f"s_add_u32 s{S_J}, s27, s42")
        a(f"s_mov_b32 s{S_ONES}, 0x3f803f80")
        if self.stamps:
            for i in range(16): a(f"s_mov_b32 s{64+i}, 0")
        if 'oldorder' in self.dbg:
            a(f"s_cmp_ge_u32 s{S_W}, 8")
            a("s_cbranch_scc1 L_role_ffn")
            a(f"s_cmp_ge_u32 s{S_W}, 4")
            a("s_cbranch_scc1 L_role_x")
            a(f"s_cmp_eq_u32 s{S_W}, 3")
            a("s_cbranch_scc1 L_role_w3")
        else:
            a(f"s_cmp_lt_u32 s{S_W}, 3")
            a("s_cbranch_scc1 L_role_qkv")
            a(f"s_cmp_ge_u32 s{S_W}, 8")
            a("s_cbranch_scc1 L_role_ffn")
            a(f"s_cmp_eq_u32 s{S_W}, 3")
            a("s_cbranch_scc1 L_role_w3")

    ACC = 64
    XA, XB = 16, 32
    WA, WB = 48, 52
    CS = 56
    VXA = 4
    VWR = 8
    VWG = 9
    S_WOFF, S_WSTR, S_RING, S_RINGD, S_CNT = 42, 43, 44, 45, 46

    def gemm_setup_addrs(self):
        a = self.a
        a("v_and_b32 v10, 31, v0")
        a("v_lshrrev_b32 v11, 5, v0")
        a("v_bfe_u32 v12, v0, 1, 3")
        a("v_xor_b32 v12, v11, v12")
        a("v_lshlrev_b32 v12, 4, v12")
        a(f"v_lshl_or_b32 v{self.VXA}, v10, 7, v12")
        for m in range(1, 4):
            a(f"v_xor_b32 v{self.VXA+m}, {32*m}, v{self.VXA}")
        a("v_bfe_u32 v12, v0, 2, 2")
        a("v_lshl_add_u32 v12, v11, 3, v12")
        a("v_lshlrev_b32 v12, 6, v12")
        a("v_bfe_u32 v13, v0, 4, 1")
        a("v_lshl_add_u32 v12, v13, 5, v12")
        a("v_and_b32 v13, 3, v0")
        a(f"v_lshl_add_u32 v{self.VWR}, v13, 3, v12")
        a(f"v_add_u32 v{self.VWR}, s{self.S_RING}, v{self.VWR}")

    def gemm_wg_voffset(self, pitch):
        a = self.a
        a("v_lshrrev_b32 v12, 2, v0")
        a(f"s_mov_b32 s47, {pitch}")
        a("v_mul_lo_u32 v12, v12, s47")
        a("v_and_b32 v13, 3, v0")
        a(f"v_lshl_add_u32 v{self.VWG}, v13, 4, v12")

    def w_dma(self, slot, ring_reg):
        a = self.a
        a(f"s_add_u32 m0, s{ring_reg}, {slot*1024}")
        a(f"s_add_u32 s{self.S_WOFF}, s{self.S_WOFF}, s{self.S_WSTR}")
        a(f"buffer_load_dwordx4 v{self.VWG}, s[{SRD_A}:{SRD_A+3}], s{self.S_WOFF} offen lds")

    def frag_reads(self, ksn, X, W, base_ks):
        a = self.a
        rel = ksn - base_ks
        slot = ksn & 7
        m = ksn & 3
        kc = rel >> 2 if base_ks % 8 == 0 else None
        return rel, slot, m, kc

    VF = 144
    S_NEED = 56

    def xflag_check(self, L):
        a = self.a
        a(f"v_readfirstlane_b32 s57, v149")
        return L

    S1D = 10

    def gemm_s1(self, swapped):
        a = self.a
        D = self.S1D
        for ks in range(32):
            X, W = (self.XA, self.WA) if ks % 2 == 0 else (self.XB, self.WB)
            Xn, Wn = (self.XB, self.WB) if ks % 2 == 0 else (self.XA, self.WA)
            def mf(tb):
                acc = self.ACC + 16 * tb
                if swapped:
                    a(f"v_mfma_f32_32x32x16_bf16 {vr(acc,16)}, {vr(X+4*tb,4)}, {vr(W,4)}, {vr(acc,16)}")
                else:
                    a(f"v_mfma_f32_32x32x16_bf16 {vr(acc,16)}, {vr(W,4)}, {vr(X+4*tb,4)}, {vr(acc,16)}")
            n = ks + 1
            chk = (ks & 3) == 3 and n < 32
            a("s_waitcnt lgkmcnt(0)")
            mf(0)
            if chk:
                a(f"v_min3_u32 v149, v{self.VF}, v{self.VF+1}, v{self.VF+2}")
                a(f"v_min_u32 v149, v149, v{self.VF+3}")
            if ks + D < 32:
                self.w_dma(ks % D, self.S_RING)
            elif chk: a("s_nop 0")
            if chk: a("v_readfirstlane_b32 s57, v149")
            if n < 32:
                a(f"s_waitcnt vmcnt({min(D - 1, 31 - n) if ks + D < 32 else 31 - n})")
                a(f"ds_read_b64_tr_b16 {vr(Wn,2)}, v{self.VWR} offset:{(n % D)*1024}")
                a(f"ds_read_b64_tr_b16 {vr(Wn+2,2)}, v{self.VWR} offset:{(n % D)*1024+256}")
            if chk:
                need = (n >> 2) + 1
                Lok, Lsp = self.lab("xok"), self.lab("xsp")
                a(f"s_cmp_ge_u32 s57, {need}")
                a(f"s_cbranch_scc1 {Lok}")
                a("s_mov_b32 s58, 0")
                a.label(Lsp)
                a(f"ds_read_b128 {vr(self.VF,4)}, v148")
                a("s_add_u32 s58, s58, 1")
                a("s_waitcnt lgkmcnt(0)")
                a(f"v_min3_u32 v149, v{self.VF}, v{self.VF+1}, v{self.VF+2}")
                a(f"v_min_u32 v149, v149, v{self.VF+3}")
                a("s_nop 0")
                a("v_readfirstlane_b32 s57, v149")
                a("s_cmp_ge_u32 s58, 0x100000")
                a(f"s_cbranch_scc1 {Lok}")
                a(f"s_cmp_lt_u32 s57, {need}")
                a(f"s_cbranch_scc1 {Lsp}")
                a.label(Lok)
            mf(1)
            if n < 32:
                if n == 16:
                    for m in range(4): a(f"v_add_u32 v{self.VXA+m}, 0x10000, v{self.VXA+m}")
                for tb in range(4):
                    a(f"ds_read_b128 {vr(Xn+4*tb,4)}, v{self.VXA+(n&3)} offset:{((n>>2)&3)*16384 + tb*4096}")
                if (ks & 3) == 2 and n + 1 < 32:
                    a(f"ds_read_b128 {vr(self.VF,4)}, v148")
            mf(2)
            a(f"v_mfma_f32_16x16x32_bf16 {vr(self.CS4,4)}, {vr(W,4)}, {vr(self.PAR,4)}, {vr(self.CS4,4)}")
            mf(3)

    def gemm_loop(self, swapped, s1, tag):
        a = self.a
        L = self.lab("gl_" + tag)
        a(f"s_mov_b32 s{self.S_CNT}, 0")
        a(f"s_mov_b32 s{self.S_RINGD}, s{self.S_RING}")
        if s1: a(f"s_mov_b32 s{self.S_NEED}, 1")
        a.label(L)
        if 'loopdet' in self.dbg:
            a("s_memtime s[90:91]")
            a("s_waitcnt lgkmcnt(0)")
            for t in range(4):
                a(f"s_cmp_eq_u32 s{self.S_CNT}, {t}")
                sl = (0 if not s1 else 4) + t
                a(f"s_cselect_b32 s{64+sl}, s90, s{64+sl}")
        a(f"s_cmp_eq_u32 s{self.S_CNT}, 3")
        a(f"s_cselect_b32 s{self.S_RINGD}, {LDS_DROP}, s{self.S_RINGD}")
        if not s1 and self.stop != "s2":
            L0 = self.lab("x0")
            a(f"s_cbranch_scc0 {L0}")
            a("s_barrier")
            a.label(L0)
        for i in range(8):
            X, W = (self.XA, self.WA) if i % 2 == 0 else (self.XB, self.WB)
            Xn, Wn = (self.XB, self.WB) if i % 2 == 0 else (self.XA, self.WA)
            def mf(tb):
                acc = self.ACC + 16 * tb
                if swapped:
                    a(f"v_mfma_f32_32x32x16_bf16 {vr(acc,16)}, {vr(X+4*tb,4)}, {vr(W,4)}, {vr(acc,16)}")
                else:
                    a(f"v_mfma_f32_32x32x16_bf16 {vr(acc,16)}, {vr(W,4)}, {vr(X+4*tb,4)}, {vr(acc,16)}")
            chk = s1 and (i & 3) == 3
            a("s_waitcnt lgkmcnt(0)")
            mf(0)
            if chk:
                a(f"v_min3_u32 v149, v{self.VF}, v{self.VF+1}, v{self.VF+2}")
                a(f"s_add_u32 s{self.S_NEED}, s{self.S_NEED}, 1")
                a(f"v_min_u32 v149, v149, v{self.VF+3}")
                a(f"s_min_u32 s{self.S_NEED}, s{self.S_NEED}, 8")
            self.w_dma(i, self.S_RINGD)
            if chk: a("v_readfirstlane_b32 s57, v149")
            a("s_waitcnt vmcnt(7)")
            nslot = (i + 1) & 7
            a(f"ds_read_b64_tr_b16 {vr(Wn,2)}, v{self.VWR} offset:{nslot*1024}")
            a(f"ds_read_b64_tr_b16 {vr(Wn+2,2)}, v{self.VWR} offset:{nslot*1024+256}")
            if chk:
                Lok, Lsp = self.lab("xok"), self.lab("xsp")
                a(f"s_cmp_ge_u32 s57, s{self.S_NEED}")
                a(f"s_cbranch_scc1 {Lok}")
                a("s_mov_b32 s58, 0")
                a.label(Lsp)
                a(f"ds_read_b128 {vr(self.VF,4)}, v148")
                a("s_add_u32 s58, s58, 1")
                a("s_waitcnt lgkmcnt(0)")
                a(f"v_min3_u32 v149, v{self.VF}, v{self.VF+1}, v{self.VF+2}")
                a(f"v_min_u32 v149, v149, v{self.VF+3}")
                a("s_nop 0")
                a("v_readfirstlane_b32 s57, v149")
                a("s_cmp_ge_u32 s58, 0x100000")
                a(f"s_cbranch_scc1 {Lok}")
                a(f"s_cmp_lt_u32 s57, s{self.S_NEED}")
                a(f"s_cbranch_scc1 {Lsp}")
                a.label(Lok)
            mf(1)
            n = i + 1
            for tb in range(4):
                a(f"ds_read_b128 {vr(Xn+4*tb,4)}, v{self.VXA+(n&3)} offset:{(n>>2)*16384 + tb*4096}")
            if s1 and (i & 3) == 2:
                a(f"ds_read_b128 {vr(self.VF,4)}, v148")
            mf(2)
            if 'nocs' not in self.dbg:
                a(f"v_mfma_f32_16x16x32_bf16 {vr(self.CS4,4)}, {vr(W,4)}, {vr(self.PAR,4)}, {vr(self.CS4,4)}")
            mf(3)
        for m in range(4):
            a(f"v_add_u32 v{self.VXA+m}, 0x8000, v{self.VXA+m}")
        a(f"s_add_u32 s{self.S_CNT}, s{self.S_CNT}, 1")
        a(f"s_cmp_lt_u32 s{self.S_CNT}, 4")
        a(f"s_cbranch_scc1 {L}")

    def wait_xflags(self, regs, need, vaddr, vt):
        a = self.a
        Lsp, Lok = self.lab("wsp"), self.lab("wok")
        a("s_mov_b32 s58, 0")
        a.label(Lsp)
        n = len(regs)
        a(f"ds_read_b{32*n} {vr(regs[0], n)}, v{vaddr}")
        a("s_add_u32 s58, s58, 1")
        a("s_waitcnt lgkmcnt(0)")
        if n == 4:
            a(f"v_min3_u32 v{vt}, v{regs[0]}, v{regs[1]}, v{regs[2]}")
            a(f"v_min_u32 v{vt}, v{vt}, v{regs[3]}")
        else:
            a(f"v_min_u32 v{vt}, v{regs[0]}, v{regs[1]}")
        a("s_nop 0")
        a(f"v_readfirstlane_b32 s57, v{vt}")
        a("s_cmp_ge_u32 s58, 0x100000")
        a(f"s_cbranch_scc1 {Lok}")
        a(f"s_cmp_lt_u32 s57, {need}")
        a(f"s_cbranch_scc1 {Lsp}")
        a.label(Lok)

    CS4 = 56
    PAR = 60

    def cs_acc(self, W, q0, q1):
        a = self.a
        for q in range(q0, q1):
            t = 58 + 2 * (q & 1)
            a(f"v_lshlrev_b32 v{t}, 16, v{W+q}")
            a(f"v_and_b32 v{t+1}, 0xffff0000, v{W+q}")
            a(f"v_add_f32 v{self.CS}, v{t}, v{self.CS}")
            a(f"v_add_f32 v{self.CS+1}, v{t+1}, v{self.CS+1}")

    def gemm_first_frags(self):
        a = self.a
        a(f"ds_read_b64_tr_b16 {vr(self.WA,2)}, v{self.VWR} offset:0")
        a(f"ds_read_b64_tr_b16 {vr(self.WA+2,2)}, v{self.VWR} offset:256")
        for tb in range(4):
            a(f"ds_read_b128 {vr(self.XA+4*tb,4)}, v{self.VXA} offset:{tb*4096}")

    def zero_acc(self):
        a = self.a
        for i in range(64):
            a(f"v_mov_b32 v{self.ACC+i}, 0")

    def cs16_from_cs4(self):
        a = self.a
        a("v_lshrrev_b32 v11, 5, v0")
        a("v_lshlrev_b32 v11, 6, v11")
        a("s_waitcnt lgkmcnt(0)")
        for r in range(16):
            b, jj = r >> 2, r & 3
            a(f"ds_bpermute_b32 v{16+r}, v11, v{self.CS4+jj} offset:{128*(b&1)+4*(b>>1)}")

    def cs_total(self):
        a = self.a
        a(f"v_add_f32 v{self.CS}, v{self.CS}, v{self.CS+1}")
        a("s_nop 0")
        a(f"v_mov_b32 v{self.CS+1}, v{self.CS}")
        a("s_nop 1")
        a(f"v_permlane32_swap_b32 v{self.CS}, v{self.CS+1}")
        a("s_nop 1")
        a(f"v_add_f32 v{self.CS}, v{self.CS}, v{self.CS+1}")

    def read_nonce(self, vtmp):
        a = self.a
        a(f"v_mov_b32 v{vtmp}, {LDS_NONCE}")
        a(f"ds_read_b32 v{vtmp}, v{vtmp}")

    def publish_flag(self, s_off, vtmp):
        a = self.a
        a("s_waitcnt vmcnt(0)")
        a(f"v_mov_b32 v{vtmp}, s{S_NONCE}")
        a(f"v_mov_b32 v{vtmp+1}, 0")
        a("s_mov_b64 exec, 1")
        a(f"buffer_store_dword v{vtmp}, v{vtmp+1}, s[{SRD_WS}:{SRD_WS+3}], s{s_off} offen sc1")
        a("s_mov_b64 exec, -1")

    def tok_stats_read(self):
        a = self.a
        a("v_and_b32 v10, 31, v0")
        a(f"v_lshlrev_b32 v10, 2, v10")
        a(f"v_add_u32 v10, {LDS_SCR}, v10")
        for tb in range(4):
            a(f"ds_read_b32 v{32+2*tb}, v10 offset:{tb*128}")
            a(f"ds_read_b32 v{33+2*tb}, v10 offset:{512+tb*128}")
        self.read_nonce(40)
        a("v_lshrrev_b32 v11, 5, v0")
        a("v_lshlrev_b32 v11, 4, v11")
        for r in range(16):
            a(f"ds_bpermute_b32 v{16+r}, v11, v{self.CS} offset:{(8*(r>>2)+(r&3))*4}")

    def role_qkv(self):
        a = self.a
        a.label("L_role_qkv")
        if 's1unr' not in self.dbg: a(f"s_lshl_b32 s{self.S_RING}, s{S_W}, 13")
        else: a(f"s_mul_i32 s{self.S_RING}, s{S_W}, {self.S1D*1024}")
        a(f"s_add_u32 s{self.S_RING}, s{self.S_RING}, {LDS_RING}")
        a(f"s_mul_i32 s53, s{S_J}, 3")
        a(f"s_add_u32 s53, s53, s{S_W}")
        self.gemm_wg_voffset(3072)
        a(f"s_lshl_b32 s{self.S_WOFF}, s53, 6")
        a(f"s_mov_b32 s{self.S_WSTR}, {16*3072 if 'wq0' not in self.dbg else 0}")
        a(f"s_sub_u32 s{self.S_WOFF}, s{self.S_WOFF}, s{self.S_WSTR}")
        a("s_waitcnt lgkmcnt(0)")
        self.srd(SRD_A, S_WQKV, 512 * 3072)
        n0 = 8 if 'w8first' in self.dbg else 2
        for sl in range(n0):
            self.w_dma(sl, self.S_RING)
        if 'earlyb0' in self.dbg: a("s_barrier")
        a("s_lshr_b32 s54, s53, 4")
        a("s_and_b32 s55, s53, 15")
        self.srd(SRD_WS, S_WS, WS_SIZE)
        self.gemm_setup_addrs()
        self.zero_acc()
        nd = 8 if 's1unr' not in self.dbg else self.S1D
        for sl in range(n0, nd):
            self.w_dma(sl, self.S_RING)
        self.cs4_init()
        a(f"v_mov_b32 v148, {LDS_XF}")
        self.stamp(0)
        if 'earlyb0' not in self.dbg: a("s_barrier")
        self.wait_xflags([144, 145, 146, 147], 1, 148, 149)
        a(f"s_waitcnt vmcnt({nd - 1})")
        self.stamp(1)
        self.gemm_first_frags()
        a("s_cmp_eq_u32 s54, 2")
        a("s_cbranch_scc1 L_role_v")
        if 's1unr' not in self.dbg: self.gemm_loop(False, True, "qk")
        else: self.gemm_s1(False)
        self.stamp(2)
        a("s_barrier")
        a("v_and_b32 v10, 31, v0")
        a(f"v_lshlrev_b32 v10, 2, v10")
        a(f"v_add_u32 v10, {LDS_SCR}, v10")
        for tb in range(4):
            a(f"ds_read_b32 v{32+2*tb}, v10 offset:{tb*128}")
            a(f"ds_read_b32 v{33+2*tb}, v10 offset:{512+tb*128}")
        self.read_nonce(40)
        a("s_nop 3")
        self.cs16_from_cs4()
        a("s_waitcnt lgkmcnt(0)")
        a(f"v_readfirstlane_b32 s{S_NONCE}, v40")
        a("s_cmp_eq_u32 s54, 0")
        a(f"s_cselect_b32 s47, {f2u(QSCALE)}, 1.0")
        for tb in range(4):
            a(f"v_mul_f32 v{32+2*tb}, s47, v{32+2*tb}")
            a(f"v_mul_f32 v{33+2*tb}, s47, v{33+2*tb}")
        a("s_lshl_b32 s48, s54, 21")
        a("s_lshl_b32 s49, s55, 17")
        a("s_add_u32 s48, s48, s49")
        a(f"s_lshl_b32 s49, s{S_TG}, 12")
        a("s_add_u32 s48, s48, s49")
        a("v_lshlrev_b32 v10, 4, v0")
        self.tok_epilogue_store(ffn=False)
        a("s_barrier")
        a("s_lshl_b32 s48, s55, 8")
        a("s_lshl_b32 s49, s54, 6")
        a("s_add_u32 s48, s48, s49")
        a(f"s_lshl_b32 s49, s{S_TG}, 2")
        a("s_add_u32 s48, s48, s49")
        a(f"s_add_u32 s48, s48, {FL1}")
        self.publish_flag(48, 12)
        self.stamp(3)
        a("s_branch L_s2_idle")

    def tok_epilogue_store(self, ffn):
        a = self.a
        hb_stride = 1024 if ffn else 65536
        tb_stride = 112 * 1024 if ffn else 1024
        T = 44
        for tb in range(4):
            st = 32 + 2 * tb
            for hb in range(2):
                P = 48 + 4 * hb
                for p in range(4):
                    r = 8 * hb + 2 * p
                    acc = self.ACC + 16 * tb + r
                    w = T + 2 * (p & 1)
                    for e in range(2):
                        if ffn: a(f"v_fma_f32 v{w+e}, v{16+r+e}, v{st+1}, v{128+r+e}")
                        else:   a(f"v_mul_f32 v{w+e}, v{16+r+e}, v{st+1}")
                    for e in range(2):
                        a(f"v_fma_f32 v{acc+e}, v{acc+e}, v{st}, v{w+e}")
                    if ffn:
                        for e in range(2):
                            a(f"v_max_f32 v{w+e}, 0, v{acc+e}")
                        for e in range(2):
                            a(f"v_mul_f32 v{acc+e}, v{w+e}, v{w+e}")
                    a(f"v_cvt_pk_bf16_f32 v{P+p}, v{acc}, v{acc+1}")
                off = hb * hb_stride + tb * tb_stride
                a(f"s_add_u32 s49, s48, {off}")
                a(f"buffer_store_dwordx4 {vr(P,4)}, v10, s[{SRD_WS}:{SRD_WS+3}], s49 offen sc1")

    def role_v(self):
        a = self.a
        a.label("L_role_v")
        if 's1unr' not in self.dbg: self.gemm_loop(True, True, "v")
        else: self.gemm_s1(True)
        self.stamp(2)
        a("s_barrier")
        self.read_nonce(40)
        a("v_bfe_u32 v12, v0, 2, 2")
        a("v_bfe_u32 v13, v0, 4, 1")
        a("v_lshl_add_u32 v12, v12, 4, v13")
        a("v_lshlrev_b32 v12, 2, v12")
        a("s_nop 3")
        a("s_waitcnt lgkmcnt(0)")
        for jj in range(4):
            a(f"ds_bpermute_b32 v{16+jj}, v12, v{self.CS4+jj}")
        a("v_and_b32 v13, 3, v0")
        a("s_waitcnt lgkmcnt(0)")
        for jj in range(1, 4):
            a(f"v_cmp_eq_u32 vcc, {jj}, v13")
            a("s_nop 1")
            a(f"v_cndmask_b32 v16, v16, v{16+jj}, vcc")
        a(f"v_mov_b32 v{self.CS}, v16")
        a("v_lshrrev_b32 v11, 5, v0")
        a("v_lshlrev_b32 v11, 4, v11")
        a(f"v_add_u32 v11, {LDS_SCR}, v11")
        a("v_bfe_u32 v12, v0, 4, 1")
        a("v_lshlrev_b32 v12, 16, v12")
        a("v_lshrrev_b32 v13, 5, v0")
        a("v_lshl_add_u32 v12, v13, 8, v12")
        a("v_and_b32 v13, 15, v0")
        a("v_lshl_add_u32 v10, v13, 4, v12")
        a("s_lshl_b32 s48, s55, 17")
        a(f"s_lshl_b32 s49, s{S_TG}, 12")
        a("s_add_u32 s48, s48, s49")
        a(f"s_add_u32 s48, s48, {WS_V}")
        a("s_waitcnt lgkmcnt(0)")
        a(f"v_readfirstlane_b32 s{S_NONCE}, v40")
        for tb in range(4):
            for b in range(4):
                a(f"ds_read_b128 {vr(16+4*b,4)}, v11 offset:{(32*tb+8*b)*4}")
                a(f"ds_read_b128 {vr(32+4*b,4)}, v11 offset:{512+(32*tb+8*b)*4}")
            a("s_waitcnt lgkmcnt(0)")
            for t in range(2):
                P = 48 + 4 * t
                for p in range(4):
                    r = 8 * t + 2 * p
                    acc = self.ACC + 16 * tb + r
                    w = 58 + 2 * (p & 1)
                    for e in range(2):
                        a(f"v_mul_f32 v{w+e}, v{32+r+e}, v{self.CS}")
                    for e in range(2):
                        a(f"v_fma_f32 v{acc+e}, v{acc+e}, v{16+r+e}, v{w+e}")
                    a(f"v_cvt_pk_bf16_f32 v{P+p}, v{acc}, v{acc+1}")
                a(f"s_add_u32 s49, s48, {tb*1024 + t*512}")
                a(f"buffer_store_dwordx4 {vr(P,4)}, v10, s[{SRD_WS}:{SRD_WS+3}], s49 offen sc1")
        a("s_barrier")
        a("s_lshl_b32 s48, s55, 8")
        a(f"s_lshl_b32 s49, s{S_TG}, 2")
        a("s_add_u32 s48, s48, s49")
        a(f"s_add_u32 s48, s48, {FL1 + 128}")
        self.publish_flag(48, 12)
        self.stamp(3)
        a("s_branch L_s2_idle")

    def role_x(self):
        a = self.a
        a.label("L_role_x")
        a("v_lshrrev_b32 v1, 3, v0")
        a("v_lshrrev_b32 v2, 4, v0")
        a("v_and_b32 v3, 7, v0")
        a("v_xor_b32 v3, v2, v3")
        a("v_lshlrev_b32 v3, 4, v3")
        a("v_lshl_or_b32 v2, v1, 10, v3")
        a("v_xor_b32 v3, 64, v2")
        a(f"s_sub_u32 s42, s{S_W}, 4")
        a(f"s_lshl_b32 s43, s{S_TG}, 17")
        a("s_lshl_b32 s44, s42, 15")
        a("s_add_u32 s43, s43, s44")
        a("s_lshl_b32 s44, s42, 12")
        a("s_waitcnt lgkmcnt(0)")
        self.srd(SRD_A, S_X, 2048 * 1024)
        D = self.XLOOK
        def chunk(kc):
            for rg in range(4):
                a(f"s_add_u32 m0, s44, {kc*16384 + rg*1024}")
                a(f"s_add_u32 s45, s43, {rg*8192 + kc*128}")
                a(f"buffer_load_dwordx4 v{2+(rg&1)}, s[{SRD_A}:{SRD_A+3}], s45 offen lds")
        ramp = 'noramp' not in self.dbg and 'nox' not in self.dbg
        R = [d for d in self.dbg if d.startswith('rp')]
        sched = {'rpA': ([0, 1], [[2, 3], [4, 5], [6], [7], [], [], [], []]),
                 'rpB': ([0, 1], [[2, 3, 4], [5, 6], [7], [], [], [], [], []]),
                 'rpC': ([0, 1, 2], [[3, 4], [5, 6], [7], [], [], [], [], []])}[R[0] if R else 'rpA'] if ramp else None
        for kc in (sched[0] if ramp else range(D)): chunk(kc)
        self.srd(SRD_WS, S_WS, WS_SIZE)
        a("s_lshl_b32 s46, s42, 2")
        a(f"s_add_u32 s46, s46, {LDS_XF}")
        a("v_mov_b32 v4, s46")
        a("v_mov_b32 v5, 0")
        a("ds_write_b32 v4, v5")
        a("s_waitcnt lgkmcnt(0)")
        self.stamp(0)
        a("s_barrier")
        for kc in range(8):
            a(f"v_mov_b32 v5, {kc+1}")
            if ramp:
                issued = max(sched[0] + [c for k2 in range(kc) for c in sched[1][k2]])
                a(f"s_waitcnt vmcnt({4*(issued - kc)})")
            elif 'nox' not in self.dbg or kc == 0: a(f"s_waitcnt vmcnt({4*min(D-1, 7-kc)})")
            a("ds_write_b32 v4, v5")
            if kc == 0: self.stamp(1)
            if 's1det' in self.dbg: self.stamp(kc + 4)
            if ramp:
                for c in sched[1][kc]: chunk(c)
            elif kc + D < 8 and 'nox' not in self.dbg: chunk(kc + D)
        a("s_waitcnt lgkmcnt(0)")
        a("s_barrier")
        self.read_nonce(40)
        a("s_waitcnt lgkmcnt(0)")
        a(f"v_readfirstlane_b32 s{S_NONCE}, v40")
        a("s_barrier")
        self.stamp(3)
        a("s_branch L_s2_idle")

    @property
    def XLOOK(self):
        for d in self.dbg:
            if d.startswith('xl'): return int(d[2:])
        return 3
    WLOOK = 4

    def stats_setup(self, tb0):
        a = self.a
        a("v_and_b32 v10, 31, v0")
        a("v_lshrrev_b32 v11, 5, v0")
        a("v_bfe_u32 v12, v0, 1, 3")
        a("v_xor_b32 v12, v11, v12")
        a("v_lshlrev_b32 v12, 4, v12")
        a("v_lshl_or_b32 v152, v10, 7, v12")
        a(f"v_add_u32 v152, {tb0*4096}, v152")
        for m in range(1, 4):
            a(f"v_xor_b32 v{152+m}, {32*m}, v152")
        for i in range(8):
            a(f"v_mov_b32 v{156+i}, 0")

    def stats_chunk(self, kc, tb0):
        a = self.a
        a(f"v_mov_b32 v12, {LDS_XF + 4*tb0}")
        self.wait_xflags([10, 11], kc + 1, 12, 13)
        if kc == 4:
            for m in range(4): a(f"v_add_u32 v{152+m}, 0x10000, v{152+m}")
        for m in range(4):
            for t in range(2):
                a(f"ds_read_b128 {vr(16+8*m+4*t,4)}, v{152+m} offset:{(kc&3)*16384 + t*4096}")
        for m in range(4):
            for t in range(2):
                a(f"s_waitcnt lgkmcnt({7-2*m-t})")
                F = 16 + 8*m + 4*t
                for q in range(4 if 'nostats' not in self.dbg else 0):
                    a(f"v_dot2c_f32_bf16 v{156+4*t+(q&1)}, s{S_ONES}, v{F+q}")
                    a(f"v_dot2c_f32_bf16 v{158+4*t+(q&1)}, v{F+q}, v{F+q}")

    def stats_final(self, tb0):
        a = self.a
        a("s_nop 2")
        for t in range(2):
            a(f"v_add_f32 v{156+4*t}, v{156+4*t}, v{157+4*t}")
            a(f"v_add_f32 v{158+4*t}, v{158+4*t}, v{159+4*t}")
        a("s_nop 0")
        for t in range(2):
            a(f"v_mov_b32 v{157+4*t}, v{156+4*t}")
            a(f"v_mov_b32 v{159+4*t}, v{158+4*t}")
        a("s_nop 1")
        for t in range(2):
            a(f"v_permlane32_swap_b32 v{156+4*t}, v{157+4*t}")
            a(f"v_permlane32_swap_b32 v{158+4*t}, v{159+4*t}")
        a("s_nop 1")
        a("v_and_b32 v12, 31, v0")
        a("v_lshlrev_b32 v12, 2, v12")
        a(f"v_add_u32 v12, {LDS_SCR + tb0*128}, v12")
        for t in range(2):
            S, Q = 156+4*t, 158+4*t
            a(f"v_add_f32 v{S}, v{S}, v{S+1}")
            a(f"v_add_f32 v{Q}, v{Q}, v{Q+1}")
            a(f"v_mul_f32 v{S}, {f2u(1.0/512)}, v{S}")
            a(f"v_mul_f32 v{Q}, {f2u(1.0/512)}, v{Q}")
            a(f"v_fma_f32 v{Q}, -v{S}, v{S}, v{Q}")
            a(f"v_max_f32 v{Q}, 0, v{Q}")
            a(f"v_add_f32 v{Q}, {f2u(1e-5)}, v{Q}")
            a(f"v_rsq_f32 v{Q}, v{Q}")
            a("s_nop 0")
            a(f"v_mul_f32 v{S}, v{S}, v{Q}")
            a(f"v_sub_f32 v{S}, 0, v{S}")
            a(f"ds_write_b32 v12, v{Q} offset:{t*128}")
            a(f"ds_write_b32 v12, v{S} offset:{512+t*128}")
        a("s_waitcnt lgkmcnt(0)")

    def role_w3(self):
        a = self.a
        a.label("L_role_w3")
        if 'earlyb0' in self.dbg: a("s_barrier")
        self.stats_setup(0)
        a("s_waitcnt lgkmcnt(0)")
        self.srd(SRD_WS, S_WS, WS_SIZE)
        self.srd(SRD_A, S_DBG, 256)
        a("v_mov_b32 v2, 0")
        a("s_cmp_lg_u32 s2, 0")
        a("s_cbranch_scc1 L_nc_np")
        a("s_memrealtime s[60:61]")
        a("s_waitcnt lgkmcnt(0)")
        a("s_or_b32 s60, s60, 1")
        a("v_mov_b32 v1, s60")
        a("s_mov_b64 exec, 1")
        a(f"buffer_store_dword v1, v2, s[{SRD_A}:{SRD_A+3}], 0 offen sc1")
        a("s_mov_b64 exec, -1")
        a.label("L_nc_np")
        if 'earlyb0' not in self.dbg: a("s_barrier")
        for kc in range(8):
            if kc == 3:
                a(f"buffer_load_dword v1, v2, s[{SRD_A}:{SRD_A+3}], 0 offen sc1")
            if kc == 7:
                a("s_mov_b32 s62, 0")
                a.label("L_nc_chk")
                a("s_waitcnt vmcnt(0)")
                a(f"v_readfirstlane_b32 s{S_NONCE}, v1")
                a(f"s_cmp_lg_u32 s{S_NONCE}, 0")
                a("s_cbranch_scc1 L_nc_got")
                a("s_add_u32 s62, s62, 1")
                a("s_cmp_ge_u32 s62, 8192")
                a("s_cbranch_scc1 L_nc_got")
                a(f"buffer_load_dword v1, v2, s[{SRD_A}:{SRD_A+3}], 0 offen sc1")
                a("s_branch L_nc_chk")
                a.label("L_nc_got")
                a(f"v_mov_b32 v1, s{S_NONCE}")
                a(f"v_mov_b32 v2, {LDS_NONCE}")
                a("ds_write_b32 v2, v1")
            self.stats_chunk(kc, 0)
            if 's1det' in self.dbg: self.stamp(kc + 4)
        self.stats_final(0)
        self.stamp(2)
        a("s_barrier")
        a("s_barrier")
        a("s_branch L_s2_idle")

    def ffn_setup(self):
        a = self.a
        a(f"s_sub_u32 s50, s{S_W}, 8")
        a(f"s_lshl_b32 s{self.S_RING}, s50, 13")
        a(f"s_add_u32 s{self.S_RING}, s{self.S_RING}, {LDS_RING}")
        self.gemm_wg_voffset(3584)
        a(f"s_lshl_b32 s51, s{S_J}, 2")
        a("s_add_u32 s51, s51, s50")
        a(f"s_lshl_b32 s{self.S_WOFF}, s51, 6")
        a(f"s_mov_b32 s{self.S_WSTR}, {16*3584 if 'wstr0' not in self.dbg else 0}")
        a(f"s_sub_u32 s{self.S_WOFF}, s{self.S_WOFF}, s{self.S_WSTR}")
        self.srd(SRD_A, S_W1, 512 * 3584)
        self.srd(SRD_B, S_B1, 1792 * 2)
        a("v_lshrrev_b32 v12, 5, v0")
        a("v_lshlrev_b32 v12, 3, v12")
        a("s_lshl_b32 s52, s51, 6")
        for b in range(4):
            a(f"buffer_load_dwordx2 {vr(144+2*b,2)}, v12, s[{SRD_B}:{SRD_B+3}], s52 offen offset:{16*b}")
        self.gemm_setup_addrs()
        self.zero_acc()
        self.cs4_init()

    def cs4_init(self):
        a = self.a
        a("v_lshrrev_b32 v12, 4, v0")
        a("v_xor_b32 v12, v12, v0")
        a("v_and_b32 v12, 1, v12")
        a("v_cmp_eq_u32 vcc, 0, v12")
        a(f"v_mov_b32 v13, s{S_ONES}")
        for i in range(4):
            a(f"v_mov_b32 v{self.CS4+i}, 0")
        for i in range(4):
            a(f"v_cndmask_b32 v{self.PAR+i}, 0, v13, vcc")

    def role_ffn(self):
        a = self.a
        a.label("L_role_ffn")
        if 'earlyb0' in self.dbg: a("s_barrier")
        if 'nopf' not in self.dbg:
            a(f"s_cmp_lg_u32 s{S_W}, 9")
            a("s_cbranch_scc1 L_nopf")
            a("s_getpc_b64 s[46:47]")
            a.label("L_pc")
            a(f"s_sub_u32 s46, s46, L_pc-{KN}")
            a("s_subb_u32 s47, s47, 0")
            a("s_lshr_b32 s48, s2, 3")
            a("v_lshlrev_b32 v12, 4, v0")
            for k in range(2):
                a(f"s_cmp_ge_u32 s48, (L_code_end-{KN}+1023)/1024")
                a("s_cbranch_scc1 L_nopf")
                a("s_lshl_b32 s49, s48, 10")
                a("v_add_u32 v13, s49, v12")
                a(f"global_load_dwordx4 {vr(160+4*k,4)}, v13, s[46:47]")
                a("s_add_u32 s48, s48, 32")
            a.label("L_nopf")
        a("s_waitcnt lgkmcnt(0)")
        if 'tq' in self.dbg:
            a(f"s_cmp_eq_u32 s{S_W}, 10")
            a("s_cbranch_scc0 L_tch2")
            self.srd(SRD_B, S_WQKV, 512 * 3072)
            a("s_bfe_u32 s46, s2, 0x30003")
            a(f"s_mul_i32 s46, s46, {64*3072}")
            a(f"s_mul_i32 s47, s{S_J}, 192")
            a("s_and_b32 s47, s47, 0xffffff80")
            a("s_add_u32 s46, s46, s47")
            a("v_lshrrev_b32 v12, 1, v0")
            a("v_mul_u32_u24 v12, 3072, v12")
            a("v_and_b32 v13, 1, v0")
            a("v_lshl_add_u32 v12, v13, 7, v12")
            for i in range(2):
                a(f"buffer_load_dword v{160+i}, v12, s[{SRD_B}:{SRD_B+3}], s46 offen")
                a(f"s_add_u32 s46, s46, {32*3072}")
            a.label("L_tch2")
        self.srd(SRD_WS, S_WS, WS_SIZE)
        self.ffn_setup()
        if 'earlyb0' not in self.dbg: a("s_barrier")
        tw = [d for d in self.dbg if d.startswith('tw')] or ['tw6']
        if tw[0] != 'tw0':
            a(f"s_cmp_eq_u32 s{S_W}, 10")
            a("s_cbranch_scc0 L_tw_skip")
            a(f"v_mov_b32 v166, {LDS_XF}")
            self.wait_xflags([160, 161, 162, 163], int(tw[0][2:]), 166, 167)
            self.srd(SRD_B, S_W1, 512 * 3584)
            a("s_bfe_u32 s46, s2, 0x30003")
            a(f"s_mul_i32 s46, s46, {64*3584}")
            a(f"s_lshl_b32 s47, s{S_J}, 8")
            a("s_add_u32 s46, s46, s47")
            a("v_lshrrev_b32 v12, 1, v0")
            a("v_mul_u32_u24 v12, 3584, v12")
            a("v_and_b32 v13, 1, v0")
            a("v_lshl_add_u32 v12, v13, 7, v12")
            for i in range(2):
                a(f"buffer_load_dword v{164+i}, v12, s[{SRD_B}:{SRD_B+3}], s46 offen")
                a(f"s_add_u32 s46, s46, {32*3584}")
            a.label("L_tw_skip")
        a(f"s_cmp_lg_u32 s{S_W}, 11")
        a("s_cbranch_scc1 L_ffn_b8")
        self.stats_setup(2)
        for kc in range(8):
            self.stats_chunk(kc, 2)
        self.stats_final(2)
        a.label("L_ffn_b8")
        a("s_barrier")
        a(f"s_cmp_ge_u32 s{S_J}, 14")
        a("s_cbranch_scc1 L_ffn_skip")
        for sl in range(6):
            self.w_dma(sl, self.S_RING)
        a("v_and_b32 v10, 31, v0")
        a(f"v_lshlrev_b32 v10, 2, v10")
        a(f"v_add_u32 v10, {LDS_SCR}, v10")
        for tb in range(4):
            a(f"ds_read_b32 v{152+2*tb}, v10 offset:{tb*128}")
            a(f"ds_read_b32 v{153+2*tb}, v10 offset:{512+tb*128}")
        self.read_nonce(40)
        a("s_waitcnt vmcnt(6) lgkmcnt(0)")
        a(f"v_readfirstlane_b32 s{S_NONCE}, v40")
        for b in range(4):
            a(f"v_lshlrev_b32 v{128+4*b}, 16, v{144+2*b}")
            a(f"v_and_b32 v{129+4*b}, 0xffff0000, v{144+2*b}")
            a(f"v_lshlrev_b32 v{130+4*b}, 16, v{145+2*b}")
            a(f"v_and_b32 v{131+4*b}, 0xffff0000, v{145+2*b}")
        a("s_barrier")
        if 'nos2prio' not in self.dbg: a("s_setprio 3")
        for sl in range(6, 8):
            self.w_dma(sl, self.S_RING)
        self.stamp(4)
        a("s_waitcnt vmcnt(7)")
        self.gemm_first_frags()
        self.gemm_loop(False, False, "ffn")
        self.stamp(5)
        a("s_barrier")
        ep = [d for d in self.dbg if d.startswith('ep')]
        if 'nogprio' not in self.dbg: a(f"s_setprio {int(ep[0][2:]) if ep else 2}")
        a("s_nop 7")
        self.cs16_from_cs4()
        for tb in range(4):
            a(f"v_mov_b32 v{32+2*tb}, v{152+2*tb}")
            a(f"v_mov_b32 v{33+2*tb}, v{153+2*tb}")
        a(f"s_mul_i32 s48, s{S_TG}, {4*112*1024}")
        a("s_lshl_b32 s49, s51, 11")
        a("s_add_u32 s48, s48, s49")
        a(f"s_add_u32 s48, s48, {WS_H}")
        a("v_lshlrev_b32 v10, 4, v0")
        a("s_waitcnt lgkmcnt(0)")
        if 'dumpf' in self.dbg:
            a("s_lshl_b32 s92, s2, 2")
            a(f"s_add_u32 s92, s92, s50")
            a("s_mul_i32 s92, s92, 16384")
            a(f"s_add_u32 s92, s92, {20<<20}")
            a("v_lshlrev_b32 v12, 2, v0")
            regs = list(range(16,32)) + list(range(32,40)) + list(range(128,144)) + list(range(64,80))
            for n, r in enumerate(regs):
                a(f"buffer_store_dword v{r}, v12, s[{SRD_WS}:{SRD_WS+3}], s92 offen offset:{(n%16)*256}")
                if n % 16 == 15: a("s_add_u32 s92, s92, 4096")
        self.tok_epilogue_store(ffn=True)
        if self.stop != "s2": a("s_barrier")
        a(f"s_lshl_b32 s48, s{S_TG}, 8")
        a("s_lshl_b32 s49, s51, 2")
        a("s_add_u32 s48, s48, s49")
        a(f"s_add_u32 s48, s48, {FL2}")
        self.publish_flag(48, 12)
        self.stamp(6)
        a("s_branch L_s3_gemm")
        a.label("L_ffn_skip")
        self.read_nonce(40)
        a("s_waitcnt vmcnt(0) lgkmcnt(0)")
        a(f"v_readfirstlane_b32 s{S_NONCE}, v40")
        a("s_barrier")
        if self.stop != "s2":
            for _ in range(3): a("s_sleep 16")
            a("s_barrier")
        a("s_barrier")
        if self.stop != "s2":
            a("s_barrier")
        a("s_branch L_s3_gemm")

    def attn_ids(self):
        a = self.a
        a(f"s_and_b32 s{S_HEAD}, s2, 7")
        a("s_lshr_b32 s47, s2, 6")
        a("s_lshl_b32 s47, s47, 3")
        a(f"s_or_b32 s{S_HEAD}, s{S_HEAD}, s47")
        a(f"s_bfe_u32 s{S_QB}, s2, 0x30003")
        a(f"s_and_b32 s{S_T}, s2, 7")
        a(f"s_lshl_b32 s{S_T}, s{S_T}, 2")
        a("s_bfe_u32 s47, s2, 0x20003")
        a(f"s_add_u32 s{S_T}, s{S_T}, s47")
        a(f"s_lshr_b32 s{S_C}, s2, 5")

    def poll_flags(self, s_off, n, vt=2, sleep=2):
        a = self.a
        Lp, Ld = self.lab("pf"), self.lab("pfd")
        a(f"v_lshlrev_b32 v{vt}, 2, v0")
        a(f"v_cmp_gt_u32 vcc, {n}, v0")
        a("s_mov_b32 s58, 0")
        a("s_mov_b64 s[62:63], vcc")
        a.label(Lp)
        a(f"buffer_load_dword v{vt+1}, v{vt}, s[{SRD_WS}:{SRD_WS+3}], s{s_off} offen sc1")
        a("s_add_u32 s58, s58, 1")
        a("s_waitcnt vmcnt(0)")
        a(f"v_cmp_eq_u32 vcc, s{S_NONCE}, v{vt+1}")
        a("s_nop 1")
        a("s_and_b64 vcc, vcc, s[62:63]")
        a("s_cmp_eq_u64 vcc, s[62:63]")
        a(f"s_cbranch_scc1 {Ld}")
        a("s_cmp_ge_u32 s58, 0x4000")
        a(f"s_cbranch_scc1 {Ld}")
        a(f"s_sleep {sleep}")
        a(f"s_branch {Lp}")
        a.label(Ld)

    def clear_o(self):
        a = self.a
        L = self.lab("co")
        a(f"s_cmp_lg_u32 s{S_W}, 9")
        a(f"s_cbranch_scc1 {L}")
        a(f"s_lshl_b32 s46, s{S_QB}, 8")
        a(f"s_add_u32 s46, s46, s{S_HEAD}")
        a("s_lshl_b32 s46, s46, 10")
        a(f"s_add_u32 s46, s46, {WS_O}")
        for r in range(4): a(f"v_mov_b32 v{152+r}, -1")
        a("v_lshlrev_b32 v156, 4, v0")
        for i in range(8):
            a(f"buffer_store_dwordx4 v[152:155], v156, s[{SRD_WS}:{SRD_WS+3}], s46 offen sc1")
            a(f"s_add_u32 s46, s46, {32*1024}")
        a(f"s_lshl_b32 s48, s{S_QB}, 8")
        a(f"s_lshl_b32 s49, s{S_HEAD}, 2")
        a("s_add_u32 s48, s48, s49")
        a(f"s_add_u32 s48, s48, {FL3}")
        self.publish_flag(48, 157)
        a.label(L)

    def s2_idle(self):
        a = self.a
        a.label("L_s2_idle")
        if self.stop == "s2":
            a("s_barrier")
            a("s_branch L_fin")

    QA, QB, KA, KB, VA, VB = 4, 8, 12, 16, 20, 28
    SA, SB, PA, PB, OA, OB = 40, 56, 72, 80, 88, 104
    VK, VKN, VV0, VV1, VV0N, VV1N, VWA = 120, 121, 122, 123, 124, 125, 126
    TP = 2064
    LDS_W2 = 64 * 2064
    LDS_SYNC = 64 * 2064 + 4 * 6144
    S_NXT = 42

    def stg(self, i):
        return 128 + 8 * (i % 5)

    def mf32(self, d, x, y, c):
        self.a(f"v_mfma_f32_32x32x16_bf16 {vr(d,16)}, {vr(x,4)}, {vr(y,4)}, {c if c == 0 else vr(c,16)}")

    def attn_phase(self, S, P, m1, m2, m3, x1=None, x3=None):
        a = self.a
        E = lambda k: a(f"v_exp_f32 v{S+k}, v{S+k}")
        C = lambda k: a(f"v_cvt_pk_bf16_f32 v{P+k}, v{S+2*k}, v{S+2*k+1}")
        if 'noqk' not in self.dbg: self.mf32(*m1)
        if x1: x1()
        if 'noexp' in self.dbg: E = lambda k: a(f"v_mov_b32 v{S+k}, v{S+k}")
        E(0); E(1); E(2); E(3); C(0); E(4); E(5); C(1)
        if 'nopv' not in self.dbg: self.mf32(*m2)
        E(6); E(7); C(2); E(8); E(9); C(3); E(10); E(11)
        if 'nopv' not in self.dbg: self.mf32(*m3)
        if x3: x3()
        C(4); E(12); E(13); C(5); E(14); E(15); C(6); C(7)

    def attn_tile(self, i, first_group):
        a = self.a
        ev = (i & 1) == 0
        Kc, Kn = (self.KA, self.KB) if ev else (self.KB, self.KA)
        Vc, Vp = (self.VA, self.VB) if ev else (self.VB, self.VA)
        nxt = i == 7
        off = 0 if nxt else (i + 1) * self.TP
        rk, r0, r1 = (self.VKN, self.VV0N, self.VV1N) if nxt else (self.VK, self.VV0, self.VV1)
        def x1():
            if first_group and i <= 6:
                st = self.stg(i + 1)
                a(f"s_waitcnt vmcnt({[4, 4, 4, 4, 4, 2, 0][i]})")
                if 'kvdma' not in self.dbg:
                    a(f"ds_write_b128 v{self.VWA}, {vr(st,4)} offset:{(i+1)*self.TP}")
                    a(f"ds_write_b128 v{self.VWA}, {vr(st+4,4)} offset:{(i+1)*self.TP+1024}")
                if i + 4 <= 7: self.kv_load(i + 4, self.stg(i + 4))
            a(f"ds_read_b128 {vr(Kn,4)}, v{rk} offset:{off}")
        def x3():
            a(f"ds_read_b128 {vr(Vp,4)}, v{r0} offset:{off}")
            a(f"ds_read_b128 {vr(Vp+4,4)}, v{r1} offset:{off}")
        if first_group:
            a("s_waitcnt lgkmcnt(0)")
            if i == 7: a("s_barrier")
        else:
            a("s_waitcnt lgkmcnt(0)")
        self.attn_phase(self.SA, self.PA, (self.SB, Kc, self.QB, 0), (self.OB, Vp, self.PB, self.OB),
                        (self.OB, Vp + 4, self.PB + 4, self.OB), x1, x3)
        a("s_waitcnt lgkmcnt(2)")
        self.attn_phase(self.SB, self.PB, (self.SA, Kn, self.QA, 0), (self.OA, Vc, self.PA, self.OA),
                        (self.OA, Vc + 4, self.PA + 4, self.OA))

    def kv_load(self, i, st):
        a = self.a
        if 'kvdma' not in self.dbg:
            a(f"buffer_load_dwordx4 {vr(st,4)}, v1, s[{SRD_WS}:{SRD_WS+3}], s44 offen offset:{(i&3)*1024} sc1")
            a(f"buffer_load_dwordx4 {vr(st+4,4)}, v1, s[{SRD_WS}:{SRD_WS+3}], s45 offen offset:{(i&3)*1024} sc1")
            return
        a(f"s_add_u32 m0, s56, {i*self.TP}")
        a(f"s_add_u32 s48, s44, {(i&3)*1024}")
        a(f"buffer_load_dwordx4 v1, s[{SRD_WS}:{SRD_WS+3}], s48 offen sc1 lds")
        a(f"s_add_u32 m0, s56, {i*self.TP+1024}")
        a(f"s_add_u32 s48, s45, {(i&3)*1024}")
        a(f"buffer_load_dwordx4 v1, s[{SRD_WS}:{SRD_WS+3}], s48 offen sc1 lds")

    def group_advance(self):
        a = self.a
        G = 8 * self.TP
        a(f"v_mov_b32 v{self.VK}, v{self.VKN}")
        a(f"v_mov_b32 v{self.VV0}, v{self.VV0N}")
        a(f"v_mov_b32 v{self.VV1}, v{self.VV1N}")
        a(f"s_add_u32 s{self.S_NXT}, s{self.S_NXT}, {G}")
        a(f"s_cmp_eq_u32 s{self.S_NXT}, s59")
        a(f"s_cselect_b32 s46, {4*G}, 0")
        a(f"s_sub_u32 s{self.S_NXT}, s{self.S_NXT}, s46")
        a(f"v_add_u32 v{self.VKN}, s{self.S_NXT}, v1")
        a(f"v_add_u32 v{self.VV0N}, s{self.S_NXT}, v2")
        a(f"v_add_u32 v{self.VV1N}, s{self.S_NXT}, v3")

    def lds_spin(self, vaddr, n, vdst, want):
        a = self.a
        Lp, Ld = self.lab("sp"), self.lab("spd")
        a("s_mov_b32 s58, 0")
        a.label(Lp)
        a(f"ds_read_b{32*n} {vr(vdst,n)}, v{vaddr}")
        a("s_add_u32 s58, s58, 1")
        a("s_waitcnt lgkmcnt(0)")
        if n == 4:
            a(f"v_min3_u32 v{vdst}, v{vdst}, v{vdst+1}, v{vdst+2}")
            a(f"v_min_u32 v{vdst}, v{vdst}, v{vdst+3}")
        a("s_nop 0")
        a(f"v_readfirstlane_b32 s57, v{vdst}")
        a("s_cmp_ge_u32 s58, 0x100000")
        a(f"s_cbranch_scc1 {Ld}")
        a(f"s_cmp_lt_u32 s57, {want}")
        a(f"s_cbranch_scc1 {Lp}")
        a.label(Ld)

    def role_attn(self):
        a = self.a
        G = 8 * self.TP
        a.label("L_s3_attn")
        self.attn_ids()
        a("v_lshlrev_b32 v1, 4, v0")
        a(f"s_lshl_b32 s43, s{S_HEAD}, 16")
        a(f"s_lshl_b32 s47, s{S_W}, 13")
        a("s_add_u32 s44, s43, s47")
        a(f"s_add_u32 s45, s44, {WS_V}")
        a(f"s_add_u32 s44, s44, {WS_K}")
        a(f"s_lshl_b32 s46, s{S_QB}, 13")
        a("s_add_u32 s43, s43, s46")
        a(f"s_and_b32 s47, s{S_W}, 3")
        a("s_lshl_b32 s47, s47, 11")
        a("s_add_u32 s43, s43, s47")
        a(f"s_mul_i32 s46, s{S_W}, {G}")
        a("s_mov_b32 s56, s46")
        a(f"v_add_u32 v{self.VWA}, s46, v1")
        a(f"v_mov_b32 v{self.VK}, v{self.VWA}")
        a("v_lshrrev_b32 v2, 5, v0")
        a("v_lshlrev_b32 v2, 8, v2")
        a("v_and_b32 v3, 15, v0")
        a("v_lshl_add_u32 v2, v3, 4, v2")
        a("v_add_u32 v3, 1536, v2")
        a("v_add_u32 v2, 1024, v2")
        a("v_and_b32 v36, 31, v0")
        a("v_cmp_lt_u32 vcc, 15, v36")
        a("v_cmp_eq_u32 s[50:51], 16, v36")
        a(f"v_mov_b32 v37, {LDS_DROP if 'allones' not in self.dbg else 2048}")
        a("v_mov_b32 v38, 2048")
        a("s_nop 0")
        a("v_cndmask_b32 v37, v37, v38, s[50:51]")
        a("s_nop 0")
        a("v_cndmask_b32 v2, v2, v37, vcc")
        a("v_cndmask_b32 v3, v3, v37, vcc")
        a(f"v_add_u32 v{self.VV0}, s46, v2")
        a(f"v_add_u32 v{self.VV1}, s46, v3")
        a(f"s_lshr_b32 s47, s{S_W}, 2")
        a(f"s_mul_i32 s47, s47, {4*G}")
        a(f"s_add_u32 s59, s47, {4*G}")
        a(f"s_add_u32 s{self.S_NXT}, s46, {G}")
        a(f"s_cmp_eq_u32 s{self.S_NXT}, s59")
        a(f"s_cselect_b32 s47, {4*G}, 0")
        a(f"s_sub_u32 s{self.S_NXT}, s{self.S_NXT}, s47")
        a(f"v_add_u32 v{self.VKN}, s{self.S_NXT}, v1")
        a(f"v_add_u32 v{self.VV0N}, s{self.S_NXT}, v2")
        a(f"v_add_u32 v{self.VV1N}, s{self.S_NXT}, v3")
        a(f"v_mul_u32_u24 v36, {self.TP}, v0")
        a("v_add_u32 v36, s46, v36")
        for r in range(4): a(f"v_mov_b32 v{40+r}, s{S_ONES}")
        a("v_lshlrev_b32 v37, 2, v0")
        a(f"v_add_u32 v37, {self.LDS_SYNC}, v37")
        a("v_mov_b32 v38, 0")
        for r in range(32):
            a(f"v_mov_b32 v{self.OA+r}, 0")
        for r in range(8):
            a(f"v_mov_b32 v{self.PB+r}, 0")
            a(f"v_mov_b32 v{self.VB+r}, 0")
        a("v_lshrrev_b32 v127, 3, v0")
        a(f"s_lshl_b32 s48, s{S_W}, 3")
        a("v_add_u32 v127, s48, v127")
        a("v_lshlrev_b32 v127, 10, v127")
        a("v_and_b32 v39, 7, v0")
        a("v_lshl_add_u32 v127, v39, 4, v127")
        a(f"s_lshl_b32 s61, s{S_T}, 16")
        a(f"s_lshl_b32 s48, s{S_C}, 7")
        a("s_add_u32 s61, s61, s48")
        a(f"s_lshl_b32 s60, s{S_QB}, 3")
        a(f"s_and_b32 s48, s{S_W}, 3")
        a("s_lshl_b32 s48, s48, 1")
        a("s_add_u32 s60, s60, s48")
        a(f"s_lshr_b32 s48, s{S_W}, 2")
        a("s_add_u32 s60, s60, s48")
        a("s_lshl_b32 s60, s60, 5")
        a(f"s_add_u32 s60, s60, s{S_HEAD}")
        a("s_lshl_b32 s60, s60, 10")
        a(f"s_add_u32 s60, s60, {WS_O}")
        a("s_barrier")
        pre = 'pre' in self.dbg
        if pre: a("v_mov_b32 v46, 0")
        a(f"s_cmp_lg_u32 s{S_W}, 3")
        a("s_cbranch_scc1 L_at_np")
        a(f"s_lshr_b32 s47, s{S_HEAD}, 1")
        a("s_lshl_b32 s47, s47, 8")
        a(f"s_add_u32 s47, s47, {FL1}")
        self.poll_flags(47, 48, vt=44, sleep=2)
        self.stamp(4)
        if pre:
            a(f"v_mov_b32 v47, s{S_NONCE}")
            a("ds_write_b32 v46, v47")
        a.label("L_at_np")
        if pre:
            Lp, Ld = self.lab("tg"), self.lab("tgd")
            a("s_mov_b32 s58, 0")
            a.label(Lp)
            a("ds_read_b32 v47, v46")
            a("s_add_u32 s58, s58, 1")
            a("s_waitcnt lgkmcnt(0)")
            a("v_readfirstlane_b32 s57, v47")
            a("s_cmp_ge_u32 s58, 0x400000")
            a(f"s_cbranch_scc1 {Ld}")
            a(f"s_cmp_eq_u32 s57, s{S_NONCE}")
            a(f"s_cbranch_scc1 {Ld}")
            a("s_sleep 1")
            a(f"s_branch {Lp}")
            a.label(Ld)
        else:
            a("s_barrier")
        a(f"buffer_load_dwordx4 {vr(self.QA,4)}, v1, s[{SRD_WS}:{SRD_WS+3}], s43 offen sc1")
        a(f"buffer_load_dwordx4 {vr(self.QB,4)}, v1, s[{SRD_WS}:{SRD_WS+3}], s43 offen offset:1024 sc1")
        self.kv_load(0, self.stg(0))
        if pre:
            a("s_barrier")
        self.stamp(7)
        self.cstamp(0)
        if 'dlyB' in self.dbg: a("s_sleep 127")
        a("s_setprio 2")
        a("s_mov_b64 exec, 0xff")
        a(f"ds_write_b128 v36, v[40:43] offset:2048")
        a("s_mov_b64 exec, -1")
        a(f"s_cmp_lg_u32 s{S_W}, 0")
        a("s_cbranch_scc1 L_at_nz")
        a("s_mov_b64 exec, 0xffff")
        a("ds_write_b32 v37, v38")
        a("s_mov_b64 exec, -1")
        a.label("L_at_nz")
        for i in range(1, 3):
            self.kv_load(i, self.stg(i))
        a("s_waitcnt vmcnt(4)")
        self.stamp(8)
        st = self.stg(0)
        if 'kvdma' not in self.dbg:
            a(f"ds_write_b128 v{self.VWA}, {vr(st,4)}")
            a(f"ds_write_b128 v{self.VWA}, {vr(st+4,4)} offset:1024")
        self.kv_load(3, self.stg(3))
        a("s_add_u32 s44, s44, 4096")
        a("s_add_u32 s45, s45, 4096")
        a(f"ds_read_b128 {vr(self.KA,4)}, v{self.VK}")
        a(f"ds_read_b128 {vr(self.VA,4)}, v{self.VV0}")
        a(f"ds_read_b128 {vr(self.VA+4,4)}, v{self.VV1}")
        a("s_waitcnt lgkmcnt(0)")
        self.mf32(self.SA, self.KA, self.QA, 0)
        a("s_nop 7")
        a("s_nop 3")
        for i in range(8):
            if 'g0det' in self.dbg: self.stamp(i)
            if 'nog0prio' not in self.dbg and i in (3, 5):
                a(f"s_setprio {1 if i == 3 else 0}")
            self.attn_tile(i, True)
        if 'nog0prio' not in self.dbg: a("s_setprio 2")
        self.group_advance()
        self.stamp(9)
        self.srd(SRD_A, S_X, 2048 * 1024)
        a(f"buffer_load_dwordx4 v[160:163], v127, s[{SRD_A}:{SRD_A+3}], s61 offen")
        self.srd(SRD_B, S_B2, 1024)
        a("v_and_b32 v36, 7, v0")
        a("v_lshlrev_b32 v36, 4, v36")
        a(f"s_lshl_b32 s48, s{S_C}, 7")
        a(f"buffer_load_dwordx4 v[164:167], v36, s[{SRD_B}:{SRD_B+3}], s48 offen")
        a("s_mov_b32 s43, 0")
        a.label("L_attn_loop")
        if 'noaprio' not in self.dbg:
            a("s_cmp_eq_u32 s43, 1")
            a("s_cbranch_scc0 L_ap1")
            a("s_setprio 1")
            a.label("L_ap1")
            a("s_cmp_eq_u32 s43, 2")
            a("s_cbranch_scc0 L_ap2")
            a("s_setprio 0")
            a.label("L_ap2")
        for i in range(8):
            self.attn_tile(i, False)
        self.group_advance()
        a("s_add_u32 s43, s43, 1")
        a("s_cmp_lt_u32 s43, 3")
        a("s_cbranch_scc1 L_attn_loop")
        self.mf32(self.OB, self.VB, self.PB, self.OB)
        self.mf32(self.OB, self.VB + 4, self.PB + 4, self.OB)
        self.stamp(10)
        self.cstamp(1)
        a(f"s_lshr_b32 s47, s{S_W}, 2")
        a(f"v_mov_b32 v36, {self.LDS_SYNC}")
        self.lds_spin(36, 4, 40, 1)
        a("s_nop 7")
        a("s_cmp_eq_u32 s47, 0")
        a("s_cbranch_scc1 L_at_ns")
        for r in range(9): a(f"v_swap_b32 v{self.OA+r}, v{self.OB+r}")
        for r in range(4): a(f"v_swap_b32 v{self.QA+r}, v{self.QB+r}")
        a.label("L_at_ns")
        XP = 9 * 256
        a(f"s_mul_i32 s46, s{S_W}, {XP}")
        a(f"s_add_u32 s46, s46, {self.LDS_W2}")
        a("v_add_u32 v36, s46, v1")
        a("v_lshlrev_b32 v37, 2, v0")
        a("v_add_u32 v37, s46, v37")
        a(f"ds_write_b128 v36, {vr(self.OB,4)}")
        a(f"ds_write_b128 v36, {vr(self.OB+4,4)} offset:1024")
        a(f"ds_write_b32 v37, v{self.OB+8} offset:2048")
        a(f"s_lshl_b32 s48, s{S_W}, 2")
        a(f"s_add_u32 s48, s48, {self.LDS_SYNC+16}")
        a("v_mov_b32 v38, s48")
        a("v_mov_b32 v39, 1")
        a("s_waitcnt lgkmcnt(0)")
        a("ds_write_b32 v38, v39")
        a(f"s_xor_b32 s48, s{S_W}, 4")
        a("s_lshl_b32 s46, s48, 2")
        a(f"s_add_u32 s46, s46, {self.LDS_SYNC+16}")
        a("v_mov_b32 v38, s46")
        self.lds_spin(38, 1, 40, 1)
        a(f"s_mul_i32 s46, s48, {XP}")
        a(f"s_add_u32 s46, s46, {self.LDS_W2}")
        a("v_add_u32 v36, s46, v1")
        a("v_lshlrev_b32 v37, 2, v0")
        a("v_add_u32 v37, s46, v37")
        a("ds_read_b128 v[40:43], v36")
        a("ds_read_b128 v[44:47], v36 offset:1024")
        a("ds_read_b32 v48, v37 offset:2048")
        a("s_waitcnt lgkmcnt(0)")
        O = self.OA
        for r in range(9):
            a(f"v_add_f32 v{O+r}, v{O+r}, v{40+r}")
        self.bcast_l()
        a(f"v_mul_f32 v36, 0, v{O}")
        for r in range(1, 8):
            a(f"v_fma_f32 v36, v{O+r}, 0, v36")
        a(f"s_mov_b32 s46, {f2u(2.0**-64):#x}")
        a(f"s_mov_b32 s48, {f2u(2.0**64):#x}")
        a(f"v_cmp_le_f32 s[50:51], s46, v{O+8}")
        a(f"v_cmp_ge_f32 s[52:53], s48, v{O+8}")
        a("v_cmp_eq_f32 vcc, 0, v36")
        a("s_nop 1")
        a("s_and_b64 s[50:51], s[50:51], s[52:53]")
        a("s_and_b64 vcc, vcc, s[50:51]")
        if 'slow' in self.dbg:
            a("s_mov_b64 vcc, 0")
        a("s_cmp_eq_u64 vcc, -1")
        a("s_cbranch_scc0 L_attn_slow")
        a.label("L_attn_norm")
        self.bcast_l()
        a(f"v_rcp_f32 v36, v{O+8}")
        a("s_nop 0")
        for r in range(8):
            a(f"v_mul_f32 v{O+r}, v{O+r}, v36")
        for p in range(4):
            a(f"v_cvt_pk_bf16_f32 v{self.PA+p}, v{O+2*p}, v{O+2*p+1}")
        a(f"v_cmp_eq_u32 vcc, -1, v{self.PA}")
        a("v_mov_b32 v36, 0x7fc07fc0")
        a("s_nop 0")
        a(f"v_cndmask_b32 v{self.PA}, v{self.PA}, v36, vcc")
        a(f"buffer_store_dwordx4 {vr(self.PA,4)}, v1, s[{SRD_WS}:{SRD_WS+3}], s60 offen sc1")
        a("s_branch L_tail_attn")

    def bcast_l(self):
        a = self.a
        a("s_nop 1")
        a(f"v_mov_b32 v37, v{self.OA+8}")
        a("s_nop 1")
        a(f"v_permlane32_swap_b32 v{self.OA+8}, v37")
        a("s_nop 1")

    def attn_slow(self):
        a = self.a
        O, S, P = self.OA, self.SA, self.PA
        a.label("L_attn_slow")
        for r in range(16):
            a(f"v_mov_b32 v{O+r}, 0")
        a(f"v_mov_b32 v136, {f2u(-3.0e38):#x}")
        a("v_mov_b32 v137, v1")
        a("v_mov_b32 v138, v2")
        a("v_mov_b32 v141, v3")
        a("s_mov_b32 s43, 0")
        a.label("L_slow_loop")
        a(f"ds_read_b128 {vr(self.KA,4)}, v137")
        a(f"ds_read_b128 {vr(self.VA,4)}, v138")
        a(f"ds_read_b128 {vr(self.VA+4,4)}, v141")
        a("s_waitcnt lgkmcnt(0)")
        self.mf32(S, self.KA, self.QA, 0)
        a(f"v_add_u32 v137, {self.TP}, v137")
        a(f"v_add_u32 v138, {self.TP}, v138")
        a(f"v_add_u32 v141, {self.TP}, v141")
        a("s_nop 7")
        a("s_nop 7")
        a(f"v_max3_f32 v139, v{S}, v{S+1}, v{S+2}")
        for r in range(3, 15, 2):
            a(f"v_max3_f32 v139, v139, v{S+r}, v{S+r+1}")
        a(f"v_max_f32 v139, v139, v{S+15}")
        a("s_nop 0")
        a("v_mov_b32 v140, v139")
        a("s_nop 1")
        a("v_permlane32_swap_b32 v139, v140")
        a("s_nop 1")
        a("v_max3_f32 v139, v139, v140, v136")
        a("v_sub_f32 v140, v136, v139")
        a("v_exp_f32 v140, v140")
        a("v_mov_b32 v136, v139")
        for r in range(16):
            a(f"v_sub_f32 v{S+r}, v{S+r}, v139")
        for r in range(16):
            a(f"v_exp_f32 v{S+r}, v{S+r}")
        for r in range(9):
            a(f"v_mul_f32 v{O+r}, v{O+r}, v140")
        for p in range(8):
            a(f"v_cvt_pk_bf16_f32 v{P+p}, v{S+2*p}, v{S+2*p+1}")
        a("s_nop 1")
        self.mf32(O, self.VA, P, O)
        self.mf32(O, self.VA + 4, P + 4, O)
        a("s_add_u32 s43, s43, 1")
        a("s_nop 7")
        a("s_nop 7")
        a("s_cmp_lt_u32 s43, 64")
        a("s_cbranch_scc1 L_slow_loop")
        a("s_branch L_attn_norm")

    def role_down(self):
        a = self.a
        a.label("L_s3_gemm")
        if self.stop == "s2":
            a("s_branch L_fin")
        if 'nogprio' not in self.dbg: a("s_setprio 3")
        self.attn_ids()
        a(f"s_sub_u32 s50, s{S_W}, 8")
        self.clear_o()
        self.srd(SRD_A, S_W2, 1792 * 1024)
        ACC, HST, WF = 64, 16, 48
        a("v_lshrrev_b32 v4, 2, v0")
        a("v_lshlrev_b32 v4, 10, v4")
        a("v_and_b32 v5, 3, v0")
        a("v_lshl_add_u32 v4, v5, 4, v4")
        a("s_mul_i32 s44, s50, 6144")
        a(f"s_add_u32 s44, s44, {self.LDS_W2}")
        a("v_lshrrev_b32 v6, 5, v0")
        a("v_bfe_u32 v7, v0, 2, 2")
        a("v_lshl_add_u32 v7, v6, 2, v7")
        a("v_lshlrev_b32 v7, 6, v7")
        a("v_bfe_u32 v8, v0, 4, 1")
        a("v_lshl_add_u32 v7, v8, 5, v7")
        a("v_and_b32 v8, 3, v0")
        a("v_lshl_add_u32 v7, v8, 3, v7")
        a("v_add_u32 v7, s44, v7")
        a("v_lshlrev_b32 v1, 4, v0")
        a("s_mul_i32 s45, s50, 28")
        a("s_lshl_b32 s46, s45, 14")
        a(f"s_lshl_b32 s47, s{S_C}, 7")
        a("s_add_u32 s46, s46, s47")
        a(f"s_mul_i32 s47, s{S_T}, {2*112*1024}")
        a("s_lshl_b32 s48, s45, 10")
        a("s_add_u32 s47, s47, s48")
        a(f"s_add_u32 s47, s47, {WS_H}")
        a(f"s_add_u32 s48, s47, {112*1024}")
        for r in range(64):
            a(f"v_mov_b32 v{ACC+r}, 0")
        def w2dma(slot):
            for cb in range(2):
                a(f"s_add_u32 m0, s44, {slot*2048 + cb*1024}")
                a(f"s_add_u32 s49, s46, {cb*64}")
                a(f"buffer_load_dwordx4 v4, s[{SRD_A}:{SRD_A+3}], s49 offen lds")
            a("s_add_u32 s46, s46, 16384")
        def hload(slot):
            a(f"buffer_load_dwordx4 {vr(HST+8*slot,4)}, v1, s[{SRD_WS}:{SRD_WS+3}], s47 offen sc1")
            a(f"buffer_load_dwordx4 {vr(HST+8*slot+4,4)}, v1, s[{SRD_WS}:{SRD_WS+3}], s48 offen sc1")
            a("s_add_u32 s47, s47, 1024")
            a("s_add_u32 s48, s48, 1024")
        a(f"s_lshr_b32 s51, s{S_T}, 1")
        a("s_lshl_b32 s51, s51, 8")
        a("s_mul_i32 s52, s50, 56")
        a("s_add_u32 s51, s51, s52")
        a(f"s_add_u32 s51, s51, {FL2}")
        if 'nodown' in self.dbg:
            a(f"s_lshl_b32 s48, s50, 2")
            a(f"s_add_u32 s48, s48, {self.LDS_SYNC}")
            a("v_mov_b32 v2, s48")
            a("v_mov_b32 v3, 1")
            a("ds_write_b32 v2, v3")
            a("s_branch L_tail_gemm")
        self.poll_flags(51, 14)
        self.stamp(7)

        for sl in range(3):
            w2dma(sl); hload(sl)
        if 'glow' in self.dbg: a("s_setprio 0")
        def kstep(sl, vm, pre):
            a(f"s_waitcnt vmcnt({vm})")
            for cb in range(2):
                a(f"ds_read_b64_tr_b16 {vr(WF+4*cb,2)}, v7 offset:{sl*2048+cb*1024}")
                a(f"ds_read_b64_tr_b16 {vr(WF+4*cb+2,2)}, v7 offset:{sl*2048+cb*1024+512}")
            a("s_waitcnt lgkmcnt(0)")
            for tb in range(2):
                for cb in range(2):
                    acc = ACC + 16 * (2 * tb + cb)
                    a(f"v_mfma_f32_32x32x16_bf16 {vr(acc,16)}, {vr(WF+4*cb,4)}, {vr(HST+8*sl+4*tb,4)}, {vr(acc,16)}")
                    if 'nogspace' not in self.dbg:
                        a("s_sleep 2" if ('gmix' in self.dbg and cb == 1 and tb == 0) else "s_sleep 1")
            if pre:
                w2dma(sl); hload(sl)
        a("s_mov_b32 s43, 0")
        a.label("L_down_loop")
        for sl in range(3): kstep(sl, 8, True)
        a("s_add_u32 s43, s43, 1")
        a("s_cmp_lt_u32 s43, 8")
        a("s_cbranch_scc1 L_down_loop")
        kstep(0, 8, True)
        kstep(1, 8, False)
        kstep(2, 4, False)
        kstep(0, 0, False)
        self.srd(SRD_A, S_WO, 512 * 1024)
        a("v_lshrrev_b32 v4, 3, v0")
        a("v_lshlrev_b32 v4, 10, v4")
        a("v_and_b32 v5, 7, v0")
        a("v_lshl_add_u32 v4, v5, 4, v4")
        a("s_lshl_b32 s46, s50, 17")
        a(f"s_lshl_b32 s47, s{S_C}, 7")
        a("s_add_u32 s46, s46, s47")
        for i in range(16):
            a(f"buffer_load_dwordx4 {vr(self.wo_reg(i),4)}, v4, s[{SRD_A}:{SRD_A+3}], s46 offen")
            a("s_add_u32 s46, s46, 8192")
        a(f"s_lshl_b32 s48, s50, 2")
        a(f"s_add_u32 s48, s48, {self.LDS_SYNC}")
        a("v_mov_b32 v2, s48")
        a("v_mov_b32 v3, 1")
        a("ds_write_b32 v2, v3")
        self.stamp(8)
        a("s_branch L_tail_gemm")

    PPITCH, PPART, PBASE = 272, 64 * 272, 4 * 64 * 272

    def wo_reg(self, i):
        return 16 + 4 * i if i < 8 else 128 + 4 * (i - 8)

    def part_write(self, acc_of, tbs, part_sreg):
        a = self.a
        for tb in tbs:
            for cb in range(2):
                acc = acc_of(tb, cb)
                for b in range(4):
                    a(f"ds_write_b128 v9, {vr(acc+4*b,4)} offset:{tb*32*self.PPITCH + (32*cb+8*b)*4}")

    def tail(self):
        a = self.a
        a.label("L_tail_gemm")
        a(f"s_cmp_lg_u32 s{S_W}, 8")
        a("s_cbranch_scc1 L_tail_g1")
        a(f"s_lshr_b32 s51, s{S_T}, 2")
        a("s_lshl_b32 s51, s51, 8")
        a(f"s_add_u32 s51, s51, {FL3}")
        self.poll_flags(51, 32, vt=2)
        self.stamp(9)
        a.label("L_tail_g1")
        a("v_bfe_u32 v6, v0, 2, 1")
        a("v_lshlrev_b32 v6, 10, v6")
        a("v_lshrrev_b32 v7, 3, v0")
        a("v_lshl_add_u32 v6, v7, 6, v6")
        a("v_and_b32 v7, 3, v0")
        a("v_lshl_add_u32 v6, v7, 4, v6")
        a("s_lshl_b32 s44, s50, 14")
        a("v_add_u32 v6, s44, v6")
        a("v_and_b32 v9, 31, v0")
        a(f"v_mul_u32_u24 v9, {self.PPITCH}, v9")
        a("v_lshrrev_b32 v10, 5, v0")
        a("v_lshl_add_u32 v9, v10, 4, v9")
        a(f"s_mul_i32 s44, s50, {self.PPART}")
        a(f"s_add_u32 s44, s44, {self.PBASE}")
        a("v_add_u32 v9, s44, v9")
        a("s_waitcnt vmcnt(0)")
        a("s_barrier")
        for i in range(16):
            a(f"ds_write_b128 v6, {vr(self.wo_reg(i),4)} offset:{(i>>1)*2048 + (i&1)*512}")
        a("s_lshl_b32 s46, s50, 2")
        a(f"s_add_u32 s46, s46, {self.LDS_SYNC + 48}")
        a("v_mov_b32 v2, s46")
        a("v_mov_b32 v3, 1")
        a("s_waitcnt lgkmcnt(0)")
        a("ds_write_b32 v2, v3")
        self.part_write(lambda tb, cb: 64 + 16 * (2 * tb + cb), (0, 1), None)
        a("s_waitcnt lgkmcnt(0)")
        a("s_barrier")
        a("s_barrier")
        a("s_branch L_fin")
        a.label("L_tail_attn")
        a(f"s_and_b32 s44, s{S_W}, 1")
        a(f"s_lshr_b32 s45, s{S_W}, 1")
        a(f"s_lshl_b32 s52, s{S_T}, 1")
        a("s_add_u32 s52, s52, s44")
        a("s_lshl_b32 s52, s52, 15")
        a("s_lshl_b32 s48, s45, 13")
        a("s_add_u32 s52, s52, s48")
        a(f"s_add_u32 s52, s52, {WS_O}")
        a("s_add_u32 s53, s52, 4096")
        OF, ACC = 96, 64
        a("v_mov_b32 v8, v127")
        def oload(k):
            a(f"buffer_load_dwordx4 {vr(OF+4*k,4)}, v1, s[{SRD_WS}:{SRD_WS+3}], s{52+(k>>2)} offen offset:{(k&3)*1024} sc1")
        a("s_barrier")
        self.stamp(11)
        for k in range(8): oload(k)
        a("v_lshrrev_b32 v5, 3, v0")
        a(f"s_lshl_b32 s46, s{S_W}, 3")
        a("v_add_u32 v5, s46, v5")
        a("v_and_b32 v6, 7, v0")
        a(f"v_mul_u32_u24 v10, {self.PPITCH}, v5")
        a("v_lshl_add_u32 v10, v6, 5, v10")
        a(f"v_add_u32 v11, {self.PBASE}, v10")
        a("v_lshrrev_b32 v6, 5, v0")
        a("v_bfe_u32 v7, v0, 2, 2")
        a("v_lshl_add_u32 v7, v6, 2, v7")
        a("v_lshlrev_b32 v7, 6, v7")
        a("v_bfe_u32 v9, v0, 4, 1")
        a("v_lshl_add_u32 v7, v9, 5, v7")
        a("v_and_b32 v9, 3, v0")
        a("v_lshl_add_u32 v7, v9, 3, v7")
        a("s_lshl_b32 s48, s45, 14")
        a("v_add_u32 v7, s48, v7")
        a("v_and_b32 v9, 31, v0")
        a(f"v_mul_u32_u24 v9, {self.PPITCH}, v9")
        a("v_lshl_add_u32 v9, v6, 4, v9")
        a(f"s_mul_i32 s48, s45, {self.PPART}")
        a(f"s_mul_i32 s49, s44, {32*self.PPITCH}")
        a("s_add_u32 s48, s48, s49")
        a("v_add_u32 v9, s48, v9")
        for r in range(32):
            a(f"v_mov_b32 v{ACC+r}, 0")
        a(f"v_mov_b32 v12, {self.LDS_SYNC + 48}")
        self.lds_spin(12, 4, 16, 1)
        if 'taildet' in self.dbg: self.stamp(1)
        wreg = lambda k: (128 + 8 * k) if k < 4 else (32 + 8 * (k - 4))
        for k0 in (0, 3, 6):
            for k in range(k0, min(k0 + 3, 8)):
                for cb in range(2):
                    a(f"ds_read_b64_tr_b16 {vr(wreg(k)+4*cb,2)}, v7 offset:{k*2048+cb*1024}")
                    a(f"ds_read_b64_tr_b16 {vr(wreg(k)+4*cb+2,2)}, v7 offset:{k*2048+cb*1024+512}")
            a("s_waitcnt lgkmcnt(0)")
        Lchk, Lok, Lrnd = self.lab("ochk"), self.lab("ook"), self.lab("ornd")
        def check_pass(brk):
            for k in range(8):
                Ln, Lr = self.lab("on"), self.lab("or")
                a(f"s_bitcmp1_b32 s55, {k}")
                a(f"s_cbranch_scc0 {Ln}")
                a(f"v_cmp_eq_u32 vcc, -1, v{OF+4*k}")
                a("s_nop 1")
                a("s_cmp_eq_u64 vcc, 0")
                a(f"s_cbranch_scc0 {Lr}")
                for cb in range(2):
                    a(f"v_mfma_f32_32x32x16_bf16 {vr(ACC+16*cb,16)}, {vr(wreg(k)+4*cb,4)}, {vr(OF+4*k,4)}, {vr(ACC+16*cb,16)}")
                a(f"s_bitset0_b32 s55, {k}")
                a(f"s_branch {Ln}")
                a.label(Lr)
                oload(k)
                if 'inorder' in self.dbg: a(f"s_branch {brk}")
                a.label(Ln)
        if 'taildet' in self.dbg: self.stamp(2)
        a("s_mov_b32 s58, 0")
        a("s_mov_b32 s55, 0xff")
        a("s_waitcnt vmcnt(0)")
        Lp1 = self.lab("p1")
        check_pass(Lp1)
        a.label(Lp1)
        if 'taildet' in self.dbg: self.stamp(3)
        a("s_barrier")
        for half in range(2):
            for pp in range(2):
                a(f"ds_read_b128 v[12:15], v11 offset:{(2*pp)*self.PPART + 16*half}")
                a(f"ds_read_b128 v[16:19], v11 offset:{(2*pp+1)*self.PPART + 16*half}")
                a("s_waitcnt lgkmcnt(0)")
                for e in range(4):
                    if pp == 0: a(f"v_add_f32 v{20+4*half+e}, v{12+e}, v{16+e}")
                    else:
                        a(f"v_add_f32 v{12+e}, v{12+e}, v{16+e}")
                        a(f"v_add_f32 v{20+4*half+e}, v{20+4*half+e}, v{12+e}")
        for e in range(4):
            a(f"v_lshlrev_b32 v28, 16, v{164+e}")
            a(f"v_and_b32 v29, 0xffff0000, v{164+e}")
            a(f"v_add_f32 v{20+2*e}, v{20+2*e}, v28")
            a(f"v_add_f32 v{21+2*e}, v{21+2*e}, v29")
        if 'taildet' in self.dbg: self.stamp(4)
        a.label(Lchk)
        a("s_cmp_eq_u32 s55, 0")
        a(f"s_cbranch_scc1 {Lok}")
        a("s_add_u32 s58, s58, 1")
        a("s_cmp_ge_u32 s58, 0x4000")
        a(f"s_cbranch_scc1 {Lok}")
        a("s_waitcnt vmcnt(0)")
        check_pass(Lchk)
        a(f"s_branch {Lchk}")
        a.label(Lok)
        if 'loopdet' not in self.dbg: self.stamp(5)
        if self.stamps: a("s_mov_b32 s64, s58")
        for e in range(8):
            a(f"v_mul_f32 v{12+e}, {f2u(-math.log2(math.e)):#x}, v{20+e}")
        for e in range(8):
            a(f"v_exp_f32 v{12+e}, v{12+e}")
        self.part_write(lambda tb, cb: ACC + 16 * cb, (0,), None)
        for e in range(8):
            a(f"v_add_f32 v{12+e}, 1.0, v{12+e}")
        for e in range(8):
            a(f"v_rcp_f32 v{12+e}, v{12+e}")
        self.srd(SRD_B, S_OUT, 2048 * 1024)
        for e in range(8):
            a(f"v_mul_f32 v{20+e}, v{20+e}, v{12+e}")
        a("s_waitcnt lgkmcnt(0)")
        a("s_barrier")
        if 'loopdet' not in self.dbg: self.stamp(6)
        for p in range(4):
            a(f"ds_read_b128 {vr(32+8*p,4)}, v10 offset:{p*self.PPART}")
            a(f"ds_read_b128 {vr(36+8*p,4)}, v10 offset:{p*self.PPART+16}")
        a("s_waitcnt lgkmcnt(0)")
        for e in range(8):
            a(f"v_add_f32 v{32+e}, v{32+e}, v{40+e}")
            a(f"v_add_f32 v{48+e}, v{48+e}, v{56+e}")
        for e in range(8):
            a(f"v_add_f32 v{96+e}, v{32+e}, v{48+e}")
        for e in range(4):
            a(f"v_lshlrev_b32 v28, 16, v{160+e}")
            a(f"v_and_b32 v29, 0xffff0000, v{160+e}")
            a(f"v_fma_f32 v{96+2*e}, v{96+2*e}, v{20+2*e}, v28")
            a(f"v_fma_f32 v{97+2*e}, v{97+2*e}, v{21+2*e}, v29")
        for e in range(4):
            a(f"v_cvt_pk_bf16_f32 v{104+e}, v{96+2*e}, v{97+2*e}")
        if 'dlyC' in self.dbg: a("s_sleep 127")
        sc = "" if 'outplain' in self.dbg else " sc1"
        a(f"buffer_store_dwordx4 v[104:107], v8, s[{SRD_B}:{SRD_B+3}], s61 offen{sc}")

    def build(self):
        a = self.a
        self.entry()
        if 'oldorder' in self.dbg:
            self.role_qkv()
            self.role_v()
            self.role_x()
        else:
            self.role_x()
            self.role_qkv()
            self.role_v()
        self.role_w3()
        self.role_ffn()
        self.role_down()
        self.attn_slow()
        self.s2_idle()
        self.role_attn()
        self.tail()
        a.label("L_fin")
        if 'hdbg' in self.dbg:
            a("s_memrealtime s[90:91]")
            a("s_memtime s[84:85]")
            a("s_waitcnt lgkmcnt(0)")
            a(f"s_cmp_lg_u32 s{S_W}, 0")
            a("s_cbranch_scc1 L_hd_skip")
            self.srd(SRD_B, S_DBG, 256)
            a("s_not_b32 s92, s88")
            a("v_mov_b32 v2, s92")
            a("v_mov_b32 v3, s90")
            a("s_sub_u32 s92, s90, s88")
            a("v_mov_b32 v4, s92")
            a("s_sub_u32 s93, s84, s86")
            a("v_mov_b32 v5, s93")
            a("v_mov_b32 v6, 0")
            a("s_mov_b64 exec, 1")
            a(f"buffer_atomic_umax v2, v6, s[{SRD_B}:{SRD_B+3}], 0 offen offset:8")
            a(f"buffer_atomic_umax v3, v6, s[{SRD_B}:{SRD_B+3}], 0 offen offset:12")
            a(f"buffer_atomic_umax v4, v6, s[{SRD_B}:{SRD_B+3}], 0 offen offset:16")
            a(f"buffer_atomic_umax v5, v6, s[{SRD_B}:{SRD_B+3}], 0 offen offset:20")
            a("s_mov_b64 exec, -1")
            a.label("L_hd_skip")
        self.dump_stamps()
        a.label("L_end")
        a("s_endpgm")
        a.label("L_code_end")
        a(".fill 256, 4, 0xbf800000")
        return a

HEADER = """; out = x + MHA(LN(x)) * silu(FFN(LN(x)))     (B=1, S=2048, D=512, H=32, Dh=16, F=1792), bf16 in / out
; @launch grid=(256,1,1) block=(768,1,1) lds=163840
;
;      MFMAs on raw x; LayerNorm is applied in the epilogue, y = rstd*(x W - mean*colsum(W)), with the row statistics
;  S3  attention per (head, 256 queries), K/V of the head resident in LDS: waves 0..7, two query blocks and half of
;      Softmax guard: the exponentials are first taken without a shift; the result is accepted only if every row sum
;      rounding); otherwise the wave redoes its block with the true running maximum (L_attn_slow).
; Hand-offs between workgroups go through d_ws with write-through (sc1) stores and sc1 loads.  Q/K/V and h: each
; themselves.  No result depends on workgroup placement; the id -> tile maps only aim at L2 locality.
; All spin loops are bounded.  s_sleep appears only as back-off in those loops and between the background MFMAs of
.amdgcn_target "amdgcn-amd-amdhsa--gfx950"
.text
.globl {kn}
.p2align 8
.type {kn},@function
{kn}:
"""
FOOTER = """.section .rodata,"a"
.p2align 6
.amdhsa_kernel {kn}
  .amdhsa_next_free_vgpr 168
  .amdhsa_next_free_sgpr 102
  .amdhsa_accum_offset 168
  .amdhsa_group_segment_fixed_size 0
  .amdhsa_kernarg_size 88
  .amdhsa_user_sgpr_count 2
  .amdhsa_user_sgpr_kernarg_segment_ptr 1
  .amdhsa_system_sgpr_workgroup_id_x 1
.end_amdhsa_kernel
"""
def emit(path, **kw):
    g = Gen(**kw)
    a = g.build()
    check_hazards(a.lines)
    open(path, "w").write(HEADER.format(kn=KN) + a.text() + FOOTER.format(kn=KN))

if __name__ == "__main__":
    out = sys.argv[1] if len(sys.argv) > 1 else "k.s"
    dbg = [x[6:] for x in sys.argv if x.startswith("--dbg=")]
    stop = [x[7:] for x in sys.argv if x.startswith("--stop=")]
    emit(out, stamps=("--stamps" in sys.argv), dbg=dbg[0] if dbg else "", stop_after=stop[0] if stop else "all")
```
